```python
import torch

def _softmax(x, axis=-1):
    return torch.softmax(x, dim=axis)
def _gelu(x):
    return torch.nn.functional.gelu(x, approximate="tanh")
def _silu(x):
    return torch.nn.functional.silu(x)
def _sigmoid(x):
    return torch.sigmoid(x)
def _layernorm(x, axis=-1, eps=1e-5):
    m = x.mean(dim=axis, keepdim=True)
    v = x.var(dim=axis, keepdim=True, unbiased=False)
    return (x - m) / torch.sqrt(v + eps)
def _scatter_add(tgt, idx, src, axis=0):
    return tgt.clone().index_add_(axis, idx, src)
def _segment_sum(src, seg, n):
    out = torch.zeros((n,) + src.shape[1:], dtype=src.dtype)
    return out.index_add_(0, seg, src)
def _pad(x, pw):
    flat = tuple(v for pair in reversed(pw) for v in pair)
    return torch.nn.functional.pad(x, flat)

kernel_name = 'concat_heads__grouped_kv_mqa__ssm_conv_s4__prompt'

def setup_inputs():

    _w = (lambda a: (lambda t: t.to(torch.bfloat16) if t.is_floating_point() else t)(torch.as_tensor(a)))
    def _A_setup():
        B, S, D, H = 1, 2048, 640, 32
        Dh = D // H
        return {
            "x": _w((lambda *s: torch.randn(*s, dtype=torch.bfloat16) * 0.05)(B, S, D)),
            "wq": _w((lambda *s: torch.randn(*s, dtype=torch.bfloat16) * 0.8)(D, H * Dh)),
            "wk": _w((lambda *s: torch.randn(*s, dtype=torch.bfloat16) * 0.8)(D, Dh)),
            "wv": _w((lambda *s: torch.randn(*s, dtype=torch.bfloat16) * 0.05)(D, Dh)),
            "wo": _w((lambda *s: torch.randn(*s, dtype=torch.bfloat16) * 0.05)(H * Dh, D)),
        }
    _A_in = _A_setup()

    def _B_setup():
        B, L, D, N = 1, 2048, 640, 128
        A_re = -(lambda _x: torch.exp(torch.as_tensor(_x)))((lambda *s: torch.randn(*s, dtype=torch.bfloat16) * 6.4)(D, N))
        A_im = torch.pi * (lambda *s: torch.randn(*s, dtype=torch.bfloat16) * 0.1)(D, N)
        B_re = (lambda *s: torch.randn(*s, dtype=torch.bfloat16) * 0.1)(D, N)
        B_im = (lambda *s: torch.randn(*s, dtype=torch.bfloat16) * 0.1)(D, N)
        C_re = (lambda *s: torch.randn(*s, dtype=torch.bfloat16) * 0.1)(D, N)
        C_im = (lambda *s: torch.randn(*s, dtype=torch.bfloat16) * 0.1)(D, N)
        log_dt = (lambda *s: torch.randn(*s, dtype=torch.bfloat16) * 0.1)(D) * 0.5 - 4.0
        Dskip = (lambda *s: torch.randn(*s, dtype=torch.bfloat16) * 0.05)(D)
        return {
            "u": _w((lambda *s: torch.randn(*s, dtype=torch.bfloat16) * 0.05)(B, L, D)),
            "A_re": _w(A_re),
            "A_im": _w(A_im),
            "B_re": _w(B_re),
            "B_im": _w(B_im),
            "C_re": _w(C_re),
            "C_im": _w(C_im),
            "log_dt": _w(log_dt),
            "Dskip": _w(Dskip),
        }
    _B_in = _B_setup()

    return {
        "A_x": _A_in["x"],
        "A_wq": _A_in["wq"],
        "A_wk": _A_in["wk"],
        "A_wv": _A_in["wv"],
        "A_wo": _A_in["wo"],
        "B_u": _B_in["u"],
        "B_A_re": _B_in["A_re"],
        "B_A_im": _B_in["A_im"],
        "B_B_re": _B_in["B_re"],
        "B_B_im": _B_in["B_im"],
        "B_C_re": _B_in["C_re"],
        "B_C_im": _B_in["C_im"],
        "B_log_dt": _B_in["log_dt"],
        "B_Dskip": _B_in["Dskip"],
    }

def reference(A_x, A_wq, A_wk, A_wv, A_wo, B_u, B_A_re, B_A_im, B_B_re, B_B_im, B_C_re, B_C_im, B_log_dt, B_Dskip):
    def _A_ref(x, wq, wk, wv, wo):
        B, S, D = x.shape
        H = 32
        Dh = D // H
        q = (lambda x, *d: x.permute(*d))((x @ wq).reshape(B, S, H, Dh), 0, 2, 1, 3)
        k = x @ wk
        v = x @ wv
        scores = torch.einsum("bhqd,bkd->bhqk", q, k) * (Dh ** -0.5)
        p = _softmax(scores, axis=-1)
        o = torch.einsum("bhqk,bkd->bhqd", p, v)
        return (lambda x, *d: x.permute(*d))(o, 0, 2, 1, 3).reshape(B, S, H * Dh) @ wo

    def _B_ref(u, A_re, A_im, B_re, B_im, C_re, C_im, log_dt, Dskip):
        Bsz, L, D = u.shape
        dt = torch.exp(log_dt)[:, None]
        A = A_re + 1j * A_im
        Bc = B_re + 1j * B_im
        Cc = C_re + 1j * C_im
        logdA = dt * A
        dB = dt * Bc
        l = (lambda x, dt: x.to(dt))(torch.arange(L), A_re.dtype)
        P = torch.exp(logdA[:, :, None] * l[None, None, :])
        K = torch.einsum("dn,dnl,dn->dl", Cc, P, dB).real
        L2 = 2 * L
        Kp = _pad(K, ((0, 0), (0, L)))
        up = (lambda x, *d: x.permute(*d))(u, 0, 2, 1)
        up = _pad(up, ((0, 0), (0, 0), (0, L)))
        Kf = (lambda x, axes=(-2,-1): torch.fft.rfft2(x.float(), dim=axes))(Kp[:, None, :], axes=(-2, -1))
        Uf = (lambda x, axes=(-2,-1): torch.fft.rfft2(x.float(), dim=axes))(up[:, :, None, :], axes=(-2, -1))
        Yf = Uf * Kf[None, :, :, :]
        y = (lambda x, s, axes=(-2,-1): torch.fft.irfft2(x, s=s, dim=axes).to(torch.bfloat16))(Yf, (1, L2), axes=(-2, -1))[:, :, 0, :L]
        y = (lambda x, *d: x.permute(*d))(y, 0, 2, 1) + u * Dskip[None, None, :]
        return y

    a = _A_ref(A_x, A_wq, A_wk, A_wv, A_wo)
    b = _B_ref(B_u, B_A_re, B_A_im, B_B_re, B_B_im, B_C_re, B_C_im, B_log_dt, B_Dskip)
    return torch.concatenate([a, b], axis=-1)
```

```python
class Asm:
    def __init__(self):
        self.lines = []
    def __call__(self, s=""):
        for l in s.split("\n"):
            l = l.strip()
            if not l: continue
            if l.endswith(":") or l.startswith("."):
                self.lines.append(l)
            else:
                self.lines.append("    " + l)
    def c(self, s):
        self.lines.append("    ; " + s)
    def text(self):
        return "\n".join(self.lines) + "\n"

def v(i, n=1):
    return f"v{i}" if n == 1 else f"v[{i}:{i+n-1}]"
def s(i, n=1):
    return f"s{i}" if n == 1 else f"s[{i}:{i+n-1}]"

class Regs:
    def __init__(self, start=0, limit=256):
        self.p = start; self.limit = limit; self.hi = start
    def __call__(self, n=1, align=None):
        if align is None:
            align = 1 if n == 1 else 2
        self.p = (self.p + align - 1)//align*align
        r = self.p; self.p += n
        self.hi = max(self.hi, self.p)
        assert self.p <= self.limit, f"out of regs {self.p}"
        return r

def srd(a, d, base, nbytes):
    a(f"s_mov_b32 s{d}, s{base}")
    a(f"s_and_b32 s{d+1}, s{base+1}, 0xffff")
    a(f"s_mov_b32 s{d+2}, {nbytes:#x}")
    a(f"s_mov_b32 s{d+3}, 0x20000")

def srd_off(a, d, base, off, nbytes):
    a(f"s_add_u32 s{d}, s{base}, {off:#x}")
    a(f"s_addc_u32 s{d+1}, s{base+1}, 0")
    a(f"s_and_b32 s{d+1}, s{d+1}, 0xffff")
    a(f"s_mov_b32 s{d+2}, {nbytes:#x}")
    a(f"s_mov_b32 s{d+3}, 0x20000")

def kernel_header(name):
    return f""".text
.globl {name}
.p2align 8
.type {name},@function
{name}:
"""
def kernel_desc(name, vgpr, sgpr=102, kernarg=136):
    acc = min(256, (vgpr + 3)//4*4)
    return f""".section .rodata,"a"
.p2align 6
.amdhsa_kernel {name}
  .amdhsa_next_free_vgpr {vgpr}
  .amdhsa_next_free_sgpr {sgpr}
  .amdhsa_accum_offset {acc}
  .amdhsa_group_segment_fixed_size 0
  .amdhsa_kernarg_size {kernarg}
  .amdhsa_user_sgpr_count 2
  .amdhsa_user_sgpr_kernarg_segment_ptr 1
  .amdhsa_system_sgpr_workgroup_id_x 1
.end_amdhsa_kernel
"""
```

```python
import re
TRANS = ("v_exp_f32","v_log_f32","v_rcp_f32","v_rsq_f32","v_sqrt_f32","v_sin_f32","v_cos_f32")
def regs(tok, kind):
    tok = tok.strip()
    tok = tok.lstrip("-|").rstrip("|")
    if tok.startswith("neg(") or tok.startswith("abs("): tok = tok[4:-1]
    m = re.fullmatch(kind + r"(\d+)", tok)
    if m: return {int(m.group(1))}
    m = re.fullmatch(kind + r"\[(\d+):(\d+)\]", tok)
    if m: return set(range(int(m.group(1)), int(m.group(2))+1))
    if kind == "s":
        if tok == "vcc": return {106, 107}
        if tok == "vcc_lo": return {106}
        if tok == "vcc_hi": return {107}
        if tok == "m0": return {124}
        if tok == "exec": return {126, 127}
        if tok == "exec_lo": return {126}
        if tok == "exec_hi": return {127}
    return set()
class I:
    def __init__(self, text):
        self.text = text
        t = text.split(";")[0].strip()
        p = t.split(None, 1)
        self.op = p[0]
        rest = p[1] if len(p) > 1 else ""
        ops = [o.strip() for o in rest.split(",")] if rest else []
        mods = ""
        if ops:
            j = ",".join(ops)
            m = re.search(r"\s(op_sel|op_sel_hi|neg_lo|neg_hi|offset|offen|lds|sc0|sc1|nt|cbsz|abid|blgp|quad_perm|row_|dst_sel|src0_sel|src1_sel|clamp|mul:|off\b|glc|wave_|bank_mask|bound_ctrl)", " " + j)
            if m:
                mods = j[max(0, m.start()-0):]; j = j[:max(0, m.start()-0)]
            ops = [o.strip() for o in j.split(",") if o.strip()]
        self.ops = ops; self.mods = mods
        op = self.op
        self.mfma = op.startswith("v_mfma") or op.startswith("v_smfmac")
        self.valu = op.startswith("v_") and not self.mfma
        self.ds = op.startswith("ds_")
        self.vmem = op.startswith("buffer_") or op.startswith("global_") or op.startswith("flat_")
        self.salu = op.startswith("s_")
        self.trans = op.replace("_e32","").replace("_e64","") in TRANS
        self.dpp = "quad_perm" in mods or "row_" in mods or "wave_" in mods
        self.sdwa_dst = "dst_sel" in mods and "dst_sel:DWORD" not in mods
        V = lambda k: regs(ops[k], "v") if k < len(ops) else set()
        S = lambda k: regs(ops[k], "s") if k < len(ops) else set()
        allv = lambda a: set().union(*[V(k) for k in range(a, len(ops))]) if len(ops) > a else set()
        alls = lambda a: set().union(*[S(k) for k in range(a, len(ops))]) if len(ops) > a else set()
        self.vd = set(); self.vs = set(); self.sd = set(); self.ss = set(); self.C = set(); self.AB = set(); self.stdata = set()
        self.passes = 0
        if self.mfma:
            self.vd = V(0)
            if op.startswith("v_smfmac"):
                self.AB = V(1) | V(2) | V(3); self.C = V(0)
            else:
                self.AB = V(1) | V(2); self.C = V(3)
            self.vs = self.AB | self.C
            self.passes = 8 if "32x32" in op else 4
        elif self.valu:
            if op.startswith("v_permlane") and "swap" in op:
                self.vd = V(0) | V(1); self.vs = V(0) | V(1)
            elif op.startswith("v_cmp"):
                self.sd = S(0); self.vs = allv(1); self.ss = alls(1)
                if op.startswith("v_cmpx"): self.sd |= {126,127}
            elif op.startswith("v_readfirstlane") or op.startswith("v_readlane"):
                self.sd = S(0); self.vs = allv(1); self.ss = alls(1)
            elif "_co_" in op:
                self.vd = V(0); self.sd = S(1); self.vs = allv(2); self.ss = alls(2)
            else:
                self.vd = V(0); self.vs = allv(1); self.ss = alls(1)
                if op.startswith("v_fmac") or op.startswith("v_pk_fmac") or op.startswith("v_writelane") or self.dpp or self.sdwa_dst: self.vs |= V(0)
        elif self.ds:
            if op.startswith("ds_read") or "rtn" in op or "permute" in op or "swizzle" in op:
                self.vd = V(0); self.vs = allv(1)
            else:
                self.vs = allv(0)
        elif self.vmem:
            self.ss = alls(0)
            if "lds" in mods.split() or "_lds_" in op:
                self.vs = allv(0); self.ss |= {124}; self.ldsdma = True
            elif "load" in op:
                self.vd = V(0); self.vs = allv(1)
            elif op.startswith("buffer_store") or op.startswith("buffer_atomic"):
                self.vs = allv(0)
                if "x3" in op or "x4" in op: self.stdata = V(0)
                if "atomic" in op and "sc0" in mods: self.vd = V(0)
            else:
                self.vs = allv(0)
                if "x3" in op or "x4" in op: self.stdata = V(1)
        elif self.salu:
            if op.startswith("s_cmp") or op.startswith("s_cbranch") or op.startswith("s_bitcmp") or op in ("s_waitcnt","s_nop","s_barrier","s_branch","s_endpgm","s_setprio","s_sleep"):
                self.ss = alls(0)
            else:
                self.sd = S(0); self.ss = alls(1)
                if "saveexec" in op: self.sd |= {126,127}
    def states(self):
        if self.op == "s_nop": return int(self.ops[0], 0) + 1
        return 1
def need(p, c):
    n = 0
    if p.valu:
        if c.mfma and (p.vd & c.vs): n = max(n, 2)
        if c.mfma and (p.sd & {126,127}): n = max(n, 4)
        if p.trans and c.valu and not c.trans and (p.vd & c.vs): n = max(n, 1)
        if p.trans and (c.ds or c.vmem) and (p.vd & c.vs): n = max(n, 1)
        if c.valu and (c.op.startswith("v_readfirstlane") or c.op.startswith("v_readlane")) and (p.vd & c.vs): n = max(n, 1)
        if c.valu and c.op.startswith("v_permlane") and (p.vd & c.vs): n = max(n, 2)
        if c.valu and c.dpp and (p.vd & c.vs): n = max(n, 2)
        if c.vmem and (p.sd & c.ss): n = max(n, 5)
        if c.valu and (p.sd & c.ss): n = max(n, 2)
        if c.valu and c.op.startswith("v_cndmask") and len(c.ops) < 4 and (p.sd & {106,107}): n = max(n, 2)
        if c.valu and (c.op.startswith("v_readlane") or c.op.startswith("v_writelane")) and (p.sd & c.ss): n = max(n, 4)
        if (p.sd & {126,127}) and c.valu and (c.dpp): n = max(n, 5)
        if (p.sd & {126,127}) and c.valu and (c.op.startswith("v_read") or c.op.startswith("v_permlane")): n = max(n, 4)
        if (p.sdwa_dst or "op_sel" in p.mods and not p.op.startswith("v_pk")) and c.valu and (p.vd & (c.vs | c.vd)): n = max(n, 1)
    if p.mfma:
        big = 12 if p.passes == 8 else 8
        if c.mfma:
            if p.vd & c.AB: n = max(n, big)
            if p.vd & c.C and not (p.vd == c.C and p.passes == c.passes): n = max(n, 10 if p.passes == 8 else 6)
            if p.vd & c.vd and not (p.vd & c.C): n = max(n, 0)
        elif c.valu or c.ds or c.vmem:
            if p.vd & (c.vs | c.vd): n = max(n, big)
            if c.valu and (p.C & c.vd): n = max(n, 7 if p.passes == 8 else 3)
            if (c.ds or c.vmem) and (p.C & c.vd): n = max(n, 7 if p.passes == 8 else 3)
    if p.salu and 124 in p.sd and c.vmem and getattr(c, "ldsdma", False): n = max(n, 1)
    if p.stdata:
        if c.valu and (p.stdata & c.vd): n = max(n, 2)
        elif (p.stdata & c.vd): n = max(n, 1)
    return n
def fix(lines, verbose=True):
    out = []; hist = []
    ins = 0
    for ln in lines:
        t = ln.strip()
        if not t or t.startswith(";") or t.startswith(".") or t.endswith(":"):
            out.append(ln); continue
        c = I(t)
        dist = 0; req = 0; who = None
        for p in reversed(hist):
            r = need(p, c) - dist
            if r > req: req = r; who = p
            dist += p.states()
            if dist >= 20: break
        if req > 0:
            ins += 1
            if verbose: print(f"hz: +{req} before '{t}' due to '{who.text}'")
            k = req
            while k > 0:
                m = min(k, 16)
                out.append(f"    s_nop {m-1}"); hist.append(I(f"s_nop {m-1}")); k -= m
        out.append(ln); hist.append(c)
        if c.op in ("s_branch", "s_endpgm"): hist = []
    return out
```

```python
import sys, os
sys.path.insert(0, os.path.dirname(os.path.abspath(__file__)))
from asmlib import *
import hz
NAME = "concat_heads__grouped_kv_mqa__ssm_conv_s4__prompt"
WS_TAG=0; WS_FKV=0x1000; WS_FU=0x4000; WS_FY=0x8000; WS_FO=0x10000
WS_KV=0x20000; GRP=10496; CHUNK=21504
WS_O=0x50000; WS_UT=0x300000; UTP=8448; WS_YT=0x900000; WS_PROF=0xC00000; WS_SIZE=0x1000000
L_CNT=102400; L_WK=102528; L_SC=102528; SCP=8448; L_WO=43008; L_KR=145408; KRP=4608; LDS_TOTAL=163840
sW=3; sG=4; sS=5; sTag=6; sT=7
sX=8; sWQ=12; P=16
pX,pWQ,pWK,pWV,pWO,pU,pAre,pAim,pBre,pBim,pCre,pCim,pLdt,pDs,pOut,pDbg,pWS = [16+2*i for i in range(17)]
sWS=52; sA=56
sT2=50; sT3=51; sC=60; sSlotN=61; sGo=62; sSlotD=63; sBound=64; sCh=65; sU0=66; sH=67; sT4=68; sT5=69
sPr=70
SPIN = 200000

def gen(prof=False, opt=None):
    opt = opt or {}
    a = Asm()
    uid = [0]
    def lab(p="L"):
        uid[0] += 1; return f"{p}_{uid[0]}"
    np_ = {"a": 0, "h": 0}
    def stamp(role):
        if not prof: return
        i = np_[role]; np_[role] += 1
        assert i < 14
        a(f"s_memrealtime s[{sPr+2*i}:{sPr+2*i+1}]")
    def prof_store(role, vt):
        if not prof: return
        a("s_waitcnt lgkmcnt(0)")
        a(f"s_lshl_b32 s{sT}, s2, 3"); a(f"s_add_u32 s{sT}, s{sT}, s{sW}"); a(f"s_lshl_b32 s{sT}, s{sT}, 6")
        a(f"s_add_u32 s{sT}, s{sT}, {WS_PROF}")
        a("s_mov_b64 exec, 1")
        a(f"v_mov_b32 v{vt+1}, 0")
        for i in range(np_[role]):
            a(f"v_mov_b32 v{vt}, s{sPr+2*i}")
            a(f"buffer_store_dword v{vt}, v{vt+1}, s[{sWS}:{sWS+3}], s{sT} offen offset:{4*i}")
        a("s_waitcnt vmcnt(0)")
    def poll(vP, vOff, soff, n=1):
        L = lab("poll"); D = lab("pdone")
        a(f"s_mov_b32 s{sBound}, {SPIN}")
        a(f"{L}:")
        a(f"buffer_load_dword{'' if n==1 else 'x'+str(n)} {v(vP,n)}, v{vOff}, s[{sWS}:{sWS+3}], {soff} offen sc1")
        a(f"s_sub_u32 s{sBound}, s{sBound}, 1")
        a(f"s_cbranch_scc1 {D}")
        a("s_waitcnt vmcnt(0)")
        if n == 4:
            for i in range(4): a(f"v_xor_b32 v{vP+i}, s{sTag}, v{vP+i}")
            a(f"v_or3_b32 v{vP}, v{vP}, v{vP+1}, v{vP+2}")
            a(f"v_or_b32 v{vP}, v{vP}, v{vP+3}")
            a(f"v_cmp_ne_u32 vcc, 0, v{vP}")
        else:
            a(f"v_cmp_ne_u32 vcc, s{sTag}, v{vP}")
        a(f"s_cbranch_vccnz {L}")
        a(f"{D}:")
    def publish(vt, base, widx):
        a(f"s_lshl_b32 s{sT}, s2, 7"); a(f"s_lshl_b32 s{sT2}, s{widx}, 2"); a(f"s_add_u32 s{sT}, s{sT}, s{sT2}")
        a(f"s_add_u32 s{sT}, s{sT}, {base}")
        a(f"v_mov_b32 v{vt}, s{sTag}")
        a("s_mov_b64 exec, 1")
        a(f"buffer_store_dword v{vt}, off, s[{sWS}:{sWS+3}], s{sT} sc1")
        a("s_mov_b64 exec, -1")
    def ring_dma(wreg, vDma):
        for k in range(2):
            Lk = lab("dma")
            if k == 1:
                a(f"s_cmp_ge_u32 s{wreg}, 3"); a(f"s_cbranch_scc1 {Lk}")
            a(f"s_mul_i32 s{sT}, s{wreg}, 3072")
            if k: a(f"s_add_u32 s{sT}, s{sT}, {4*3072}")
            a(f"s_add_u32 m0, s{sT}, s{sSlotD}")
            a(f"s_add_u32 s{sT}, s{sT}, s{sGo}")
            for i in range(3):
                a(f"buffer_load_dwordx4 v{vDma}, s[{sWS}:{sWS+3}], s{sT} offen offset:{i*1024} sc1 lds")
            if k == 1: a(f"{Lk}:")
        a(f"s_add_u32 s{sGo}, s{sGo}, {CHUNK}")
        a(f"s_cmp_eq_u32 s{sGo}, {WS_KV+8*CHUNK}")
        a(f"s_cselect_b32 s{sGo}, {WS_KV}, s{sGo}")
        a(f"s_xor_b32 s{sSlotD}, s{sSlotD}, {CHUNK}")
    def wpattern(vP, vL, vt, perm):
        for p in range(5):
            a(f"v_add_u32 v{vt}, {64*p}, v{vL}")
            a(f"v_mul_u32_u24 v{vt+1}, 205, v{vt}")
            a(f"v_lshrrev_b32 v{vt+1}, 11, v{vt+1}")
            a(f"v_mul_u32_u24 v{vt+2}, 10, v{vt+1}")
            a(f"v_sub_u32 v{vt}, v{vt}, v{vt+2}")
            if perm:
                a(f"v_lshrrev_b32 v{vt+2}, 1, v{vt+1}")
                a(f"v_and_b32 v{vt+2}, 4, v{vt+2}")
                a(f"v_xor_b32 v{vt+1}, v{vt+1}, v{vt+2}")
            a(f"v_mul_u32_u24 v{vt+1}, 80, v{vt+1}")
            a(f"v_add_u32 v{vt}, v{vt}, v{vt+1}")
            if 0 < p < 4: a(f"v_subrev_u32 v{vt}, {64*p}, v{vt}")
            a(f"v_lshlrev_b32 v{vP+p}, 4, v{vt}")
    def wkstep_dma(vP, srd_, soff):
        for p in range(4):
            a(f"buffer_load_dwordx4 v{vP+p}, s[{srd_}:{srd_+3}], s{soff} offen offset:{p*1024} lds")
        a("s_add_u32 m0, m0, 4096")
        a(f"buffer_load_dwordx4 v{vP+4}, s[{srd_}:{srd_+3}], s{soff} offen lds")
        a("s_add_u32 m0, m0, 1024")

    if prof:
        a(f"s_memrealtime s[{sPr}:{sPr+1}]"); np_["a"] = np_["h"] = 1
    a("s_cmp_ge_u32 s2, 256")
    a("s_cbranch_scc1 L_end")
    a("s_load_dwordx16 s[16:31], s[0:1], 0")
    a("s_load_dwordx16 s[32:47], s[0:1], 64")
    a("s_load_dwordx2 s[48:49], s[0:1], 128")
    vL = 1
    a("v_lshrrev_b32 v2, 6, v0")
    a(f"v_and_b32 v{vL}, 63, v0")
    a(f"v_readfirstlane_b32 s{sW}, v2")
    if opt.get("codepf", 1):
        a("s_getpc_b64 s[50:51]")
        a("v_lshlrev_b32 v3, 6, v0")
        a("v_min_u32 v3, CODE_BYTES, v3")
        a("global_load_dword v4, v3, s[50:51]")
    a(f"s_and_b32 s{sG}, s2, 31")
    a(f"s_lshr_b32 s{sS}, s2, 5")
    a(f"s_cmp_ge_u32 s{sW}, 4")
    a("s_cbranch_scc1 L_helper")
    NPF = 1 if opt.get("codepf", 1) else 0

    R = Regs(5)
    vT = R(4, 4); vDma = R(); vCnt = R(); vOne = R()
    vX0 = R(); vX1 = R(); vP = R(5)
    a(f"v_lshrrev_b32 v{vT}, 3, v{vL}")
    a(f"v_lshrrev_b32 v{vT+1}, 4, v{vL}")
    a(f"v_xor_b32 v{vT+1}, v{vT+1}, v{vL}")
    a(f"v_and_b32 v{vT+1}, 7, v{vT+1}")
    a(f"v_mul_u32_u24 v{vT}, 80, v{vT}")
    a(f"v_add_u32 v{vT}, v{vT}, v{vT+1}")
    a(f"v_lshlrev_b32 v{vX0}, 4, v{vT}")
    a(f"v_xor_b32 v{vX1}, 64, v{vX0}")
    a(f"v_add_u32 v{vX1}, 10240, v{vX1}")
    a(f"s_lshl_b32 s{sT}, s{sG}, 2"); a(f"s_add_u32 s{sT}, s{sT}, s{sW}"); a(f"s_mul_i32 s{sT2}, s{sT}, 20480")
    a(f"s_mul_i32 s{sT3}, s{sW}, 20480")
    a(f"s_mov_b32 m0, s{sT3}")
    a(f"v_lshlrev_b32 v{vDma}, 4, v{vL}")
    a("s_waitcnt lgkmcnt(0)")
    stamp("a")
    srd(a, sX, pX, 2048*1280)
    for j in range(10):
        a(f"buffer_load_dwordx4 v{vX0}, s[{sX}:{sX+3}], s{sT2} offen offset:{128*j} lds")
        a("s_add_u32 m0, m0, 1024")
        a(f"buffer_load_dwordx4 v{vX1}, s[{sX}:{sX+3}], s{sT2} offen offset:{128*j} lds")
        a("s_add_u32 m0, m0, 896")
    a(f"s_load_dword s{sTag}, s[{pWS}:{pWS+1}], {WS_TAG}")
    Lnokv = lab("nokv")
    a(f"s_cmp_ge_u32 s{sS}, 2")
    a(f"s_cbranch_scc1 {Lnokv}")
    a(f"s_cmp_eq_u32 s{sS}, 0")
    a(f"s_cselect_b32 s{sA}, s{pWK}, s{pWV}")
    a(f"s_cselect_b32 s{sA+1}, s{pWK+1}, s{pWV+1}")
    a(f"s_and_b32 s{sA+1}, s{sA+1}, 0xffff"); a(f"s_mov_b32 s{sA+2}, 25600"); a(f"s_mov_b32 s{sA+3}, 0x20000")
    a(f"s_mul_i32 s{sT}, s{sW}, 7168")
    a(f"s_add_u32 m0, s{sT}, {L_WK}")
    for i in range(4): a(f"buffer_load_dwordx4 v{vDma}, s[{sA}:{sA+3}], s{sT} offen offset:{1024*i} lds")
    a(f"s_add_u32 s{sT}, s{sT}, 4096"); a("s_add_u32 m0, m0, 4096")
    for i in range(3): a(f"buffer_load_dwordx4 v{vDma}, s[{sA}:{sA+3}], s{sT} offen offset:{1024*i} lds")
    a(f"{Lnokv}:")
    wpattern(vP, vL, vT, True)
    srd(a, sWQ, pWQ, 640*1280)
    srd(a, sWS, pWS, WS_SIZE)
    a(f"s_add_u32 s{sT}, s{sW}, 16")
    a(f"s_mul_i32 m0, s{sT}, 5120")
    a(f"s_mul_i32 s{sT}, s{sT}, 40960")
    a(f"s_mul_i32 s{sT4}, s{sS}, 160")
    a(f"s_add_u32 s{sT}, s{sT}, s{sT4}")
    wkstep_dma(vP, sWQ, sT)
    vXr = R(2); vAB = R(2); vE = R(2)
    a(f"v_and_b32 v{vT}, 15, v{vL}")
    a(f"v_lshrrev_b32 v{vT+1}, 4, v{vL}")
    a(f"v_lshrrev_b32 v{vT+2}, 1, v{vT}")
    a(f"v_xor_b32 v{vT+2}, v{vT+2}, v{vT+1}")
    a(f"v_lshlrev_b32 v{vT+2}, 4, v{vT+2}")
    a(f"v_lshlrev_b32 v{vT}, 7, v{vT}")
    a(f"v_add3_u32 v{vXr}, v{vT}, v{vT+2}, s{sT3}")
    a(f"v_xor_b32 v{vXr+1}, 64, v{vXr}")
    a(f"v_bfe_u32 v{vT}, v{vL}, 2, 2")
    a(f"v_lshl_add_u32 v{vT}, v{vT+1}, 3, v{vT}")
    vRow8 = R()
    a(f"v_mov_b32 v{vRow8}, v{vT}")
    a(f"v_and_b32 v{vT+2}, 1, v{vT+1}")
    a(f"v_lshl_add_u32 v{vT}, v{vT+2}, 2, v{vT}")
    a(f"v_xor_b32 v{vT+2}, 4, v{vT}")
    a(f"v_mul_u32_u24 v{vT}, 160, v{vT}")
    a(f"v_mul_u32_u24 v{vT+2}, 160, v{vT+2}")
    a(f"v_and_b32 v{vT+1}, 3, v{vL}")
    a(f"v_mul_u32_u24 v{vT+3}, 40, v{vT+1}")
    a(f"v_add_u32 v{vT+3}, {51200+32}, v{vT+3}")
    a(f"v_add_u32 v{vE}, v{vT}, v{vT+3}"); a(f"v_add_u32 v{vE+1}, v{vT+2}, v{vT+3}")
    a(f"v_and_b32 v{vT+3}, 1, v{vL}")
    a(f"v_mul_u32_u24 v{vT+3}, 40, v{vT+3}")
    a(f"v_and_b32 v{vT+1}, 2, v{vL}")
    a(f"v_lshl_add_u32 v{vT+3}, v{vT+1}, 3, v{vT+3}")
    a(f"v_add_u32 v{vT+3}, 51200, v{vT+3}")
    a(f"v_add_u32 v{vAB}, v{vT}, v{vT+3}"); a(f"v_add_u32 v{vAB+1}, v{vT+2}, v{vT+3}")
    a(f"v_mov_b32 v{vCnt}, {L_CNT}"); a(f"v_mov_b32 v{vOne}, 1")
    a("s_waitcnt lgkmcnt(0)")
    a(f"s_mul_i32 s{sTag}, s{sTag}, 1664525"); a(f"s_add_u32 s{sTag}, s{sTag}, 1013904223")
    a("s_barrier")
    def lsig(k):
        a("s_mov_b64 exec, 1"); a(f"ds_add_u32 v{vCnt}, v{vOne} offset:{4*k}"); a("s_mov_b64 exec, -1")
    def lwait(k, n=4):
        L = lab("ls"); D = lab("lsd")
        a(f"s_mov_b32 s{sBound}, {SPIN*4}")
        a(f"{L}:")
        a(f"ds_read_b32 v{vT}, v{vCnt} offset:{4*k}")
        a(f"s_sub_u32 s{sBound}, s{sBound}, 1"); a(f"s_cbranch_scc1 {D}")
        a("s_waitcnt lgkmcnt(0)")
        a(f"v_cmp_gt_u32 vcc, {n}, v{vT}")
        a(f"s_cbranch_vccnz {L}")
        a(f"{D}:")
    XF = R(80, 4); ACC = R(20, 4); WF = [R(20, 4), R(20, 4)]
    def xreads():
        for k in range(20):
            a(f"ds_read_b128 {v(XF+4*k,4)}, v{vXr+(k&1)} offset:{2048*(k>>1)}")
            if k == 11: a("s_waitcnt lgkmcnt(4)")
    def w2_dma():
        a(f"s_mov_b32 m0, s{sT3}")
        a(f"s_mul_i32 s{sT}, s{sW}, {4*40960}")
        a(f"s_add_u32 s{sT}, s{sT}, s{sT4}")
        for i in range(4):
            wkstep_dma(vP, sWQ, sT)
            if i < 3: a(f"s_add_u32 s{sT}, s{sT}, 40960")
    Lq = lab("qonly"); Lj = lab("join")
    a(f"s_cmp_ge_u32 s{sS}, 2")
    a(f"s_cbranch_scc1 {Lq}")
    a("s_waitcnt vmcnt(12)")
    stamp("a")
    xreads()
    vKM = R(); vKE = R()
    a(f"v_mul_u32_u24 v{vT}, 40, v{vRow8}")
    a(f"v_add_u32 v{vKE}, {L_WK+32}, v{vT}")
    a(f"v_and_b32 v{vT+1}, 3, v{vL}")
    a(f"v_lshl_add_u32 v{vT}, v{vT+1}, 3, v{vT}")
    a(f"v_add_u32 v{vKM}, {L_WK}, v{vT}")
    a("s_waitcnt vmcnt(5)")
    lsig(0); lwait(0)
    def kvproj(isK):
        D1 = ACC; D2 = ACC+4
        def rd(k):
            b = WF[0] + 8*(k % 5)
            return [f"ds_read_b64_tr_b16 {v(b+2*t,2)}, v{vKM} offset:{1280*k+160*t}" for t in range(2)] + \
                   [f"ds_read_b64_tr_b16 {v(b+4+2*t,2)}, v{vKE} offset:{1280*k+160*t}" for t in range(2)]
        for k in range(3):
            for x in rd(k): a(x)
        for k in range(20):
            b = WF[0] + 8*(k % 5)
            a(f"s_waitcnt lgkmcnt({4*min(2,19-k)})")
            nx = rd(k+3) if k+3 < 20 else []
            for D, o in ((D1, 0), (D2, 4)):
                A_, B_ = v(b+o,4), v(XF+4*k,4)
                if not isK: A_, B_ = B_, A_
                a(f"v_mfma_f32_16x16x32_bf16 {v(D,4)}, {A_}, {B_}, {'0' if k==0 else v(D,4)}")
                for x in nx[o//2:o//2+2]: a(x)
    a(f"s_lshr_b32 s{sT}, s{sG}, 2"); a(f"s_mul_i32 s{sT}, s{sT}, {CHUNK}")
    a(f"s_bfe_u32 s{sT2}, s{sG}, 0x10001"); a(f"s_mul_i32 s{sT2}, s{sT2}, {GRP}")
    a(f"s_add_u32 s{sT}, s{sT}, s{sT2}"); a(f"s_add_u32 s{sGo}, s{sT}, {WS_KV}")
    a(f"s_and_b32 s{sT}, s{sG}, 1"); a(f"s_lshl_b32 s{sT}, s{sT}, 1"); a(f"s_lshr_b32 s{sT2}, s{sW}, 1"); a(f"s_add_u32 s{sC}, s{sT}, s{sT2}")
    a(f"s_and_b32 s{sT5}, s{sW}, 1")
    LV = lab("isv"); LKd = lab("kvdone")
    a(f"s_cmp_eq_u32 s{sS}, 1"); a(f"s_cbranch_scc1 {LV}")
    def pack_swap():
        D1 = ACC; D2 = ACC+4
        a(f"v_cvt_pk_bf16_f32 v{ACC+8}, v{D1}, v{D1+1}"); a(f"v_cvt_pk_bf16_f32 v{ACC+9}, v{D1+2}, v{D1+3}")
        a(f"v_cvt_pk_bf16_f32 v{ACC+10}, v{D2}, v{D2+1}"); a(f"v_cvt_pk_bf16_f32 v{ACC+11}, v{D2+2}, v{D2+3}")
        a(f"v_permlane16_swap_b32 v{ACC+8}, v{ACC+10}")
        a(f"v_permlane16_swap_b32 v{ACC+9}, v{ACC+11}")
    a(f"v_and_b32 v{vT+2}, 15, v{vL}"); a(f"v_lshlrev_b32 v{vT+2}, 4, v{vT+2}")
    a(f"v_and_b32 v{vT+3}, 32, v{vL}"); a(f"v_lshl_add_u32 v{vT+3}, v{vT+3}, 4, v{vT+2}")
    a(f"s_lshl_b32 s{sT5}, s{sT5}, 8"); a(f"s_add_u32 s{sGo}, s{sGo}, s{sT5}")
    a(f"s_lshl_b32 s{sT}, s{sC}, 10"); a(f"s_add_u32 s{sT}, s{sT}, s{sGo}")
    a(f"s_lshr_b32 s{sT2}, s{sC}, 1"); a(f"s_lshl_b32 s{sT2}, s{sT2}, 9"); a(f"s_add_u32 s{sT2}, s{sT2}, s{sGo}")
    a(f"s_and_b32 s{sT5}, s{sC}, 1"); a(f"s_lshl_b32 s{sT5}, s{sT5}, 3"); a(f"s_add_u32 s{sT2}, s{sT2}, s{sT5}"); a(f"s_add_u32 s{sT2}, s{sT2}, 4096")
    kvproj(True)
    pack_swap()
    a("s_mov_b32 exec_lo, 0xffff"); a("s_mov_b32 exec_hi, 0xffff")
    a(f"buffer_store_dwordx4 {v(ACC+8,4)}, v{vT+3}, s[{sWS}:{sWS+3}], s{sT} offen sc1")
    a("s_mov_b32 exec_lo, 0xffff0000"); a("s_mov_b32 exec_hi, 0")
    a(f"buffer_store_dwordx2 {v(ACC+8,2)}, v{vT+2}, s[{sWS}:{sWS+3}], s{sT2} offen sc1")
    a(f"s_branch {LKd}")
    a(f"{LV}:")
    a(f"v_and_b32 v{vT+2}, 31, v{vL}"); a(f"v_lshlrev_b32 v{vT+2}, 4, v{vT+2}")
    a(f"v_lshrrev_b32 v{vT+3}, 5, v{vL}"); a(f"v_mul_u32_u24 v{vT+3}, 336, v{vT+3}"); a(f"v_add_u32 v{vT+3}, v{vT+3}, v{vT+2}")
    a(f"s_mul_i32 s{sT5}, s{sT5}, 672"); a(f"s_mul_i32 s{sT}, s{sC}, 1344"); a(f"s_add_u32 s{sT}, s{sT}, s{sT5}")
    a(f"s_add_u32 s{sT}, s{sT}, s{sGo}"); a(f"s_add_u32 s{sT}, s{sT}, 5120")
    kvproj(False)
    pack_swap()
    a("s_mov_b32 exec_lo, 0x100000"); a("s_mov_b32 exec_hi, 0x100000")
    for i in range(4): a(f"v_mov_b32 v{ACC+8+i}, 0x3f803f80")
    a("s_mov_b32 exec_lo, 0x1fffff"); a("s_mov_b32 exec_hi, 0x1fffff")
    a(f"buffer_store_dwordx4 {v(ACC+8,4)}, v{vT+3}, s[{sWS}:{sWS+3}], s{sT} offen sc1")
    a(f"{LKd}:")
    a("s_mov_b64 exec, -1")
    stamp("a")
    w2_dma()
    a("s_waitcnt vmcnt(20)")
    publish(vT, WS_FKV, sW)
    a(f"s_branch {Lj}")
    a(f"{Lq}:")
    a("s_waitcnt vmcnt(5)")
    if prof: np_["a"] -= 2
    stamp("a")
    xreads()
    a("s_waitcnt lgkmcnt(0)")
    stamp("a")
    w2_dma()
    a("s_waitcnt vmcnt(20)")
    a(f"{Lj}:")
    stamp("a")
    lsig(1); lwait(1)
    def qsteps(ks, first):
        def rd(k, buf):
            off = 5120*k - (51200 if k >= 10 else 0)
            r = []
            for t5 in range(5):
                for t in range(2):
                    if t5 < 4: r.append(f"ds_read_b64_tr_b16 {v(buf+4*t5+2*t,2)}, v{vAB+t} offset:{off+80*(t5>>1)+8*(t5&1)}")
                    else: r.append(f"ds_read_b64_tr_b16 {v(buf+16+2*t,2)}, v{vE+t} offset:{off}")
            return r
        def adj(sign):
            for x in (vAB, vAB+1, vE, vE+1):
                a(f"v_{'add' if sign>0 else 'subrev'}_u32 v{x}, 51200, v{x}")
        for x in rd(ks[0], WF[0]): a(x)
        for n, k in enumerate(ks):
            buf = WF[n & 1]
            nx = []
            if n+1 < len(ks):
                if ks[n+1] == 10: adj(+1)
                nx = rd(ks[n+1], WF[(n+1) & 1])
            a("s_waitcnt lgkmcnt(0)")
            for t5 in range(5):
                a(f"v_mfma_f32_16x16x32_bf16 {v(ACC+4*t5,4)}, {v(buf+4*t5,4)}, {v(XF+4*k,4)}, {'0' if first and n==0 else v(ACC+4*t5,4)}")
                for x in nx[2*t5:2*t5+2]: a(x)
        return adj
    adj = qsteps([16,17,18,19], True)
    adj(-1)
    a("s_waitcnt vmcnt(0)")
    stamp("a")
    lsig(2); lwait(2)
    qsteps(list(range(16)), False)
    lsig(3)
    stamp("a")
    RA = Regs(R.hi if False else 20)
    Q1 = [RA(4, 4) for _ in range(2)]; Q2a = [RA(2) for _ in range(2)]; Q2b = [RA(2) for _ in range(2)]
    assert RA.p <= ACC
    c = (20**-0.5)*1.4426950408889634
    import struct
    cbits = struct.unpack("<I", struct.pack("<f", c))[0]
    vK0 = RA(); vV0 = RA(); vK = RA(); vV = RA(); vIdx = RA()
    a(f"s_and_b32 s{sT}, s{sG}, 28")
    a(f"v_lshrrev_b32 v{vT+1}, 3, v{vL}")
    a(f"v_add_u32 v{vT+1}, s{sT}, v{vT+1}"); a(f"v_and_b32 v{vT+1}, 31, v{vT+1}")
    a(f"v_and_b32 v{vT+2}, 4, v{vL}"); a(f"v_lshl_add_u32 v{vT+1}, v{vT+2}, 3, v{vT+1}")
    a(f"v_lshlrev_b32 v{vT+1}, 5, v{vT+1}"); a(f"v_and_b32 v{vT+2}, 3, v{vL}"); a(f"v_add_u32 v{vT+1}, v{vT+1}, v{vT+2}")
    a(f"v_lshlrev_b32 v{vT+1}, 2, v{vT+1}")
    for i in range(20): a(f"v_mul_f32 v{ACC+i}, {cbits:#x}, v{ACC+i}")
    for j in range(2):
        for i in range(4): a(f"v_cvt_pk_bf16_f32 v{Q1[j]+i}, v{ACC+8*j+2*i}, v{ACC+8*j+2*i+1}")
    for i in range(2):
        a(f"v_cvt_pk_bf16_f32 v{Q2a[0]+i}, v{ACC+16+2*i}, v{ACC+17+2*i}")
        a(f"v_mov_b32 v{Q2a[1]+i}, 0"); a(f"v_mov_b32 v{Q2b[0]+i}, 0")
        a(f"v_mov_b32 v{Q2b[1]+i}, v{Q2a[0]+i}")
    for i in range(2):
        a(f"v_permlane32_swap_b32 v{Q2a[0]+i}, v{Q2a[1]+i}")
        a(f"v_permlane32_swap_b32 v{Q2b[0]+i}, v{Q2b[1]+i}")
    a(f"v_mov_b32 v{vIdx}, 0xdddd")
    a(f"v_mov_b32 v{vK0}, v{vDma}")
    a(f"v_and_b32 v{vT+2}, 31, v{vL}"); a(f"v_min_u32 v{vT+2}, 20, v{vT+2}"); a(f"v_lshlrev_b32 v{vT+2}, 4, v{vT+2}")
    a(f"v_lshrrev_b32 v{vT+3}, 5, v{vL}"); a(f"v_mul_u32_u24 v{vT+3}, 336, v{vT+3}")
    a(f"v_add_u32 v{vV0}, v{vT+2}, v{vT+3}"); a(f"v_add_u32 v{vV0}, 5120, v{vV0}")
    a(f"v_mov_b32 v{vK}, v{vK0}"); a(f"v_mov_b32 v{vV}, v{vV0}")
    NB = 4
    S = [RA(16, 4) for _ in range(NB)]
    O = [RA(16, 4) for _ in range(2)]
    C = [RA(16, 4) for _ in range(2)]
    K1 = [RA(4, 4) for _ in range(2)]; K2 = [RA(4, 4) for _ in range(2)]
    V0 = [RA(4, 4) for _ in range(2)]; V1 = [RA(4, 4) for _ in range(2)]
    for j in range(2):
        for i in range(16): a(f"v_mov_b32 v{O[j]+i}, 0")
    for i in range(4): a(f"v_mov_b32 v{V1[1]+i}, 0")
    for i in range(8): a(f"v_mov_b32 v{S[NB-1]+8+i}, 0")
    a(f"s_lshr_b32 s{sGo}, s{sG}, 2"); a(f"s_mul_i32 s{sGo}, s{sGo}, {CHUNK}"); a(f"s_add_u32 s{sGo}, s{sGo}, {WS_KV}")
    a(f"s_mov_b32 s{sSlotD}, 0")
    a(f"s_mov_b32 s{sT5}, {WS_FKV}")
    lwait(3)
    poll(vT+2, vT+1, f"s{sT5}")
    stamp("a")
    ring_dma(sW, vDma)
    Lw3 = lab("w3"); Lw4 = lab("w4")
    ring_dma(sW, vDma)
    a(f"s_cmp_ge_u32 s{sW}, 3"); a(f"s_cbranch_scc1 {Lw3}")
    a("s_waitcnt vmcnt(6)"); a(f"s_branch {Lw4}")
    a(f"{Lw3}:"); a("s_waitcnt vmcnt(3)"); a(f"{Lw4}:")
    lsig(4); lwait(4)
    stamp("a")
    if opt.get("prio", 1): a("s_setprio 3")
    TPC = 8
    def rdK1(T):
        Tl = T % TPC
        return f"ds_read_b128 {v(K1[T%2],4)}, v{vK} offset:{(Tl//4)*GRP + (Tl%4)*1024}"
    def rdK2(T):
        Tl = T % TPC
        return f"ds_read_b128 {v(K2[(T//4)%2],4)}, v{vK} offset:{(Tl//4)*GRP+4096}"
    def rdV(T, sidx):
        Tl = T % TPC
        buf = (V0 if sidx == 0 else V1)[T%2]
        return f"ds_read_b128 {v(buf,4)}, v{vV} offset:{(Tl//4)*GRP+(Tl%4)*1344+sidx*672}"
    def qkA(n, cz=False):
        T, j = divmod(n, 2); t4 = T % 4
        q = Q2a[j] if t4 < 2 else Q2b[j]
        return f"v_mfma_f32_32x32x8_bf16 {v(S[n%NB],16)}, {v(K2[(T//4)%2]+2*(t4&1),2)}, {v(q,2)}, " + ("0" if cz else v(C[j],16))
    def qkB(n):
        T, j = divmod(n, 2)
        return f"v_mfma_f32_32x32x16_bf16 {v(S[n%NB],16)}, {v(K1[T%2],4)}, {v(Q1[j],4)}, {v(S[n%NB],16)}"
    def pv(n, sidx):
        T, j = divmod(n, 2)
        buf = (V0 if sidx == 0 else V1)[T%2]
        return f"v_smfmac_f32_32x32x32_bf16 {v(O[j],16)}, {v(buf,4)}, {v(S[n%NB]+8*sidx,8)}, v{vIdx}"
    def rowmax(Sj, dst, init=None):
        if init is None:
            a(f"v_max3_f32 v{dst}, v{Sj}, v{Sj+1}, v{Sj+2}")
            for i in range(3, 15, 2): a(f"v_max3_f32 v{dst}, v{dst}, v{Sj+i}, v{Sj+i+1}")
            a(f"v_max_f32 v{dst}, v{dst}, v{Sj+15}")
        else:
            for i in range(0, 16, 2): a(f"v_max3_f32 v{dst}, v{dst}, v{Sj+i}, v{Sj+i+1}")
    def setC(j, m, t2):
        a(f"v_mov_b32 v{t2}, v{m}")
        a(f"v_permlane32_swap_b32 v{m}, v{t2}")
        a(f"v_max_f32 v{m}, v{m}, v{t2}")
        for i in range(16): a(f"v_sub_f32 v{C[j]+i}, 0, v{m}")
    a(rdK1(0)); a(rdK2(0)); a(rdV(0,0)); a(rdV(0,1))
    a("s_waitcnt lgkmcnt(2)")
    for j in range(2):
        a(qkA(j, True)); a(qkB(j))
    for j in range(2):
        rowmax(S[j], vT)
        setC(j, vT, vT+1)
        if j == 0:
            for i in range(16): a(f"v_add_f32 v{S[0]+i}, v{S[0]+i}, v{C[0]+i}")
    a(f"s_mov_b32 s{sC}, 0")
    a(f"s_mov_b32 s{sSlotN}, {CHUNK}")
    a("s_waitcnt lgkmcnt(0)")
    a(".p2align 6")
    a("L_loop:")
    for n in range(16):
        T, j = divmod(n, 2)
        ins = {i: [] for i in range(17)}
        ins[0].append(qkA(n+1))
        ins[4].append(qkB(n+1))
        if j == 0:
            ins[4] += [rdK1(T+1) if False else ""]
        ins[8].append(pv(n-1, 1))
        ins[12].append(pv(n, 0))
        if j == 0:
            ins[0] += [rdK1(T+1), rdV(T+1,0)]
            if (T+1) % 4 == 0: ins[0].append(rdK2(T+1))
            ins[12].append("s_waitcnt lgkmcnt(0)")
        else:
            ins[0].append(rdV(T+1,1))
        if n == 13:
            ins[8].append(f"s_cmp_eq_u32 s{sC}, 7")
            ins[12] += ["s_waitcnt vmcnt(0) lgkmcnt(0)", "s_cbranch_scc1 L_nobar", "s_barrier", "L_nobar:"]
            ins[13] += [f"v_add_u32 v{vK}, s{sSlotN}, v{vK0}", f"v_add_u32 v{vV}, s{sSlotN}, v{vV0}"]
        if n == 14:
            ins[8] += [f"s_xor_b32 s{sSlotN}, s{sSlotN}, {CHUNK}"]
        if n == 15:
            ins[8] += [f"s_add_u32 s{sC}, s{sC}, 1", f"s_cmp_lt_u32 s{sC}, 8"]
        for i in range(16):
            for x in ins[i]:
                if x: a(x)
            a(f"v_exp_f32 v{S[n%NB]+i}, v{S[n%NB]+i}")
    a("s_cbranch_scc1 L_loop")
    a(pv(15, 1))
    stamp("a")
    a("s_waitcnt lgkmcnt(0)")
    a(f"v_mov_b32 v{vT}, 0"); a(f"v_mov_b32 v{vT+1}, 0")
    for j in range(2):
        for i in range(0, 12, 2):
            a(f"v_pk_fma_f32 {v(vT,2)}, {v(O[j]+i,2)}, 0, {v(vT,2)} op_sel_hi:[1,0,1]")
    a(f"v_add_f32 v{vT}, v{vT}, v{vT+1}")
    a(f"v_add_f32 v{vT}, v{vT}, v{O[0]+12}")
    a(f"v_add_f32 v{vT}, v{vT}, v{O[1]+12}")
    thr = 0x71800000 if not opt.get("forceslow") else 0
    a(f"v_cmp_nle_f32 vcc, v{vT}, v{vT+1}" if False else f"v_cmp_ngt_f32 vcc, {thr:#x}, v{vT}")
    a("s_cbranch_vccnz L_slow")
    a("L_slow_ret:")
    for j in range(2):
        a(f"v_rcp_f32 v{vT+j}, v{O[j]+12}")
    a(f"s_lshl_b32 s{sGo}, s{sG}, 5"); a(f"s_add_u32 s{sGo}, s{sGo}, s{sW}"); a(f"s_mul_i32 s{sGo}, s{sGo}, 2560")
    a(f"s_add_u32 s{sGo}, s{sGo}, {WS_O}")
    a(f"s_mul_i32 s{sT3}, s{sS}, 10240"); a(f"s_add_u32 s{sT3}, s{sT3}, s{sGo}")
    for j in range(2):
        for i in range(12): a(f"v_mul_f32 v{O[j]+i}, v{O[j]+i}, v{vT+j}")
        for i in range(6): a(f"v_cvt_pk_bf16_f32 v{O[j]+i}, v{O[j]+2*i}, v{O[j]+2*i+1}")
        a(f"buffer_store_dwordx4 {v(O[j],4)}, v{vDma}, s[{sWS}:{sWS+3}], s{sT3} offen offset:{1024*j} sc1")
    a(f"v_lshlrev_b32 v{vT+2}, 3, v{vL}")
    for i in range(2): a(f"v_permlane32_swap_b32 v{O[0]+4+i}, v{O[1]+4+i}")
    a(f"buffer_store_dwordx2 {v(O[0]+4,2)}, v{vT+2}, s[{sWS}:{sWS+3}], s{sT3} offen offset:2048 sc1")
    if opt.get("prio", 1): a("s_setprio 0")
    RO = Regs(20)
    vWm = RO(); vWl = RO(); vO8 = RO(); vOut = RO(); vFl = RO()
    OF = RO(80, 4); AC = RO(20, 4); NWB = 5
    WB = [RO(20, 4) for _ in range(NWB)]
    assert not (set(range(vWm, vFl+1)) & set(range(O[0], O[1]+16)))
    a(f"v_mov_b32 v{vO8}, v{vT+2}")
    a(f"v_bfe_u32 v{vT}, v{vL}, 2, 2")
    a(f"v_bfe_u32 v{vT+1}, v{vL}, 4, 1")
    a(f"v_mul_u32_u24 v{vT+1}, 20, v{vT+1}"); a(f"v_add_u32 v{vT}, v{vT}, v{vT+1}")
    a(f"v_lshrrev_b32 v{vT+1}, 5, v{vL}")
    a(f"v_mul_u32_u24 v{vT+2}, 40, v{vT+1}"); a(f"v_add3_u32 v{vT+2}, v{vT+2}, v{vT}, 16")
    a(f"v_lshl_add_u32 v{vT}, v{vT+1}, 2, v{vT}")
    a(f"v_and_b32 v{vT+1}, 3, v{vL}"); a(f"v_mul_u32_u24 v{vT+1}, 40, v{vT+1}"); a(f"v_add_u32 v{vT+1}, {L_WO}, v{vT+1}")
    a(f"v_mul_u32_u24 v{vT}, 160, v{vT}"); a(f"v_add_u32 v{vWm}, v{vT}, v{vT+1}")
    a(f"v_mul_u32_u24 v{vT+2}, 160, v{vT+2}"); a(f"v_add_u32 v{vWl}, v{vT+2}, v{vT+1}")
    a(f"v_and_b32 v{vT}, 15, v{vL}"); a(f"v_mul_u32_u24 v{vT}, 2560, v{vT}")
    a(f"v_lshrrev_b32 v{vT+1}, 4, v{vL}"); a(f"v_mul_u32_u24 v{vT+1}, 40, v{vT+1}"); a(f"v_add_u32 v{vOut}, v{vT}, v{vT+1}")
    a(f"v_and_b32 v{vT}, 7, v{vL}"); a(f"v_lshlrev_b32 v{vFl}, 12, v{vT}")
    srd(a, sA, pOut, 2048*2560)
    steps = []
    for p in range(4):
        steps += [("m", 2*p, 0), ("m", 2*p, 1), ("m", 2*p+1, 0), ("m", 2*p+1, 1), ("l", 2*p, 0)]
    def wrd(n):
        kind, sp, j = steps[n]; buf = WB[n % NWB]; r = []
        sub = 51200 if sp >= 4 else 0
        for t5 in range(5):
            for t in range(2):
                if kind == "m": r.append(f"ds_read_b64_tr_b16 {v(buf+4*t5+2*t,2)}, v{vWm} offset:{(80*sp+40*j+8*t)*160+8*t5-sub}")
                else: r.append(f"ds_read_b64_tr_b16 {v(buf+4*t5+2*t,2)}, v{vWl} offset:{80*(sp+t)*160+8*t5-sub}")
        return r
    a("s_waitcnt vmcnt(0)")
    publish(vT, WS_FO, sW)
    stamp("a")
    for n in range(NWB-1):
        for x in wrd(n): a(x)
        a("s_waitcnt lgkmcnt(4)")
    a(f"s_lshl_b32 s{sT}, s{sG}, 7"); a(f"s_lshl_b32 s{sT2}, s{sW}, 2"); a(f"s_add_u32 s{sT}, s{sT}, s{sT2}"); a(f"s_add_u32 s{sT5}, s{sT}, {WS_FO}")
    poll(vT, vFl, f"s{sT5}")
    stamp("a")
    for p in range(4):
        for q in range(2):
            for j in range(2):
                a(f"buffer_load_dwordx4 {v(OF+20*p+8*q+4*j,4)}, v{vDma}, s[{sWS}:{sWS+3}], s{sGo} offen offset:{1024*j} sc1")
            a(f"buffer_load_dwordx2 {v(OF+20*p+16+2*q,2)}, v{vO8}, s[{sWS}:{sWS+3}], s{sGo} offen offset:2048 sc1")
            if (p, q) != (3, 1): a(f"s_add_u32 s{sGo}, s{sGo}, 10240")
    need = [1, 2, 4, 5, 6]
    for n in range(20):
        p, r_ = divmod(n, 5)
        nn = n + NWB - 1
        nx = []
        if nn < 20:
            if nn == 10:
                a(f"v_add_u32 v{vWm}, 51200, v{vWm}"); a(f"v_add_u32 v{vWl}, 51200, v{vWl}")
            nx = wrd(nn)
        out_allowed = min(10, 10*(min(19, nn-1) - n))
        a(f"s_waitcnt vmcnt({24-6*p-need[r_]}) lgkmcnt({out_allowed})")
        for t5 in range(5):
            a(f"v_mfma_f32_16x16x32_bf16 {v(AC+4*t5,4)}, {v(WB[n%NWB]+4*t5,4)}, {v(OF+4*n,4)}, {'0' if n==0 else v(AC+4*t5,4)}")
            for x in nx[2*t5:2*t5+2]: a(x)
    a(f"s_lshl_b32 s{sT}, s{sG}, 2"); a(f"s_add_u32 s{sT}, s{sT}, s{sW}"); a(f"s_mul_i32 s{sT}, s{sT}, {16*2560}")
    a(f"s_add_u32 s{sT}, s{sT}, s{sT4}")
    for i in range(10): a(f"v_cvt_pk_bf16_f32 v{OF+i}, v{AC+2*i}, v{AC+2*i+1}")
    a(f"buffer_store_dwordx4 {v(OF,4)}, v{vOut}, s[{sA}:{sA+3}], s{sT} offen")
    a(f"buffer_store_dwordx4 {v(OF+4,4)}, v{vOut}, s[{sA}:{sA+3}], s{sT} offen offset:16")
    a(f"buffer_store_dwordx2 {v(OF+8,2)}, v{vOut}, s[{sA}:{sA+3}], s{sT} offen offset:32")
    if prof:
        stamp("a"); a("s_waitcnt vmcnt(0)"); stamp("a")
        prof_store("a", vT)
    a("s_endpgm")
    a("L_slow:")
    M = [vK, vV]
    for j in range(2):
        a(f"v_mov_b32 v{M[j]}, 0xff800000")
        for i in range(16): a(f"v_mov_b32 v{C[j]+i}, 0"); a(f"v_mov_b32 v{O[j]+i}, 0")
    a(f"s_mov_b32 s{sSlotN}, 0")
    a("L_slow_pass:")
    a(f"s_mov_b32 s{sC}, 0")
    a("L_slow_it:")
    a(f"s_lshr_b32 s{sT}, s{sC}, 2"); a(f"s_mul_i32 s{sT}, s{sT}, {CHUNK}")
    a(f"s_bfe_u32 s{sT2}, s{sC}, 0x10001"); a(f"s_mul_i32 s{sT2}, s{sT2}, {GRP}")
    a(f"s_add_u32 s{sT}, s{sT}, s{sT2}"); a(f"s_add_u32 s{sT}, s{sT}, {WS_KV}")
    a(f"s_and_b32 s{sT2}, s{sC}, 1")
    a(f"s_lshl_b32 s{sT3}, s{sT2}, 10"); a(f"s_add_u32 s{sT3}, s{sT3}, s{sT}")
    for q in range(2): a(f"buffer_load_dwordx4 {v(K1[q],4)}, v{vK0}, s[{sWS}:{sWS+3}], s{sT3} offen offset:{2048*q} sc1")
    a(f"s_lshl_b32 s{sT3}, s{sT2}, 3"); a(f"s_add_u32 s{sT3}, s{sT3}, s{sT}"); a(f"s_add_u32 s{sT3}, s{sT3}, 4096")
    a(f"buffer_load_dwordx2 {v(K2[0],2)}, v{vK0}, s[{sWS}:{sWS+3}], s{sT3} offen sc1")
    a(f"s_mul_i32 s{sT3}, s{sT2}, 1344"); a(f"s_add_u32 s{sT3}, s{sT3}, s{sT}")
    for q in range(2):
        a(f"buffer_load_dwordx4 {v(V0[q],4)}, v{vV0}, s[{sWS}:{sWS+3}], s{sT3} offen offset:{2688*q} sc1")
        a(f"buffer_load_dwordx4 {v(V1[q],4)}, v{vV0}, s[{sWS}:{sWS+3}], s{sT3} offen offset:{2688*q+672} sc1")
    a("s_waitcnt vmcnt(0)")
    for q in range(2):
        for j in range(2):
            Sx = S[2*q+j]
            a(f"v_mfma_f32_32x32x8_bf16 {v(Sx,16)}, {v(K2[0],2)}, {v((Q2a if q==0 else Q2b)[j],2)}, {v(C[j],16)}")
            a(f"v_mfma_f32_32x32x16_bf16 {v(Sx,16)}, {v(K1[q],4)}, {v(Q1[j],4)}, {v(Sx,16)}")
    a("s_nop 15")
    a(f"s_cmp_eq_u32 s{sSlotN}, 1"); a("s_cbranch_scc1 L_slow_p2")
    for q in range(2):
        for j in range(2): rowmax(S[2*q+j], M[j], True)
    a("s_branch L_slow_nx")
    a("L_slow_p2:")
    for i in range(64): a(f"v_exp_f32 v{S[0]+i}, v{S[0]+i}")
    a("s_nop 1")
    for q in range(2):
        for j in range(2):
            for sidx in range(2):
                a(f"v_smfmac_f32_32x32x32_bf16 {v(O[j],16)}, {v((V0 if sidx==0 else V1)[q],4)}, {v(S[2*q+j]+8*sidx,8)}, v{vIdx}")
    a("s_nop 15")
    a("L_slow_nx:")
    a(f"s_add_u32 s{sC}, s{sC}, 1"); a(f"s_cmp_lt_u32 s{sC}, 32"); a("s_cbranch_scc1 L_slow_it")
    a(f"s_cmp_eq_u32 s{sSlotN}, 1"); a("s_cbranch_scc1 L_slow_ret")
    for j in range(2): setC(j, M[j], vT)
    a(f"s_mov_b32 s{sSlotN}, 1")
    a("s_branch L_slow_pass")
    assert S[1] == S[0]+16 and S[3] == S[0]+48
    hi_a = max(R.hi, RA.hi, RO.hi)

    a("L_helper:")
    H = Regs(5)
    hT = H(8, 4); hDma = H(); hP = H(5); hAt = H(); vU = H(); vY = H()
    a(f"v_mov_b32 v{vU}, 0"); a(f"v_mov_b32 v{vY}, 0")
    a(f"s_sub_u32 s{sH}, s{sW}, 4")
    a(f"v_lshlrev_b32 v{hDma}, 4, v{vL}")
    a(f"v_mov_b32 v{hT}, 0"); a(f"v_lshlrev_b32 v{hT+1}, 2, v{vL}"); a(f"v_and_b32 v{hT+1}, 127, v{hT+1}")
    a(f"v_add_u32 v{hT+1}, {L_CNT}, v{hT+1}")
    a(f"ds_write_b32 v{hT+1}, v{hT}")
    a("s_waitcnt lgkmcnt(0)")
    stamp("h")
    a(f"s_load_dword s{sTag}, s[{pWS}:{pWS+1}], {WS_TAG}")
    srd(a, sWS, pWS, WS_SIZE)
    srd(a, sWQ, pWO, 640*1280)
    a(f"s_cmp_lt_u32 s{sS}, 3"); a("s_cbranch_scc1 L_h_pre_tr")
    PR = H(8, 2)
    a(f"s_sub_u32 s{sCh}, s2, 96"); a(f"s_lshl_b32 s{sCh}, s{sCh}, 2"); a(f"s_add_u32 s{sCh}, s{sCh}, s{sH}")
    a(f"s_lshl_b32 s{sT}, s{sCh}, 8")
    a(f"v_lshlrev_b32 v{hT}, 2, v{vL}"); a(f"v_add_u32 v{hT}, s{sT}, v{hT}")
    a(f"s_lshl_b32 s{sT}, s{sCh}, 1"); a(f"v_mov_b32 v{hT+1}, s{sT}")
    a(f"global_load_ushort v{PR+6}, v{hT+1}, s[{pLdt}:{pLdt+1}]")
    for i, p in enumerate((pAre, pAim, pBre, pBim, pCre, pCim)):
        a(f"global_load_dword v{PR+i}, v{hT}, s[{p}:{p+1}]")
    a(f"global_load_ushort v{PR+7}, v{hT+1}, s[{pDs}:{pDs+1}]")
    a("L_h_pre_tr:")
    wpattern(hP, vL, hT, False)
    a("s_waitcnt lgkmcnt(0)")
    a(f"s_mul_i32 s{sTag}, s{sTag}, 1664525"); a(f"s_add_u32 s{sTag}, s{sTag}, 1013904223")
    a("s_barrier")
    a(f"s_cmp_lt_u32 s{sS}, 3"); a("s_cbranch_scc1 L_h_tr")
    a(f"s_mul_i32 s{sU0}, s{sCh}, {UTP}"); a(f"s_add_u32 s{sU0}, s{sU0}, {WS_UT}")
    for i in range(4): a(f"v_mov_b32 v{hT+i}, 0")
    a(f"v_and_b32 v{hT+4}, 7, v{vL}"); a(f"v_lshlrev_b32 v{hT+4}, 4, v{hT+4}")
    a(f"v_bfe_u32 v{hT+5}, v{vL}, 3, 1"); a(f"v_mul_u32_u24 v{hT+5}, 4224, v{hT+5}"); a(f"v_add_u32 v{hT+4}, v{hT+4}, v{hT+5}")
    a("s_mov_b64 exec, 0xffff")
    a(f"buffer_store_dwordx4 {v(hT,4)}, v{hT+4}, s[{sWS}:{sWS+3}], s{sU0} offen sc1")
    a("s_mov_b64 exec, -1")
    vSw = H(); vSr = H(); vKb = H(); vKc = H(); vKf = H()
    SEL = H(6)
    a(f"s_mul_i32 s{sT}, s{sH}, {SCP}"); a(f"s_add_u32 s{sT}, s{sT}, {L_SC}")
    a(f"v_lshlrev_b32 v{vSw}, 3, v{vL}"); a(f"v_add_u32 v{vSw}, s{sT}, v{vSw}")
    a(f"v_and_b32 v{hT+4}, 15, v{vL}")
    a(f"v_lshrrev_b32 v{hT+5}, 4, v{vL}")
    a(f"v_mul_u32_u24 v{hT+6}, 528, v{hT+4}"); a(f"v_lshl_add_u32 v{hT+6}, v{hT+5}, 4, v{hT+6}"); a(f"v_add_u32 v{vSr}, s{sT}, v{hT+6}")
    a(f"s_mul_i32 s{sT2}, s{sH}, {KRP}"); a(f"s_add_u32 s{sT2}, s{sT2}, {L_KR}")
    a(f"v_lshlrev_b32 v{hT+6}, 4, v{hT+4}")
    a(f"v_and_b32 v{hT+7}, 1, v{hT+5}"); a(f"v_lshl_add_u32 v{hT+7}, v{hT+7}, 3, v{hT+6}")
    a(f"v_and_b32 v{vKb}, 32, v{vL}"); a(f"v_lshl_add_u32 v{hT+7}, v{vKb}, 4, v{hT+7}")
    a(f"s_add_u32 s{sT3}, s{sT2}, {4088-256}")
    a(f"v_sub_u32 v{vKb}, s{sT3}, v{hT+7}")
    a(f"v_lshlrev_b32 v{hT+7}, 9, v{hT+5}")
    a(f"v_add_u32 v{hT+7}, v{hT+7}, v{hT+6}")
    a("s_mov_b32 exec_lo, 0"); a("s_mov_b32 exec_hi, 0xffff0000")
    a(f"v_add_u32 v{hT+7}, 512, v{hT+7}")
    a("s_mov_b64 exec, -1")
    a(f"s_add_u32 s{sT3}, s{sT2}, {4080-1024-256-512}")
    a(f"v_sub_u32 v{vKc}, s{sT3}, v{hT+7}")
    a(f"v_lshlrev_b32 v{hT+7}, 5, v{hT+4}")
    a(f"v_lshlrev_b32 v{vY}, 3, v{hT+5}"); a(f"v_add_u32 v{vY}, v{vY}, v{hT+7}")
    a(f"s_add_u32 s{sT3}, s{sT2}, {4064-3584}")
    a(f"v_sub_u32 v{vKf}, s{sT3}, v{hT+7}"); a(f"v_lshl_add_u32 v{vKf}, v{hT+5}, 4, v{vKf}")
    a(f"v_or_b32 v{hT+7}, 1, v{hT+4}"); a(f"v_lshl_add_u32 v{hT+7}, v{hT+5}, 3, v{hT+7}"); a(f"v_lshlrev_b32 v{hT+7}, 1, v{hT+7}")
    a(f"v_and_b32 v{hT+6}, 1, v{vL}"); a(f"v_mul_u32_u24 v{vU}, 4224, v{hT+6}")
    a(f"v_sub_u32 v{vU}, {4224+128-30}, v{vU}"); a(f"v_add_u32 v{vU}, v{vU}, v{hT+7}")
    def sel(lo, hi): return (2*lo) | (2*lo+1) << 8 | (2*hi) << 16 | (2*hi+1) << 24
    a(f"v_mov_b32 v{SEL}, {sel(3,2):#x}"); a(f"v_mov_b32 v{SEL+1}, {sel(1,0):#x}")
    a(f"v_mov_b32 v{SEL+2}, {sel(2,2):#x}"); a(f"v_mov_b32 v{SEL+3}, {sel(1,1):#x}"); a(f"v_mov_b32 v{SEL+4}, {sel(1,0):#x}")
    a("s_mov_b32 exec_lo, 0")
    a(f"v_mov_b32 v{SEL}, {sel(2,1):#x}"); a(f"v_mov_b32 v{SEL+1}, {sel(0,0):#x}")
    a(f"v_mov_b32 v{SEL+2}, {sel(1,1):#x}"); a(f"v_mov_b32 v{SEL+4}, {sel(0,0):#x}")
    a(f"v_mul_u32_u24 v{SEL+3}, 0x101, v{hT+6}"); a(f"v_lshlrev_b32 v{SEL+3}, 17, v{SEL+3}"); a(f"v_add_u32 v{SEL+3}, {sel(1,0):#x}, v{SEL+3}")
    a(f"v_add_u32 v{SEL+5}, 0x04040404, v{SEL+3}")
    a("s_mov_b32 exec_lo, -1")
    a(f"v_lshlrev_b32 v{hT+7}, 3, v{vL}"); a(f"v_add_u32 v{hT+7}, s{sT2}, v{hT+7}")
    a(f"ds_write_b64 v{hT+7}, {v(hT,2)} offset:4096")
    HK = Regs(H.p)
    Z1 = [HK(2) for _ in range(2)]; Z2 = [HK(2) for _ in range(2)]; Z4 = [HK(2) for _ in range(2)]; Z8 = [HK(2) for _ in range(2)]
    ZB = [HK(2) for _ in range(2)]; Wc = [[HK(2) for _ in range(2)] for _ in range(2)]; Cu = [[HK(2) for _ in range(2)] for _ in range(2)]
    E = [HK(2) for _ in range(2)]; AR = [HK(2) for _ in range(2)]; TB = [HK(2) for _ in range(2)]; TC = [HK(2) for _ in range(2)]
    LF = [HK(32, 4) for _ in range(2)]; HF = HK(32, 4); DK = [HK(4, 4) for _ in range(4)]; EX = HK(8, 4)
    L2E = 1.4426950408889634
    f2 = lambda x: struct.unpack("<I", struct.pack("<f", x))[0]
    hi_ = struct.unpack("<f", struct.pack("<f", L2E))[0]; lo_ = L2E - hi_
    a("s_waitcnt vmcnt(1)")
    stamp("h")
    dt = hT+4
    a(f"v_lshlrev_b32 v{hT+5}, 16, v{PR+6}")
    a(f"v_mul_f32 v{hT+6}, {f2(hi_):#x}, v{hT+5}")
    a(f"s_mov_b32 s{sT}, {f2(hi_):#x}")
    a(f"v_fma_f32 v{hT+7}, v{hT+5}, s{sT}, -v{hT+6}")
    a(f"v_fmac_f32 v{hT+7}, {f2(lo_):#x}, v{hT+5}")
    a(f"v_exp_f32 v{hT+6}, v{hT+6}")
    a(f"v_mul_f32 v{hT+7}, {f2(0.6931471805599453):#x}, v{hT+7}")
    a(f"v_fmac_f32 v{hT+6}, v{hT+6}, v{hT+7}")
    a(f"v_cvt_pk_bf16_f32 v{dt}, v{hT+6}, v{hT+6}")
    a(f"v_lshlrev_b32 v{dt}, 16, v{dt}")
    def unpack(dst, src, m):
        if m == 0: a(f"v_lshlrev_b32 v{dst}, 16, v{src}")
        else: a(f"v_and_b32 v{dst}, 0xffff0000, v{src}")
    def cmul(d, x, y):
        for m in range(2): a(f"v_pk_mul_f32 {v(d[m],2)}, {v(x[m],2)}, {v(y[m],2)} op_sel:[0,0] op_sel_hi:[0,1]")
        for m in range(2): a(f"v_pk_fma_f32 {v(d[m],2)}, {v(x[m],2)}, {v(y[m],2)}, {v(d[m],2)} op_sel:[1,1,0] op_sel_hi:[1,0,1] neg_lo:[0,1,0]")
    for m in range(2):
        for i in range(2):
            unpack(AR[m]+i, PR+i, m); unpack(TB[m]+i, PR+2+i, m); unpack(TC[m]+i, PR+4+i, m)
    for m in range(2):
        for i in range(2):
            a(f"v_mul_f32 v{AR[m]+i}, v{dt}, v{AR[m]+i}"); a(f"v_mul_f32 v{TB[m]+i}, v{dt}, v{TB[m]+i}")
        a(f"v_mul_f32 v{AR[m]}, {f2(L2E):#x}, v{AR[m]}")
        a(f"v_mul_f32 v{AR[m]+1}, {f2(0.15915494309189535):#x}, v{AR[m]+1}")
    def cpow(d, p):
        for m in range(2):
            if p != 1:
                a(f"v_mul_f32 v{E[m]}, {f2(float(p)):#x}, v{AR[m]}"); a(f"v_mul_f32 v{E[m]+1}, {f2(float(p)):#x}, v{AR[m]+1}")
                a(f"v_exp_f32 v{E[m]}, v{E[m]}"); a(f"v_fract_f32 v{E[m]+1}, v{E[m]+1}")
            else:
                a(f"v_exp_f32 v{E[m]}, v{AR[m]}"); a(f"v_fract_f32 v{E[m]+1}, v{AR[m]+1}")
        for m in range(2):
            a(f"v_cos_f32 v{d[m]}, v{E[m]+1}"); a(f"v_sin_f32 v{d[m]+1}, v{E[m]+1}")
        for m in range(2):
            a(f"v_mul_f32 v{d[m]}, v{E[m]}, v{d[m]}"); a(f"v_mul_f32 v{d[m]+1}, v{E[m]}, v{d[m]+1}")
    er = [0]
    def row(x, rows, neg):
        e = EX + 2*(er[0] % 4); er[0] += 1
        for m in range(2): a(f"v_cvt_pk_bf16_f32 v{e+m}, v{x[m]}, {'-' if neg else ''}v{x[m]+1}")
        for r_ in rows: a(f"ds_write_b64 v{vSw}, {v(e,2)} offset:{528*r_}")
    def frags(dst):
        for q in range(8): a(f"ds_read_b128 {v(dst+4*q,4)}, v{vSr} offset:{64*q}")
    cpow(Z8, 8)
    a(f"v_mov_b32 v{EX+6}, 0x3f80"); a(f"v_mov_b32 v{EX+7}, 0x3f80")
    a(f"ds_write_b64 v{vSw}, {v(EX+6,2)}")
    row(Z8, [1], False)
    cur = Z8
    for j in range(2, 32):
        nxt = Cu[j & 1]
        cmul(nxt, cur, Z8); cur = nxt
        if j % 4 == 0: a("s_waitcnt lgkmcnt(2)")
        row(cur, [j % 16], False)
        if j == 15: frags(LF[0])
    frags(LF[1])
    cpow(Z1, 1); cpow(ZB, 256)
    cmul(Wc[0], TC, TB)
    cmul(Z2, Z1, Z1); cmul(Z4, Z2, Z2)
    a("s_waitcnt lgkmcnt(0)")
    row(Wc[0], [0], True)
    cur = Wc[0]
    for h_ in range(1, 8):
        nxt = Cu[h_ & 1]; cmul(nxt, cur, Z1); cur = nxt
        if h_ % 4 == 0: a("s_waitcnt lgkmcnt(2)")
        row(cur, [h_], True)
    cmul(Wc[1], Wc[0], ZB); a("s_waitcnt lgkmcnt(2)"); row(Wc[1], [8], True)
    cur = Wc[1]
    for i, rows in enumerate(([9], [10, 12], [13], [14])):
        nxt = Cu[i & 1]; cmul(nxt, cur, Z2); cur = nxt
        if i == 2: a("s_waitcnt lgkmcnt(2)")
        row(cur, rows, True)
    frags(HF)
    def hmfma(hb):
        for q in range(8):
            for lb in range(2):
                D = DK[2*hb+lb]
                a(f"v_mfma_f32_16x16x32_bf16 {v(D,4)}, {v(HF+4*q,4)}, {v(LF[lb]+4*q,4)}, {'0' if q==0 else v(D,4)}")
    g_ = 1
    def nextG():
        nonlocal g_
        cmul(Wc[(g_+1) & 1], Wc[g_ & 1], ZB); g_ += 1
        return Wc[g_ & 1]
    G = nextG()
    a("s_waitcnt lgkmcnt(0)")
    hmfma(0)
    for base in (0, 4):
        if base: G = nextG()
        row(G, [base], True)
        cmul(Cu[0], G, Z4); row(Cu[0], [base+1], True)
        cmul(Cu[1], Cu[0], Z4); a("s_waitcnt lgkmcnt(1)"); row(Cu[1], [base+2], True)
    for r_ in (8, 10, 12, 14):
        G = nextG(); a("s_waitcnt lgkmcnt(1)"); row(G, [r_], True)
        cmul(Cu[0], G, Z8); row(Cu[0], [r_+1], True)
    frags(HF)
    a(f"v_lshlrev_b32 v{PR+7}, 16, v{PR+7}")
    a("s_mov_b64 exec, 1"); a(f"v_add_f32 v{DK[0]}, v{DK[0]}, v{PR+7}"); a("s_mov_b64 exec, -1")
    a("s_waitcnt lgkmcnt(0)")
    hmfma(1)
    for lb in range(2):
        D = DK[lb]
        a(f"v_cvt_pk_bf16_f32 v{D}, v{D}, v{D+1}"); a(f"v_cvt_pk_bf16_f32 v{D+1}, v{D+2}, v{D+3}")
        a(f"v_perm_b32 v{D+2}, v{D+1}, v{D}, v{SEL}"); a(f"v_perm_b32 v{D+3}, v{D+1}, v{D}, v{SEL+1}")
        a(f"ds_write_b64 v{vKb}, {v(D+2,2)} offset:{256*(1-lb)}")
    a(f"s_mov_b32 s{sT}, {sel(0,0):#x}"); a(f"s_mov_b32 s{sT2}, {sel(3,3):#x}"); a(f"s_mov_b32 s{sT3}, {sel(2,2):#x}")
    for lb in range(2):
        D = DK[2+lb]; X = LF[0] + 8*lb
        a(f"v_cvt_pk_bf16_f32 v{D}, v{D}, v{D+1}"); a(f"v_cvt_pk_bf16_f32 v{D+1}, v{D+2}, v{D+3}")
        for i in range(3): a(f"v_perm_b32 v{X+i}, v{D+1}, v{D}, v{SEL+2+i}")
        a(f"v_perm_b32 v{X+3}, v{D+1}, v{D}, s{sT}")
        a(f"ds_write_b128 v{vKc}, {v(X,4)} offset:{512+256*(1-lb)}")
        a("s_mov_b32 exec_lo, 0")
        a(f"v_perm_b32 v{X+4}, v{D+1}, v{D}, s{sT2}"); a(f"v_perm_b32 v{X+5}, v{D+1}, v{D}, v{SEL+5}")
        a(f"v_perm_b32 v{X+6}, v{D+1}, v{D}, s{sT3}"); a(f"v_perm_b32 v{X+7}, v{D+1}, v{D}, s{sT3}")
        a(f"ds_write_b128 v{vKc}, {v(X+4,4)} offset:{256*(1-lb)}")
        a("s_mov_b32 exec_lo, -1")
    stamp("h")
    a(f"s_lshr_b32 s{sT}, s{sCh}, 6")
    a(f"s_cmp_ge_u32 s{sT}, 3"); a(f"s_cselect_b32 s{sT2}, 1, 0")
    a(f"s_cmp_ge_u32 s{sT}, 6"); a(f"s_cselect_b32 s{sT2}, 2, s{sT2}")
    a(f"s_mul_i32 s{sT2}, s{sT2}, {4096-12}"); a(f"s_lshl_b32 s{sT}, s{sT}, 2"); a(f"s_add_u32 s{sT}, s{sT}, s{sT2}")
    a(f"s_add_u32 s{sT5}, s{sT}, {WS_FU}")
    a(f"v_and_b32 v{hT+4}, 31, v{vL}"); a(f"v_lshlrev_b32 v{hT+4}, 7, v{hT+4}")
    poll(hT, hT+4, f"s{sT5}")
    stamp("h")
    HC = Regs(H.p)
    UF = [HC(32, 4) for _ in range(2)]; KF = HC(32, 4); YA = HC(32, 4)
    def uloads(buf):
        for r_ in range(8): a(f"buffer_load_dwordx4 {v(buf+4*r_,4)}, v{vU}, s[{sWS}:{sWS+3}], s{sU0} offen offset:{512*r_} sc1")
        a(f"s_add_u32 s{sU0}, s{sU0}, 64")
    a("s_waitcnt lgkmcnt(0)")
    uloads(UF[0])
    for i in range(32): a(f"v_mov_b32 v{YA+i}, 0")
    a("s_branch L_h_common")
    HT = Regs(H.p)
    tSrc = HT(); tTr = HT(); tWr = HT(); tRd = HT(); tDst = HT(); TV = HT(64, 4)
    sTB = sCh; sCt = sU0
    def tr_addr(Ps, Pd):
        a(f"v_lshrrev_b32 v{hT}, 3, v{vL}"); a(f"v_and_b32 v{hT+1}, 7, v{vL}"); a(f"v_lshlrev_b32 v{hT+1}, 4, v{hT+1}")
        a(f"v_mul_u32_u24 v{hT+2}, {Ps}, v{hT}"); a(f"v_add_u32 v{tSrc}, v{hT+2}, v{hT+1}")
        a(f"v_mul_u32_u24 v{hT+2}, {Pd}, v{hT}"); a(f"v_add_u32 v{tDst}, v{hT+2}, v{hT+1}")
        a(f"v_mul_u32_u24 v{hT+2}, 144, v{hT}"); a(f"v_add3_u32 v{tRd}, v{hT+2}, v{hT+1}, s{sTB}")
        a(f"v_lshrrev_b32 v{hT}, 4, v{vL}"); a(f"v_and_b32 v{hT+2}, 15, v{vL}")
        a(f"v_mul_u32_u24 v{hT+2}, 144, v{hT+2}"); a(f"v_lshl_add_u32 v{hT+2}, v{hT}, 4, v{hT+2}"); a(f"v_add_u32 v{tWr}, s{sTB}, v{hT+2}")
        a(f"v_bfe_u32 v{hT+2}, v{vL}, 2, 2"); a(f"v_lshl_add_u32 v{hT+2}, v{hT}, 3, v{hT+2}"); a(f"v_lshlrev_b32 v{hT+2}, 7, v{hT+2}")
        a(f"v_and_b32 v{hT+3}, 3, v{vL}"); a(f"v_lshl_add_u32 v{hT+2}, v{hT+3}, 3, v{hT+2}"); a(f"v_add_u32 v{tTr}, s{sTB}, v{hT+2}")
    def tr_load(srd_, soff, Ps, sc):
        a(f"s_add_u32 m0, s{sTB}, 128")
        for b in range(8):
            a(f"buffer_load_dwordx4 v{tSrc}, s[{srd_}:{srd_+3}], s{soff} offen {sc} lds")
            if b < 7: a(f"s_add_u32 s{soff}, s{soff}, {8*Ps}"); a("s_add_u32 m0, m0, 1024")
    def tr_read(buf, odd):
        for X in range(4):
            for Y in range(2):
                for t in range(2):
                    a(f"ds_read_b64_tr_b16 {v(buf+8*X+4*Y+2*t,2)}, v{tTr} offset:{128+(32*Y+4*t-odd)*128+32*X}")
            a("s_waitcnt lgkmcnt(4)")
    def tr_out(buf, srd_, soff, Pd, sc):
        for X in range(4):
            for Y in range(2): a(f"ds_write_b128 v{tWr}, {v(buf+8*X+4*Y,4)} offset:{2304*X+64*Y}")
        a("s_waitcnt lgkmcnt(0)")
        for b in range(8): a(f"ds_read_b128 {v(buf+4*b,4)}, v{tRd} offset:{1152*b}")
        for b in range(8):
            a(f"s_waitcnt lgkmcnt({7-b})")
            a(f"buffer_store_dwordx4 {v(buf+4*b,4)}, v{tDst}, s[{srd_}:{srd_+3}], s{soff} offen {sc}")
            if b < 7: a(f"s_add_u32 s{soff}, s{soff}, {8*Pd}")
    a("L_h_tr:")
    if prof: np_["h"] -= 3
    a(f"s_mul_i32 s{sCt}, s{sS}, 3"); a(f"s_add_u32 s{sCt}, s{sCt}, s{sH}")
    a(f"s_cmp_eq_u32 s{sH}, 3"); a(f"s_cselect_b32 s{sT}, 2, 0"); a(f"s_cmp_gt_u32 s{sT}, s{sS}")
    a(f"s_cselect_b32 s{sCt}, 100, s{sCt}")
    a("s_cbranch_scc1 L_h_common")
    a(f"s_mul_i32 s{sTB}, s{sH}, 9216"); a(f"s_sub_u32 s{sTB}, {LDS_TOTAL-9216}, s{sTB}")
    tr_addr(1280, UTP)
    srd(a, sX, pU, 2048*1280)
    for i in range(4): a(f"v_mov_b32 v{hT+4+i}, 0")
    a(f"v_add_u32 v{hT+1}, s{sTB}, v{hT+1}")
    a(f"ds_write_b128 v{hT+1}, {v(hT+4,4)}")
    a(f"s_mul_i32 s{sT3}, s{sG}, {64*1280}"); a(f"s_lshl_b32 s{sT}, s{sCt}, 7"); a(f"s_add_u32 s{sT3}, s{sT3}, s{sT}")
    a("s_waitcnt lgkmcnt(0)")
    Lg0 = lab("g0")
    a(f"s_cmp_eq_u32 s{sG}, 0"); a(f"s_cbranch_scc1 {Lg0}")
    a(f"s_sub_u32 s{sT}, s{sT3}, 1280"); a(f"s_mov_b32 m0, s{sTB}")
    a("s_mov_b64 exec, 0xff")
    a(f"buffer_load_dwordx4 v{tSrc}, s[{sX}:{sX+3}], s{sT} offen lds")
    a("s_mov_b64 exec, -1")
    a(f"{Lg0}:")
    tr_load(sX, sT3, 1280, "")
    a("s_waitcnt vmcnt(0)")
    stamp("h")
    tr_read(TV, 0); tr_read(TV+32, 1)
    a("s_waitcnt lgkmcnt(0)")
    a(f"s_mul_i32 s{sT3}, s{sCt}, {64*UTP}"); a(f"s_lshl_b32 s{sT}, s{sG}, 7"); a(f"s_add_u32 s{sT3}, s{sT3}, s{sT}")
    a(f"s_add_u32 s{sT3}, s{sT3}, {WS_UT+128}"); a(f"s_add_u32 s{sT5}, s{sT3}, 4224")
    tr_out(TV, sWS, sT3, UTP, "sc1"); tr_out(TV+32, sWS, sT5, UTP, "sc1")
    stamp("h")
    a("s_waitcnt vmcnt(0)")
    publish(hT, WS_FU, sH)
    stamp("h")
    a("L_h_common:")
    a(f"v_lshlrev_b32 v{hT+4}, 7, v{vL}")
    a(f"s_mov_b32 s{sT5}, {WS_FKV}")
    poll(hT, hT+4, f"s{sT5}", 4)
    Lna = lab("noat")
    a(f"v_mov_b32 v{hAt}, 0")
    a(f"s_cmp_lg_u32 s{sH}, 0"); a(f"s_cbranch_scc1 {Lna}")
    srd(a, sA, pDbg, 256)
    a(f"v_mov_b32 v{hAt}, 1")
    a("s_mov_b64 exec, 1")
    a(f"buffer_atomic_add v{hAt}, off, s[{sA}:{sA+3}], 0 sc0 sc1")
    a("s_mov_b64 exec, -1")
    a(f"{Lna}:")
    stamp("h")
    a(f"s_lshr_b32 s{sGo}, s{sG}, 2"); a(f"s_add_u32 s{sGo}, s{sGo}, 2"); a(f"s_and_b32 s{sGo}, s{sGo}, 7")
    a(f"s_mul_i32 s{sGo}, s{sGo}, {CHUNK}"); a(f"s_add_u32 s{sGo}, s{sGo}, {WS_KV}")
    a(f"s_mov_b32 s{sSlotD}, 0")
    a(f"s_mov_b32 s{sC}, 0")
    a("L_h_loop:")
    for par in range(2):
        Ls = lab("sk"); Lc = lab("nc"); Lw = lab("nw"); Lu = lab("nu")
        if par == 0:
            a(f"s_cmp_eq_u32 s{sC}, 0"); a(f"s_cbranch_scc1 {Ls}")
        else:
            a(f"s_cmp_eq_u32 s{sC}, 7"); a(f"s_cbranch_scc1 {Ls}")
        ring_dma(sH, hDma)
        a(f"{Ls}:")
        if par == 1:
            a(f"s_cmp_lg_u32 s{sC}, 1"); a(f"s_cbranch_scc1 {Lw}")
            a(f"s_mul_i32 s{sT}, s{sH}, {5*5120}"); a(f"s_add_u32 m0, s{sT}, {L_WO}")
            a(f"s_mul_i32 s{sT}, s{sH}, {5*40960}"); a(f"s_mul_i32 s{sT2}, s{sS}, 160"); a(f"s_add_u32 s{sT}, s{sT}, s{sT2}")
            for i in range(5):
                wkstep_dma(hP, sWQ, sT)
                if i < 4: a(f"s_add_u32 s{sT}, s{sT}, 40960")
            a(f"{Lw}:")
        a(f"s_cmp_lt_u32 s{sS}, 3"); a(f"s_cbranch_scc1 {Lc}")
        for d in range(8): a(f"ds_read_b128 {v(KF+4*d,4)}, v{vKf} offset:{3584-512*d}")
        a(f"v_add_u32 v{vKf}, 64, v{vKf}")
        if par == 1:
            a(f"s_cmp_eq_u32 s{sC}, 7"); a(f"s_cbranch_scc1 {Lu}")
        uloads(UF[1-par])
        if par == 1: a(f"{Lu}:")
        a("s_waitcnt lgkmcnt(0)")
        for r_ in range(8):
            for n in range(r_, 8):
                a(f"v_mfma_f32_16x16x32_bf16 {v(YA+4*n,4)}, {v(UF[par]+4*r_,4)}, {v(KF+4*(n-r_),4)}, {v(YA+4*n,4)}")
        a(f"{Lc}:")
        if par == 1:
            a(f"s_cmp_eq_u32 s{sC}, 7"); a("s_cbranch_scc1 L_h_tail")
        a("s_waitcnt vmcnt(0)")
        a("s_barrier")
        a(f"s_add_u32 s{sC}, s{sC}, 1")
    a("s_branch L_h_loop")
    a("L_h_tail:")
    Lnt = lab("notag")
    a(f"v_readfirstlane_b32 s{sT}, v{hAt}")
    a(f"s_cmp_lg_u32 s{sT}, 255"); a(f"s_cbranch_scc1 {Lnt}")
    a(f"v_mov_b32 v{hT}, s{sTag}")
    a("s_mov_b64 exec, 1")
    a(f"buffer_store_dword v{hT}, off, s[{sWS}:{sWS+3}], 0 offset:{WS_TAG} sc1")
    a("s_mov_b64 exec, -1")
    a(f"{Lnt}:")
    stamp("h")
    a(f"s_cmp_lt_u32 s{sS}, 3"); a("s_cbranch_scc1 L_h_ytr")
    a(f"s_lshl_b32 s{sT3}, s{sCh}, 12"); a(f"s_add_u32 s{sT3}, s{sT3}, {WS_YT}")
    a("s_nop 7")
    for n in range(8):
        a(f"v_cvt_pk_bf16_f32 v{YA+4*n}, v{YA+4*n}, v{YA+4*n+1}"); a(f"v_cvt_pk_bf16_f32 v{YA+4*n+1}, v{YA+4*n+2}, v{YA+4*n+3}")
        a(f"buffer_store_dwordx2 {v(YA+4*n,2)}, v{vY}, s[{sWS}:{sWS+3}], s{sT3} offen offset:{512*n} sc1")
    a("s_waitcnt vmcnt(0)")
    publish(hT, WS_FY - 96*128, sH)
    if prof:
        stamp("h"); stamp("h"); stamp("h"); np_["h"] -= 3
    a("s_branch L_h_end")
    a("L_h_ytr:")
    a(f"s_cmp_eq_u32 s{sCt}, 100"); a("s_cbranch_scc1 L_h_end")
    a(f"s_mul_i32 s{sTB}, s{sH}, 9216"); a(f"s_add_u32 s{sTB}, s{sTB}, {L_KR}")
    a(f"s_cmp_ge_u32 s{sH}, 2"); a(f"s_cselect_b32 s{sT}, {LDS_TOTAL}, 0"); a(f"s_sub_u32 s{sTB}, s{sTB}, s{sT}")
    tr_addr(4096, 2560)
    srd(a, sA, pOut, 2048*2560)
    a(f"v_lshrrev_b32 v{hT+4}, 2, v{vL}"); a(f"v_lshlrev_b32 v{hT+4}, 5, v{hT+4}"); a(f"v_and_b32 v{hT+5}, 3, v{vL}")
    a(f"v_add_u32 v{hT+4}, v{hT+4}, v{hT+5}"); a(f"v_lshlrev_b32 v{hT+4}, 2, v{hT+4}")
    a(f"s_lshl_b32 s{sT5}, s{sCt}, 11"); a(f"s_add_u32 s{sT5}, s{sT5}, {WS_FY}")
    poll(hT, hT+4, f"s{sT5}")
    stamp("h")
    a(f"s_lshl_b32 s{sT3}, s{sCt}, 18"); a(f"s_lshl_b32 s{sT}, s{sG}, 7"); a(f"s_add_u32 s{sT3}, s{sT3}, s{sT}"); a(f"s_add_u32 s{sT3}, s{sT3}, {WS_YT}")
    tr_load(sWS, sT3, 4096, "sc1")
    a(f"s_mul_i32 s{sT3}, s{sG}, {64*2560}"); a(f"s_lshl_b32 s{sT}, s{sCt}, 7"); a(f"s_add_u32 s{sT3}, s{sT3}, s{sT}"); a(f"s_add_u32 s{sT3}, s{sT3}, 1280")
    a("s_waitcnt vmcnt(0)")
    tr_read(TV, 0)
    a("s_waitcnt lgkmcnt(0)")
    tr_out(TV, sA, sT3, 2560, "")
    if prof:
        stamp("h"); a("s_waitcnt vmcnt(0)"); stamp("h")
    a("L_h_end:")
    prof_store("h", hT)
    a("L_end:")
    a("s_endpgm")
    nv = max(hi_a, HK.hi, HC.hi, HT.hi)
    return a, nv

HDR = open("cdna_kernels/" + NAME + ".s.ref").read().split("; @launch")[0] if os.path.exists("cdna_kernels/" + NAME + ".s.ref") else ""
def build(path, prof=False, opt=None, verbose=False):
    a, nv = gen(prof, opt)
    lines = hz.fix(a.lines, verbose)
    body = "\n".join(lines) + "\n"
    k = NAME + "_kernel"
    nv = max(nv, 129)
    txt = HDR + f"; @launch grid=(256,1,1) block=(512,1,1) lds={LDS_TOTAL}\n" + '.amdgcn_target "amdgcn-amd-amdhsa--gfx950"\n'
    txt += kernel_header(k) + body + "L_code_end:\n" + kernel_desc(k, nv)
    txt = txt.replace("CODE_BYTES", f"(L_code_end-{k}-64)&0xfffffffc")
    open(path, "w").write(txt)
    return nv
if __name__ == "__main__":
    nv = build("cdna_kernels/" + NAME + ".s", False, None, "-v" in sys.argv)
    print("vgprs", nv)
    build("k_prof.s", True)
    build("k_slow.s", False, {"forceslow": 1})
```

```python
import sys, os
sys.path.insert(0, os.path.dirname(os.path.abspath(__file__)))
from asmlib import *
import hz
NAME = "concat_heads__grouped_kv_mqa__ssm_conv_s4__prompt"
WS_TAG=0; WS_FKV=0x1000; WS_FU=0x18000; WS_FY=0x8000; WS_FO=0x10000
WS_KV=0x20000; GRP=10496; CHUNK=21504
WS_O=0x50000; WS_UT=0x300000; UTP=8448; WS_YT=0x900000; WS_PROF=0xC00000; WS_SIZE=0x1000000
L_X=21504; L_CNT=103424; L_WK=103552; L_SC=103552; SCP=8448; L_WO=43008; L_KR=145408; KRP=4608; LDS_TOTAL=163840
sW=3; sG=4; sS=5; sTag=6; sT=7
sX=8; sWQ=12; P=16
pX,pWQ,pWK,pWV,pWO,pU,pAre,pAim,pBre,pBim,pCre,pCim,pLdt,pDs,pOut,pDbg,pWS = [16+2*i for i in range(17)]
sWS=52; sA=56
sT2=50; sT3=51; sC=60; sSlotN=61; sGo=62; sSlotD=63; sBound=64; sCh=65; sU0=66; sH=67; sT4=68; sT5=69
sPr=70
SPIN = 200000

def gen(prof=False, opt=None):
    opt = opt or {}
    a = Asm()
    uid = [0]
    def lab(p="L"):
        uid[0] += 1; return f"{p}_{uid[0]}"
    np_ = {"a": 0, "h": 0}
    def stamp(role):
        if not prof: return
        i = np_[role]; np_[role] += 1
        assert i < 14
        a(f"s_memrealtime s[{sPr+2*i}:{sPr+2*i+1}]")
    def prof_store(role, vt):
        if not prof: return
        a("s_waitcnt lgkmcnt(0)")
        a(f"s_lshl_b32 s{sT}, s2, 3"); a(f"s_add_u32 s{sT}, s{sT}, s{sW}"); a(f"s_lshl_b32 s{sT}, s{sT}, 6")
        a(f"s_add_u32 s{sT}, s{sT}, {WS_PROF}")
        a("s_mov_b64 exec, 1")
        a(f"v_mov_b32 v{vt+1}, 0")
        for i in range(np_[role]):
            a(f"v_mov_b32 v{vt}, s{sPr+2*i}")
            a(f"buffer_store_dword v{vt}, v{vt+1}, s[{sWS}:{sWS+3}], s{sT} offen offset:{4*i}")
        a("s_waitcnt vmcnt(0)")
    def poll(vP, vOff, soff, n=1, sleep=0):
        L = lab("poll"); D = lab("pdone")
        a(f"s_mov_b32 s{sBound}, {SPIN}")
        if sleep:
            L0 = lab("poll0"); a(f"s_branch {L0}")
        a(f"{L}:")
        if sleep:
            a(f"s_sleep {sleep}"); a(f"{L0}:")
        a(f"buffer_load_dword{'' if n==1 else 'x'+str(n)} {v(vP,n)}, v{vOff}, s[{sWS}:{sWS+3}], {soff} offen sc1")
        a(f"s_sub_u32 s{sBound}, s{sBound}, 1")
        a(f"s_cbranch_scc1 {D}")
        a("s_waitcnt vmcnt(0)")
        if n == 4:
            for i in range(4): a(f"v_xor_b32 v{vP+i}, s{sTag}, v{vP+i}")
            a(f"v_or3_b32 v{vP}, v{vP}, v{vP+1}, v{vP+2}")
            a(f"v_or_b32 v{vP}, v{vP}, v{vP+3}")
            a(f"v_cmp_ne_u32 vcc, 0, v{vP}")
        else:
            a(f"v_cmp_ne_u32 vcc, s{sTag}, v{vP}")
        a(f"s_cbranch_vccnz {L}")
        a(f"{D}:")
    def publish(vt, base, widx):
        a(f"s_lshl_b32 s{sT}, s2, 7"); a(f"s_lshl_b32 s{sT2}, s{widx}, 2"); a(f"s_add_u32 s{sT}, s{sT}, s{sT2}")
        a(f"s_add_u32 s{sT}, s{sT}, {base}")
        a(f"v_mov_b32 v{vt}, s{sTag}")
        a("s_mov_b64 exec, 1")
        a(f"buffer_store_dword v{vt}, off, s[{sWS}:{sWS+3}], s{sT} sc1")
        a("s_mov_b64 exec, -1")
    def ring_dma(wreg, vDma):
        for k in range(2):
            Lk = lab("dma")
            if k == 1:
                a(f"s_cmp_ge_u32 s{wreg}, 3"); a(f"s_cbranch_scc1 {Lk}")
            a(f"s_mul_i32 s{sT}, s{wreg}, 3072")
            if k: a(f"s_add_u32 s{sT}, s{sT}, {4*3072}")
            a(f"s_add_u32 m0, s{sT}, s{sSlotD}")
            a(f"s_add_u32 s{sT}, s{sT}, s{sGo}")
            for i in range(3):
                a(f"buffer_load_dwordx4 v{vDma}, s[{sWS}:{sWS+3}], s{sT} offen offset:{i*1024} sc1 lds")
            if k == 1: a(f"{Lk}:")
        a(f"s_add_u32 s{sGo}, s{sGo}, {CHUNK}")
        a(f"s_cmp_eq_u32 s{sGo}, {WS_KV+8*CHUNK}")
        a(f"s_cselect_b32 s{sGo}, {WS_KV}, s{sGo}")
        a(f"s_xor_b32 s{sSlotD}, s{sSlotD}, {CHUNK}")
    def wpattern(vP, vL, vt, perm):
        for p in range(5):
            a(f"v_add_u32 v{vt}, {64*p}, v{vL}")
            a(f"v_mul_u32_u24 v{vt+1}, 205, v{vt}")
            a(f"v_lshrrev_b32 v{vt+1}, 11, v{vt+1}")
            a(f"v_mul_u32_u24 v{vt+2}, 10, v{vt+1}")
            a(f"v_sub_u32 v{vt}, v{vt}, v{vt+2}")
            if perm:
                a(f"v_lshrrev_b32 v{vt+2}, 1, v{vt+1}")
                a(f"v_and_b32 v{vt+2}, 4, v{vt+2}")
                a(f"v_xor_b32 v{vt+1}, v{vt+1}, v{vt+2}")
            a(f"v_mul_u32_u24 v{vt+1}, 80, v{vt+1}")
            a(f"v_add_u32 v{vt}, v{vt}, v{vt+1}")
            if 0 < p < 4: a(f"v_subrev_u32 v{vt}, {64*p}, v{vt}")
            a(f"v_lshlrev_b32 v{vP+p}, 4, v{vt}")
    def wkstep_dma(vP, srd_, soff):
        for p in range(4):
            a(f"buffer_load_dwordx4 v{vP+p}, s[{srd_}:{srd_+3}], s{soff} offen offset:{p*1024} lds")
        a("s_add_u32 m0, m0, 4096")
        a(f"buffer_load_dwordx4 v{vP+4}, s[{srd_}:{srd_+3}], s{soff} offen lds")
        a("s_add_u32 m0, m0, 1024")

    if prof:
        a(f"s_memrealtime s[{sPr}:{sPr+1}]"); np_["a"] = np_["h"] = 1
    a("s_cmp_ge_u32 s2, 256")
    a("s_cbranch_scc1 L_end")
    a("s_load_dwordx16 s[16:31], s[0:1], 0")
    a("s_load_dwordx16 s[32:47], s[0:1], 64")
    a("s_load_dwordx2 s[48:49], s[0:1], 128")
    vL = 1
    a("v_lshrrev_b32 v2, 6, v0")
    a(f"v_and_b32 v{vL}, 63, v0")
    a(f"v_readfirstlane_b32 s{sW}, v2")
    if opt.get("codepf", 1):
        a("s_getpc_b64 s[50:51]")
        if opt.get("codepf", 1) == 1:
            a("s_lshr_b32 s4, s2, 3"); a("s_lshl_b32 s4, s4, 7")
            a("v_lshl_add_u32 v3, v2, 12, s4")
            a("v_min_u32 v3, CODE_BYTES, v3")
            a("s_mov_b64 exec, 1")
            a("global_load_dword v4, v3, s[50:51]")
            a("s_mov_b64 exec, -1")
        else:
            a("v_lshlrev_b32 v3, 7, v0")
            a("v_min_u32 v3, CODE_BYTES, v3")
            a("global_load_dword v4, v3, s[50:51]")
    a(f"s_and_b32 s{sG}, s2, 31")
    a(f"s_lshr_b32 s{sS}, s2, 5")
    a("v_mov_b32 v5, 0"); a("v_lshlrev_b32 v6, 2, v0"); a("v_and_b32 v6, 127, v6"); a(f"v_add_u32 v6, {L_CNT}, v6")
    a("ds_write_b32 v6, v5")
    a(f"s_cmp_ge_u32 s{sW}, 4")
    a("s_cbranch_scc1 L_helper")
    NPF = 1 if opt.get("codepf", 1) else 0

    R = Regs(5)
    vT = R(4, 4); vDma = R(); vCnt = R(); vOne = R(); vPo = R(); vPv = R()
    vX0 = R(); vX1 = R(); vP = R(5)
    a(f"v_lshrrev_b32 v{vT}, 3, v{vL}")
    a(f"v_lshrrev_b32 v{vT+1}, 4, v{vL}")
    a(f"v_xor_b32 v{vT+1}, v{vT+1}, v{vL}")
    a(f"v_and_b32 v{vT+1}, 7, v{vT+1}")
    a(f"v_mul_u32_u24 v{vT}, 80, v{vT}")
    a(f"v_add_u32 v{vT}, v{vT}, v{vT+1}")
    a(f"v_lshlrev_b32 v{vX0}, 4, v{vT}")
    a(f"v_xor_b32 v{vX1}, 64, v{vX0}")
    a(f"v_add_u32 v{vX1}, 10240, v{vX1}")
    a(f"s_lshl_b32 s{sT}, s{sG}, 2"); a(f"s_add_u32 s{sT}, s{sT}, s{sW}"); a(f"s_mul_i32 s{sT2}, s{sT}, 20480")
    a(f"s_mul_i32 s{sT3}, s{sW}, 20480"); a(f"s_add_u32 s{sT3}, s{sT3}, {L_X}")
    a(f"v_lshlrev_b32 v{vDma}, 4, v{vL}")
    a(f"s_mul_i32 s{sT}, s{sW}, 7168")
    a(f"s_add_u32 m0, s{sT}, {L_WK}")
    PF = opt.get("pf", 1)
    if PF:
        a(f"s_mul_i32 s{sT5}, s{sG}, 640"); a(f"s_mul_i32 s{sC}, s{sS}, 80"); a(f"s_add_u32 s{sT5}, s{sT5}, s{sC}")
        a(f"s_lshl_b32 s{sC}, s{sW}, 6"); a(f"s_add_u32 s{sT5}, s{sT5}, s{sC}")
        a(f"s_lshr_b32 s{sC}, s2, 3"); a(f"s_mul_i32 s{sC}, s{sC}, 7")
        a(f"s_cmp_ge_u32 s{sW}, 2"); a(f"s_cselect_b32 s{sT5}, s{sC}, s{sT5}"); a(f"s_movk_i32 s{sC}, 20479"); a(f"s_cmovk_i32 s{sC}, 199")
        a(f"s_mov_b32 s{sGo}, 0xffff"); a(f"s_cmovk_i32 s{sGo}, 0x7f")
        a(f"v_add_u32 v{vT}, s{sT5}, v{vL}"); a(f"v_min_u32 v{vT}, s{sC}, v{vT}"); a(f"v_lshlrev_b32 v{vT}, 7, v{vT}")
        a(f"s_cmp_eq_u32 s{sW}, 0"); a(f"s_cselect_b32 s{sGo}, -1, s{sGo}"); a(f"s_cselect_b32 s{sGo+1}, -1, 0")
    a("s_waitcnt lgkmcnt(0)")
    if PF:
        a(f"s_cmp_eq_u32 s{sW}, 2"); a(f"s_cselect_b64 s[{sA}:{sA+1}], s[{pWK}:{pWK+1}], s[{pX}:{pX+1}]")
        a(f"s_cmp_eq_u32 s{sW}, 3"); a(f"s_cselect_b64 s[{sA}:{sA+1}], s[{pWV}:{pWV+1}], s[{sA}:{sA+1}]")
        a(f"s_mov_b64 exec, s[{sGo}:{sGo+1}]")
        a(f"global_load_dword v3, v{vT}, s[{sA}:{sA+1}]")
        a("s_mov_b64 exec, -1")
    a(f"s_cmp_ge_u32 s{sS}, 2")
    a("s_barrier")
    stamp("a")
    Lnokv = lab("nokv")
    a(f"s_cbranch_scc1 {Lnokv}")
    a(f"s_cmp_eq_u32 s{sS}, 0")
    a(f"s_cselect_b32 s{sA}, s{pWK}, s{pWV}")
    a(f"s_cselect_b32 s{sA+1}, s{pWK+1}, s{pWV+1}")
    a(f"s_and_b32 s{sA+1}, s{sA+1}, 0xffff"); a(f"s_mov_b32 s{sA+2}, 25600"); a(f"s_mov_b32 s{sA+3}, 0x20000")
    for i in range(4): a(f"buffer_load_dwordx4 v{vDma}, s[{sA}:{sA+3}], s{sT} offen offset:{1024*i} lds")
    a("s_add_u32 m0, m0, 4096"); a(f"s_add_u32 s{sT}, s{sT}, 4096")
    for i in range(3): a(f"buffer_load_dwordx4 v{vDma}, s[{sA}:{sA+3}], s{sT} offen offset:{1024*i} lds")
    a(f"{Lnokv}:")
    a(f"s_mov_b32 m0, s{sT3}")
    srd(a, sX, pX, 2048*1280)
    for j in range(10):
        a(f"buffer_load_dwordx4 v{vX0}, s[{sX}:{sX+3}], s{sT2} offen offset:{128*j} lds")
        a("s_add_u32 m0, m0, 1024")
        a(f"buffer_load_dwordx4 v{vX1}, s[{sX}:{sX+3}], s{sT2} offen offset:{128*j} lds")
        a("s_add_u32 m0, m0, 896")
    a(f"s_load_dword s{sTag}, s[{pWS}:{pWS+1}], {WS_TAG}")
    wpattern(vP, vL, vT, True)
    srd(a, sWQ, pWQ, 640*1280)
    srd(a, sWS, pWS, WS_SIZE)
    a(f"s_mul_i32 s{sT4}, s{sS}, 160")
    sW2G = sCh; sW2L = sU0
    a(f"s_mul_i32 s{sW2G}, s{sW}, {4*40960}"); a(f"s_add_u32 s{sW2G}, s{sW2G}, s{sT4}")
    a(f"s_mov_b32 s{sW2L}, s{sT3}")
    def w1_dma():
        a(f"s_mul_i32 m0, s{sW}, 5120")
        a(f"s_add_u32 s{sH}, s{sW}, 16")
        a(f"s_mul_i32 s{sH}, s{sH}, 40960")
        a(f"s_add_u32 s{sH}, s{sH}, s{sT4}")
        wkstep_dma(vP, sWQ, sH)
    def w2_step():
        a(f"s_mov_b32 m0, s{sW2L}"); a(f"s_add_u32 s{sW2L}, s{sW2L}, 5120")
        wkstep_dma(vP, sWQ, sW2G)
        a(f"s_add_u32 s{sW2G}, s{sW2G}, 40960")
    KVW = opt.get("kvw", 1)
    Lw1 = lab("w1")
    if KVW == 0:
        a(f"s_cmp_lt_u32 s{sS}, 2"); a(f"s_cbranch_scc1 {Lw1}")
    w1_dma()
    a(f"{Lw1}:")
    vXr = R(2); vAB = R(2); vE = R(2); vAB2 = R(2); vE2 = R(2)
    a(f"v_and_b32 v{vT}, 15, v{vL}")
    a(f"v_lshrrev_b32 v{vT+1}, 4, v{vL}")
    a(f"v_lshrrev_b32 v{vT+2}, 1, v{vT}")
    a(f"v_xor_b32 v{vT+2}, v{vT+2}, v{vT+1}")
    a(f"v_lshlrev_b32 v{vT+2}, 4, v{vT+2}")
    a(f"v_lshlrev_b32 v{vT}, 7, v{vT}")
    a(f"v_add3_u32 v{vXr}, v{vT}, v{vT+2}, s{sT3}")
    a(f"v_xor_b32 v{vXr+1}, 64, v{vXr}")
    a(f"v_bfe_u32 v{vT}, v{vL}, 2, 2")
    a(f"v_lshl_add_u32 v{vT}, v{vT+1}, 3, v{vT}")
    vKM = vX0; vKE = vX1
    a(f"v_mul_u32_u24 v{vT+2}, 40, v{vT}")
    a(f"v_add_u32 v{vKE}, {L_WK+32}, v{vT+2}")
    a(f"v_and_b32 v{vT+3}, 3, v{vL}")
    a(f"v_lshl_add_u32 v{vT+2}, v{vT+3}, 3, v{vT+2}")
    a(f"v_add_u32 v{vKM}, {L_WK}, v{vT+2}")
    a(f"v_and_b32 v{vT+2}, 1, v{vT+1}")
    a(f"v_lshl_add_u32 v{vT}, v{vT+2}, 2, v{vT}")
    a(f"v_xor_b32 v{vT+2}, 4, v{vT}")
    a(f"v_mul_u32_u24 v{vT}, 160, v{vT}")
    a(f"v_mul_u32_u24 v{vT+2}, 160, v{vT+2}")
    a(f"v_mul_u32_u24 v{vT+3}, 40, v{vT+3}")
    a(f"v_add3_u32 v{vE2}, v{vT}, v{vT+3}, 32"); a(f"v_add3_u32 v{vE2+1}, v{vT+2}, v{vT+3}, 32")
    a(f"v_and_b32 v{vT+3}, 1, v{vL}")
    a(f"v_mul_u32_u24 v{vT+3}, 40, v{vT+3}")
    a(f"v_and_b32 v{vT+1}, 2, v{vL}")
    a(f"v_lshl_add_u32 v{vT+3}, v{vT+1}, 3, v{vT+3}")
    a(f"v_add_u32 v{vAB2}, v{vT}, v{vT+3}"); a(f"v_add_u32 v{vAB2+1}, v{vT+2}, v{vT+3}")
    for x, y in ((vAB2, vAB), (vAB2+1, vAB+1), (vE2, vE), (vE2+1, vE+1)):
        a(f"v_add_u32 v{y}, 51200, v{x}")
    a(f"v_mov_b32 v{vCnt}, {L_CNT}"); a(f"v_mov_b32 v{vOne}, 1")
    a(f"s_and_b32 s{sT}, s{sG}, 28"); a(f"s_add_u32 s{sT}, s{sT}, s{sW}")
    a(f"v_bfe_u32 v{vT+1}, v{vL}, 3, 1"); a(f"v_lshlrev_b32 v{vT+1}, 2, v{vT+1}")
    a(f"v_add_u32 v{vT+1}, s{sT}, v{vT+1}"); a(f"v_and_b32 v{vT+1}, 31, v{vT+1}")
    a(f"v_and_b32 v{vT+2}, 4, v{vL}"); a(f"v_lshl_add_u32 v{vT+1}, v{vT+2}, 3, v{vT+1}")
    a(f"v_lshlrev_b32 v{vT+1}, 5, v{vT+1}"); a(f"v_and_b32 v{vT+2}, 3, v{vL}"); a(f"v_add_u32 v{vT+1}, v{vT+1}, v{vT+2}")
    a(f"v_lshlrev_b32 v{vPo}, 2, v{vT+1}"); a(f"v_add_u32 v{vPo}, {WS_FKV}, v{vPo}")
    def tagfix(): a(f"s_mul_i32 s{sTag}, s{sTag}, 1664525"); a(f"s_add_u32 s{sTag}, s{sTag}, 1013904223")
    def lsig(k):
        a("s_mov_b64 exec, 1"); a(f"ds_add_u32 v{vCnt}, v{vOne} offset:{4*k}"); a("s_mov_b64 exec, -1")
    def lwait(k, n=4):
        L = lab("ls"); D = lab("lsd")
        a(f"s_mov_b32 s{sBound}, {SPIN*4}")
        a(f"{L}:")
        a(f"ds_read_b32 v{vT}, v{vCnt} offset:{4*k}")
        a(f"s_sub_u32 s{sBound}, s{sBound}, 1"); a(f"s_cbranch_scc1 {D}")
        a("s_waitcnt lgkmcnt(0)")
        a(f"v_cmp_gt_u32 vcc, {n}, v{vT}")
        a(f"s_cbranch_vccnz {L}")
        a(f"{D}:")
    XF = R(80, 4); ACC = R(20, 4); WF = [R(20, 4), R(20, 4), R(20, 4)]
    def xrd(k): return f"ds_read_b128 {v(XF+4*k,4)}, v{vXr+(k&1)} offset:{2048*(k>>1)}"
    def xstream(nw1, w2, mm=None, post=None):
        young = nw1
        rel = {2: 1, 4: 1, 7: 1, 9: 1}
        for j in range(11):
            n = 0
            if j < 10:
                a(f"s_waitcnt vmcnt({young+18-2*j})")
                a(xrd(2*j)); a(xrd(2*j+1)); n = 2
            if j >= 1:
                if mm or (w2 and (j-1) in rel) or j == 10: a(f"s_waitcnt lgkmcnt({n})")
                if mm: mm(2*j-2); mm(2*j-1)
                if w2 and (j-1) in rel and not (mm and j == 10):
                    w2_step(); young += 5
                if post: post(j)
    Lq = lab("qonly"); Lj = lab("join")
    a(f"s_cmp_ge_u32 s{sS}, 2")
    a(f"s_cbranch_scc1 {Lq}")
    KW = ACC + 12; NKW = (248 - KW)//8
    def kvrd(k):
        b = KW + 8*(k % NKW)
        return [f"ds_read_b64_tr_b16 {v(b+2*t,2)}, v{vKM} offset:{1280*k+160*t}" for t in range(2)] + \
               [f"ds_read_b64_tr_b16 {v(b+4+2*t,2)}, v{vKE} offset:{1280*k+160*t}" for t in range(2)]
    a(f"s_lshr_b32 s{sT}, s{sG}, 2"); a(f"s_mul_i32 s{sT}, s{sT}, {CHUNK}")
    a(f"s_bfe_u32 s{sT2}, s{sG}, 0x10001"); a(f"s_mul_i32 s{sT2}, s{sT2}, {GRP}")
    a(f"s_add_u32 s{sT}, s{sT}, s{sT2}"); a(f"s_add_u32 s{sGo}, s{sT}, {WS_KV}")
    a(f"s_and_b32 s{sT}, s{sG}, 1"); a(f"s_lshl_b32 s{sT}, s{sT}, 1"); a(f"s_lshr_b32 s{sT2}, s{sW}, 1"); a(f"s_add_u32 s{sC}, s{sT}, s{sT2}")
    a(f"s_and_b32 s{sT5}, s{sW}, 1")
    a(f"s_waitcnt vmcnt({25 if KVW else 20})")
    lsig(0); lwait(0)
    tagfix()
    stamp("a")
    NPRE = opt.get("npre", 4)
    for k in range(NPRE):
        for x in kvrd(k): a(x)
    def kvproj(isK):
        D1 = ACC; D2 = ACC+4
        def mm(k):
            b = KW + 8*(k % NKW)
            nx = kvrd(k+NPRE) if k+NPRE < 20 else []
            for D, o in ((D1, 0), (D2, 4)):
                A_, B_ = v(b+o,4), v(XF+4*k,4)
                if not isK: A_, B_ = B_, A_
                a(f"v_mfma_f32_16x16x32_bf16 {v(D,4)}, {A_}, {B_}, {'0' if k==0 else v(D,4)}")
                for x in nx[o//2:o//2+2]: a(x)
        xstream(5 if KVW else 0, KVW == 2, mm)
    LV = lab("isv"); LKd = lab("kvdone")
    a(f"s_cmp_eq_u32 s{sS}, 1"); a(f"s_cbranch_scc1 {LV}")
    def pack_swap():
        D1 = ACC; D2 = ACC+4
        a(f"v_cvt_pk_bf16_f32 v{ACC+8}, v{D1}, v{D1+1}"); a(f"v_cvt_pk_bf16_f32 v{ACC+9}, v{D1+2}, v{D1+3}")
        a(f"v_cvt_pk_bf16_f32 v{ACC+10}, v{D2}, v{D2+1}"); a(f"v_cvt_pk_bf16_f32 v{ACC+11}, v{D2+2}, v{D2+3}")
        a(f"v_permlane16_swap_b32 v{ACC+8}, v{ACC+10}")
        a(f"v_permlane16_swap_b32 v{ACC+9}, v{ACC+11}")
    a(f"v_and_b32 v{vT+2}, 15, v{vL}"); a(f"v_lshlrev_b32 v{vT+2}, 4, v{vT+2}")
    a(f"v_and_b32 v{vT+3}, 32, v{vL}"); a(f"v_lshl_add_u32 v{vT+3}, v{vT+3}, 4, v{vT+2}")
    a(f"s_lshl_b32 s{sT5}, s{sT5}, 8"); a(f"s_add_u32 s{sGo}, s{sGo}, s{sT5}")
    a(f"s_lshl_b32 s{sT}, s{sC}, 10"); a(f"s_add_u32 s{sT}, s{sT}, s{sGo}")
    a(f"s_lshr_b32 s{sT2}, s{sC}, 1"); a(f"s_lshl_b32 s{sT2}, s{sT2}, 9"); a(f"s_add_u32 s{sT2}, s{sT2}, s{sGo}")
    a(f"s_and_b32 s{sT5}, s{sC}, 1"); a(f"s_lshl_b32 s{sT5}, s{sT5}, 3"); a(f"s_add_u32 s{sT2}, s{sT2}, s{sT5}"); a(f"s_add_u32 s{sT2}, s{sT2}, 4096")
    kvproj(True)
    pack_swap()
    a("s_mov_b32 exec_lo, 0xffff"); a("s_mov_b32 exec_hi, 0xffff")
    a(f"buffer_store_dwordx4 {v(ACC+8,4)}, v{vT+3}, s[{sWS}:{sWS+3}], s{sT} offen sc1")
    a("s_mov_b32 exec_lo, 0xffff0000"); a("s_mov_b32 exec_hi, 0")
    a(f"buffer_store_dwordx2 {v(ACC+8,2)}, v{vT+2}, s[{sWS}:{sWS+3}], s{sT2} offen sc1")
    a(f"s_branch {LKd}")
    a(f"{LV}:")
    a(f"v_and_b32 v{vT+2}, 31, v{vL}"); a(f"v_lshlrev_b32 v{vT+2}, 4, v{vT+2}")
    a(f"v_lshrrev_b32 v{vT+3}, 5, v{vL}"); a(f"v_mul_u32_u24 v{vT+3}, 336, v{vT+3}"); a(f"v_add_u32 v{vT+3}, v{vT+3}, v{vT+2}")
    a(f"s_mul_i32 s{sT5}, s{sT5}, 672"); a(f"s_mul_i32 s{sT}, s{sC}, 1344"); a(f"s_add_u32 s{sT}, s{sT}, s{sT5}")
    a(f"s_add_u32 s{sT}, s{sT}, s{sGo}"); a(f"s_add_u32 s{sT}, s{sT}, 5120")
    kvproj(False)
    pack_swap()
    a("s_mov_b32 exec_lo, 0x100000"); a("s_mov_b32 exec_hi, 0x100000")
    for i in range(4): a(f"v_mov_b32 v{ACC+8+i}, 0x3f803f80")
    a("s_mov_b32 exec_lo, 0x1fffff"); a("s_mov_b32 exec_hi, 0x1fffff")
    a(f"buffer_store_dwordx4 {v(ACC+8,4)}, v{vT+3}, s[{sWS}:{sWS+3}], s{sT} offen sc1")
    a(f"{LKd}:")
    a("s_mov_b64 exec, -1")
    stamp("a")
    if KVW == 2:
        w2_step()
        a("s_waitcnt vmcnt(5)")
        publish(vT, WS_FKV, sW)
        lsig(7); lsig(1)
        stamp("a")
    else:
        a("s_waitcnt vmcnt(0)")
        publish(vT, WS_FKV, sW)
        lsig(7)
        stamp("a")
        if KVW == 0: w1_dma()
        else: lsig(1)
        for i in range(4): w2_step()
        if KVW == 0:
            a("s_waitcnt vmcnt(20)"); lsig(1)
    a(f"s_branch {Lj}")
    a(f"{Lq}:")
    if prof: np_["a"] -= 3
    stamp("a")
    xstream(5, True)
    tagfix()
    stamp("a")
    a("s_waitcnt vmcnt(20)")
    lsig(1)
    stamp("a")
    a(f"{Lj}:")
    lwait(1)
    def qrd(k, buf):
        addr = 5120*(k-16) if k >= 16 else L_X + 5120*k
        hi = addr >= 51200
        off = addr - (51200 if hi else 0)
        r = []
        for t5 in range(5):
            for t in range(2):
                if t5 < 4: r.append(f"ds_read_b64_tr_b16 {v(buf+4*t5+2*t,2)}, v{(vAB if hi else vAB2)+t} offset:{off+80*(t5>>1)+8*(t5&1)}")
                else: r.append(f"ds_read_b64_tr_b16 {v(buf+16+2*t,2)}, v{(vE if hi else vE2)+t} offset:{off}")
        return r
    def qsteps(ks, first):
        if opt.get("noq"): return
        for n in range(2):
            for x in qrd(ks[n], WF[n]): a(x)
        for n, k in enumerate(ks):
            buf = WF[n % 3]
            nx = qrd(ks[n+2], WF[(n+2) % 3]) if n+2 < len(ks) else []
            a(f"s_waitcnt lgkmcnt({10 if n+1 < len(ks) else 0})")
            for t5 in range(5):
                a(f"v_mfma_f32_16x16x32_bf16 {v(ACC+4*t5,4)}, {v(buf+4*t5,4)}, {v(XF+4*k,4)}, {'0' if first and n==0 else v(ACC+4*t5,4)}")
                for x in nx[2*t5:2*t5+2]: a(x)
    def pload(): a(f"buffer_load_dword v{vPv}, v{vPo}, s[{sWS}:{sWS+3}], 0 offen sc1")
    def own_dma(slot):
        a(f"s_lshr_b32 s{sT}, s{sW}, 1"); a(f"s_mul_i32 s{sT}, s{sT}, {GRP}"); a(f"s_and_b32 s{sT2}, s{sW}, 1")
        for mul, add, parts in ((2048, 0, [(0, None), (1024, None)]), (512, 4096, [(0, (-1, 0))]), (2688, 5120, [(0, None), (1024, None), (2048, (-1, 0xff))])):
            a(f"s_mul_i32 s{sT5}, s{sT2}, {mul}"); a(f"s_add_u32 s{sT5}, s{sT5}, s{sT}")
            a(f"s_add_u32 m0, s{sT5}, {slot+add}")
            a(f"s_add_u32 s{sT5}, s{sT5}, s{sGo}")
            if add: a(f"s_add_u32 s{sT5}, s{sT5}, {add}")
            for off, ex in parts:
                if ex: a(f"s_mov_b32 exec_hi, {ex[1]}")
                a(f"buffer_load_dwordx4 v{vDma}, s[{sWS}:{sWS+3}], s{sT5} offen offset:{off} sc1 lds")
                if ex: a("s_mov_b32 exec_hi, -1")
        a(f"s_add_u32 s{sGo}, s{sGo}, {CHUNK}")
        a(f"s_cmp_eq_u32 s{sGo}, {WS_KV+8*CHUNK}")
        a(f"s_cselect_b32 s{sGo}, {WS_KV}, s{sGo}")
    a(f"s_lshr_b32 s{sGo}, s{sG}, 2"); a(f"s_mul_i32 s{sGo}, s{sGo}, {CHUNK}"); a(f"s_add_u32 s{sGo}, s{sGo}, {WS_KV}")
    qsteps([16,17,18,19], True)
    a("s_waitcnt vmcnt(10)")
    lsig(5); lwait(5)
    pload()
    qsteps([4*w_+i for i in range(2) for w_ in range(4)], False)
    a("s_waitcnt vmcnt(0)")
    lsig(6)
    stamp("a")
    Lp2 = lab("p2"); Lp3 = lab("p3")
    a(f"v_cmp_ne_u32 vcc, s{sTag}, v{vPv}")
    a(f"s_mov_b32 s{sSlotD}, 0")
    a(f"s_cbranch_vccnz {Lp2}")
    own_dma(0)
    a(f"s_mov_b32 s{sSlotD}, 1")
    a(f"s_branch {Lp3}")
    a(f"{Lp2}:")
    pload()
    a(f"{Lp3}:")
    lwait(6)
    qsteps([4*w_+i for i in range(2, 4) for w_ in range(4)], False)
    lsig(3)
    stamp("a")
    Lp4 = lab("p4"); Lp5 = lab("p5")
    a(f"s_cmp_eq_u32 s{sSlotD}, 1"); a(f"s_cbranch_scc1 {Lp4}")
    a("s_waitcnt vmcnt(0)")
    a(f"v_cmp_ne_u32 vcc, s{sTag}, v{vPv}")
    a(f"s_cbranch_vccz {Lp5}")
    poll(vPv, vPo, "0")
    a(f"{Lp5}:")
    own_dma(0)
    a(f"{Lp4}:")
    stamp("a")
    RA = Regs(R.hi if False else 20)
    Q1 = [RA(4, 4) for _ in range(2)]; Q2a = [RA(2) for _ in range(2)]; Q2b = [RA(2) for _ in range(2)]
    assert RA.p <= ACC
    c = (20**-0.5)*1.4426950408889634
    import struct
    cbits = struct.unpack("<I", struct.pack("<f", c))[0]
    vK0 = RA(); vV0 = RA(); vK = RA(); vV = RA(); vIdx = RA()
    for i in range(20): a(f"v_mul_f32 v{ACC+i}, {cbits:#x}, v{ACC+i}")
    for j in range(2):
        for i in range(4): a(f"v_cvt_pk_bf16_f32 v{Q1[j]+i}, v{ACC+8*j+2*i}, v{ACC+8*j+2*i+1}")
    for i in range(2):
        a(f"v_cvt_pk_bf16_f32 v{Q2a[0]+i}, v{ACC+16+2*i}, v{ACC+17+2*i}")
        a(f"v_mov_b32 v{Q2a[1]+i}, 0"); a(f"v_mov_b32 v{Q2b[0]+i}, 0")
        a(f"v_mov_b32 v{Q2b[1]+i}, v{Q2a[0]+i}")
    for i in range(2):
        a(f"v_permlane32_swap_b32 v{Q2a[0]+i}, v{Q2a[1]+i}")
        a(f"v_permlane32_swap_b32 v{Q2b[0]+i}, v{Q2b[1]+i}")
    a(f"v_mov_b32 v{vIdx}, 0xdddd")
    a(f"v_mov_b32 v{vK0}, v{vDma}")
    a(f"v_and_b32 v{vT+2}, 31, v{vL}"); a(f"v_min_u32 v{vT+2}, 20, v{vT+2}"); a(f"v_lshlrev_b32 v{vT+2}, 4, v{vT+2}")
    a(f"v_lshrrev_b32 v{vT+3}, 5, v{vL}"); a(f"v_mul_u32_u24 v{vT+3}, 336, v{vT+3}")
    a(f"v_add_u32 v{vV0}, v{vT+2}, v{vT+3}"); a(f"v_add_u32 v{vV0}, 5120, v{vV0}")
    if opt.get("vzero", 1):
        a("s_mov_b32 exec_lo, 0xeef00000"); a("s_mov_b32 exec_hi, 0xeef00000")
        a(f"v_mov_b32 v{vV0}, {LDS_TOTAL}")
        a("s_mov_b64 exec, -1")
    a(f"v_mov_b32 v{vK}, v{vK0}"); a(f"v_mov_b32 v{vV}, v{vV0}")
    NB = 4
    S = [RA(16, 4) for _ in range(NB)]
    O = [RA(16, 4) for _ in range(2)]
    C = [RA(16, 4) for _ in range(2)]
    K1 = [RA(4, 4) for _ in range(2)]; K2 = [RA(4, 4) for _ in range(2)]
    V0 = [RA(4, 4) for _ in range(2)]; V1 = [RA(4, 4) for _ in range(2)]
    for j in range(2):
        for i in range(16): a(f"v_mov_b32 v{O[j]+i}, 0")
    for i in range(4): a(f"v_mov_b32 v{V1[1]+i}, 0")
    for i in range(8): a(f"v_mov_b32 v{S[NB-1]+8+i}, 0")
    lwait(3)
    own_dma(CHUNK)
    a("s_waitcnt vmcnt(6)")
    lsig(4); lwait(4)
    stamp("a")
    if opt.get("prio", 1): a("s_setprio 2")
    TPC = 8
    def rdK1(T):
        Tl = T % TPC
        return f"ds_read_b128 {v(K1[T%2],4)}, v{vK} offset:{(Tl//4)*GRP + (Tl%4)*1024}"
    def rdK2(T):
        Tl = T % TPC
        return f"ds_read_b128 {v(K2[(T//4)%2],4)}, v{vK} offset:{(Tl//4)*GRP+4096}"
    def rdV(T, sidx):
        Tl = T % TPC
        buf = (V0 if sidx == 0 else V1)[T%2]
        return f"ds_read_b128 {v(buf,4)}, v{vV} offset:{(Tl//4)*GRP+(Tl%4)*1344+sidx*672}"
    def qkA(n, cz=False):
        T, j = divmod(n, 2); t4 = T % 4
        q = Q2a[j] if t4 < 2 else Q2b[j]
        return f"v_mfma_f32_32x32x8_bf16 {v(S[n%NB],16)}, {v(K2[(T//4)%2]+2*(t4&1),2)}, {v(q,2)}, " + ("0" if cz else v(C[j],16))
    def qkB(n):
        T, j = divmod(n, 2)
        return f"v_mfma_f32_32x32x16_bf16 {v(S[n%NB],16)}, {v(K1[T%2],4)}, {v(Q1[j],4)}, {v(S[n%NB],16)}"
    def pv(n, sidx):
        T, j = divmod(n, 2)
        buf = (V0 if sidx == 0 else V1)[T%2]
        return f"v_smfmac_f32_32x32x32_bf16 {v(O[j],16)}, {v(buf,4)}, {v(S[n%NB]+8*sidx,8)}, v{vIdx}"
    def rowmax(Sj, dst, init=None):
        if init is None:
            a(f"v_max3_f32 v{dst}, v{Sj}, v{Sj+1}, v{Sj+2}")
            for i in range(3, 15, 2): a(f"v_max3_f32 v{dst}, v{dst}, v{Sj+i}, v{Sj+i+1}")
            a(f"v_max_f32 v{dst}, v{dst}, v{Sj+15}")
        else:
            for i in range(0, 16, 2): a(f"v_max3_f32 v{dst}, v{dst}, v{Sj+i}, v{Sj+i+1}")
    def setC(j, m, t2):
        a(f"v_mov_b32 v{t2}, v{m}")
        a(f"v_permlane32_swap_b32 v{m}, v{t2}")
        a(f"v_max_f32 v{m}, v{m}, v{t2}")
        for i in range(16): a(f"v_sub_f32 v{C[j]+i}, 0, v{m}")
    vPr = 250
    a(rdK1(0)); a(rdK2(0)); a(rdV(0,0)); a(rdV(0,1))
    a("s_waitcnt lgkmcnt(2)")
    for j in range(2):
        a(qkA(j, True)); a(qkB(j))
    for j in range(2):
        rowmax(S[j], vT)
        setC(j, vT, vT+1)
        if j == 0:
            for i in range(16): a(f"v_add_f32 v{S[0]+i}, v{S[0]+i}, v{C[0]+i}")
    a(f"s_mov_b32 s{sC}, 0")
    a(f"s_mov_b32 s{sSlotN}, {CHUNK}")
    a("s_waitcnt lgkmcnt(0)")
    if prof: a("s_memtime s[8:9]"); a("s_memrealtime s[10:11]")
    a(".p2align 6")
    a("L_loop:")
    for n in range(16):
        T, j = divmod(n, 2)
        ins = {i: [] for i in range(17)}
        ins[0].append(qkA(n+1))
        ins[4].append(qkB(n+1))
        if j == 0:
            ins[4] += [rdK1(T+1) if False else ""]
        ins[8].append(pv(n-1, 1))
        ins[12].append(pv(n, 0))
        if j == 0:
            ins[0] += [rdK1(T+1), rdV(T+1,0)]
            if (T+1) % 4 == 0: ins[0].append(rdK2(T+1))
            ins[12].append("s_waitcnt lgkmcnt(0)")
        else:
            ins[0].append(rdV(T+1,1))
        if n == 13:
            ins[8].append(f"s_cmp_eq_u32 s{sC}, 7")
            ins[12] += ["s_waitcnt vmcnt(0) lgkmcnt(0)"] + (["s_memrealtime s[98:99]"] if prof else []) + ["s_cbranch_scc1 L_nobar", "s_barrier", "L_nobar:"] + (["s_memrealtime s[100:101]"] if prof else [])
            ins[13] += [f"v_add_u32 v{vK}, s{sSlotN}, v{vK0}", f"v_add_u32 v{vV}, s{sSlotN}, v{vV0}"]
        if n == 14:
            ins[8] += [f"s_xor_b32 s{sSlotN}, s{sSlotN}, {CHUNK}"]
        if n == 15:
            if prof: ins[4] += [f"s_mov_b32 m0, s{sC}", f"v_writelane_b32 v{vPr}, s98, m0", f"v_writelane_b32 v{vPr+1}, s100, m0"]
            ins[8] += [f"s_add_u32 s{sC}, s{sC}, 1", f"s_cmp_lt_u32 s{sC}, 8"]
        for i in range(16):
            for x in ins[i]:
                if x: a(x)
            a(f"v_exp_f32 v{S[n%NB]+i}, v{S[n%NB]+i}")
    a("s_cbranch_scc1 L_loop")
    a(pv(15, 1))
    if prof:
        a("s_memtime s[12:13]"); a("s_memrealtime s[14:15]"); a("s_waitcnt lgkmcnt(0)")
        a("s_sub_u32 s12, s12, s8"); a("s_sub_u32 s14, s14, s10")
        a(f"v_writelane_b32 v{vPr}, s12, 8"); a(f"v_writelane_b32 v{vPr}, s14, 9")
    stamp("a")
    a("s_waitcnt lgkmcnt(0)")
    a(f"v_mov_b32 v{vT}, 0"); a(f"v_mov_b32 v{vT+1}, 0")
    for j in range(2):
        for i in range(0, 12, 2):
            a(f"v_pk_fma_f32 {v(vT,2)}, {v(O[j]+i,2)}, 0, {v(vT,2)} op_sel_hi:[1,0,1]")
    a(f"v_add_f32 v{vT}, v{vT}, v{vT+1}")
    a(f"v_add_f32 v{vT}, v{vT}, v{O[0]+12}")
    a(f"v_add_f32 v{vT}, v{vT}, v{O[1]+12}")
    thr = 0x71800000 if not opt.get("forceslow") else 0
    a(f"v_cmp_nle_f32 vcc, v{vT}, v{vT+1}" if False else f"v_cmp_ngt_f32 vcc, {thr:#x}, v{vT}")
    a("s_cbranch_vccnz L_slow")
    a("L_slow_ret:")
    for j in range(2):
        a(f"v_rcp_f32 v{vT+j}, v{O[j]+12}")
    a(f"s_lshl_b32 s{sGo}, s{sG}, 5"); a(f"s_add_u32 s{sGo}, s{sGo}, s{sW}"); a(f"s_mul_i32 s{sGo}, s{sGo}, 2560")
    a(f"s_add_u32 s{sGo}, s{sGo}, {WS_O}")
    a(f"s_mul_i32 s{sT3}, s{sS}, 10240"); a(f"s_add_u32 s{sT3}, s{sT3}, s{sGo}")
    for j in range(2):
        for i in range(12): a(f"v_mul_f32 v{O[j]+i}, v{O[j]+i}, v{vT+j}")
        for i in range(6): a(f"v_cvt_pk_bf16_f32 v{O[j]+i}, v{O[j]+2*i}, v{O[j]+2*i+1}")
        a(f"buffer_store_dwordx4 {v(O[j],4)}, v{vDma}, s[{sWS}:{sWS+3}], s{sT3} offen offset:{1024*j} sc1")
    a(f"v_lshlrev_b32 v{vT+2}, 3, v{vL}")
    for i in range(2): a(f"v_permlane32_swap_b32 v{O[0]+4+i}, v{O[1]+4+i}")
    a(f"buffer_store_dwordx2 {v(O[0]+4,2)}, v{vT+2}, s[{sWS}:{sWS+3}], s{sT3} offen offset:2048 sc1")
    if opt.get("prio", 1): a("s_setprio 0")
    RO = Regs(20)
    vWm = RO(); vWl = RO(); vO8 = RO(); vOut = RO(); vFl = RO()
    OF = RO(80, 4); AC = RO(20, 4); NWB = 5
    WB = [RO(20, 4) for _ in range(NWB)]
    assert not (set(range(vWm, vFl+1)) & set(range(O[0], O[1]+16)))
    a(f"v_mov_b32 v{vO8}, v{vT+2}")
    a(f"v_bfe_u32 v{vT}, v{vL}, 2, 2")
    a(f"v_bfe_u32 v{vT+1}, v{vL}, 4, 1")
    a(f"v_mul_u32_u24 v{vT+1}, 20, v{vT+1}"); a(f"v_add_u32 v{vT}, v{vT}, v{vT+1}")
    a(f"v_lshrrev_b32 v{vT+1}, 5, v{vL}")
    a(f"v_mul_u32_u24 v{vT+2}, 40, v{vT+1}"); a(f"v_add3_u32 v{vT+2}, v{vT+2}, v{vT}, 16")
    a(f"v_lshl_add_u32 v{vT}, v{vT+1}, 2, v{vT}")
    a(f"v_and_b32 v{vT+1}, 3, v{vL}"); a(f"v_mul_u32_u24 v{vT+1}, 40, v{vT+1}"); a(f"v_add_u32 v{vT+1}, {L_WO}, v{vT+1}")
    a(f"v_mul_u32_u24 v{vT}, 160, v{vT}"); a(f"v_add_u32 v{vWm}, v{vT}, v{vT+1}")
    a(f"v_mul_u32_u24 v{vT+2}, 160, v{vT+2}"); a(f"v_add_u32 v{vWl}, v{vT+2}, v{vT+1}")
    a(f"v_and_b32 v{vT}, 15, v{vL}"); a(f"v_mul_u32_u24 v{vT}, 2560, v{vT}")
    a(f"v_lshrrev_b32 v{vT+1}, 4, v{vL}"); a(f"v_mul_u32_u24 v{vT+1}, 40, v{vT+1}"); a(f"v_add_u32 v{vOut}, v{vT}, v{vT+1}")
    a(f"v_and_b32 v{vT}, 7, v{vL}"); a(f"v_lshlrev_b32 v{vFl}, 12, v{vT}")
    srd(a, sA, pOut, 2048*2560)
    steps = []
    for p in range(4):
        steps += [("m", 2*p, 0), ("m", 2*p, 1), ("m", 2*p+1, 0), ("m", 2*p+1, 1), ("l", 2*p, 0)]
    def wrd(n):
        kind, sp, j = steps[n]; buf = WB[n % NWB]; r = []
        sub = 51200 if sp >= 4 else 0
        for t5 in range(5):
            for t in range(2):
                if kind == "m": r.append(f"ds_read_b64_tr_b16 {v(buf+4*t5+2*t,2)}, v{vWm} offset:{(80*sp+40*j+8*t)*160+8*t5-sub}")
                else: r.append(f"ds_read_b64_tr_b16 {v(buf+4*t5+2*t,2)}, v{vWl} offset:{80*(sp+t)*160+8*t5-sub}")
        return r
    a("s_waitcnt vmcnt(0)")
    publish(vT, WS_FO, sW)
    stamp("a")
    for n in range(NWB-1):
        for x in wrd(n): a(x)
        a("s_waitcnt lgkmcnt(4)")
    a(f"s_lshl_b32 s{sT}, s{sG}, 7"); a(f"s_lshl_b32 s{sT2}, s{sW}, 2"); a(f"s_add_u32 s{sT}, s{sT}, s{sT2}"); a(f"s_add_u32 s{sT5}, s{sT}, {WS_FO}")
    poll(vT, vFl, f"s{sT5}")
    stamp("a")
    for p in range(4):
        for q in range(2):
            for j in range(2):
                a(f"buffer_load_dwordx4 {v(OF+20*p+8*q+4*j,4)}, v{vDma}, s[{sWS}:{sWS+3}], s{sGo} offen offset:{1024*j} sc1")
            a(f"buffer_load_dwordx2 {v(OF+20*p+16+2*q,2)}, v{vO8}, s[{sWS}:{sWS+3}], s{sGo} offen offset:2048 sc1")
            if (p, q) != (3, 1): a(f"s_add_u32 s{sGo}, s{sGo}, 10240")
    need = [1, 2, 4, 5, 6]
    for n in range(20):
        p, r_ = divmod(n, 5)
        nn = n + NWB - 1
        nx = []
        if nn < 20:
            if nn == 10:
                a(f"v_add_u32 v{vWm}, 51200, v{vWm}"); a(f"v_add_u32 v{vWl}, 51200, v{vWl}")
            nx = wrd(nn)
        out_allowed = min(10, 10*(min(19, nn-1) - n))
        a(f"s_waitcnt vmcnt({24-6*p-need[r_]}) lgkmcnt({out_allowed})")
        for t5 in range(5):
            a(f"v_mfma_f32_16x16x32_bf16 {v(AC+4*t5,4)}, {v(WB[n%NWB]+4*t5,4)}, {v(OF+4*n,4)}, {'0' if n==0 else v(AC+4*t5,4)}")
            for x in nx[2*t5:2*t5+2]: a(x)
    a(f"s_lshl_b32 s{sT}, s{sG}, 2"); a(f"s_add_u32 s{sT}, s{sT}, s{sW}"); a(f"s_mul_i32 s{sT}, s{sT}, {16*2560}")
    a(f"s_add_u32 s{sT}, s{sT}, s{sT4}")
    for i in range(10): a(f"v_cvt_pk_bf16_f32 v{OF+i}, v{AC+2*i}, v{AC+2*i+1}")
    a(f"buffer_store_dwordx4 {v(OF,4)}, v{vOut}, s[{sA}:{sA+3}], s{sT} offen")
    a(f"buffer_store_dwordx4 {v(OF+4,4)}, v{vOut}, s[{sA}:{sA+3}], s{sT} offen offset:16")
    a(f"buffer_store_dwordx2 {v(OF+8,2)}, v{vOut}, s[{sA}:{sA+3}], s{sT} offen offset:32")
    if prof:
        stamp("a"); a("s_waitcnt vmcnt(0)"); stamp("a")
        prof_store("a", vT)
        a("s_mov_b64 exec, -1")
        a(f"v_lshlrev_b32 v{vT}, 2, v{vL}")
        a("s_mov_b64 exec, 0xff")
        a(f"s_add_u32 s{sT}, s{sT}, {0x40000}")
        a(f"buffer_store_dword v{vPr}, v{vT}, s[{sWS}:{sWS+3}], s{sT} offen")
        a(f"buffer_store_dword v{vPr+1}, v{vT}, s[{sWS}:{sWS+3}], s{sT} offen offset:32")
        a("s_mov_b64 exec, 0x300")
        a(f"s_add_u32 s{sT}, s{sT}, {0x40000}")
        a(f"buffer_store_dword v{vPr}, v{vT}, s[{sWS}:{sWS+3}], s{sT} offen")
    a("s_endpgm")
    a("L_slow:")
    M = [vK, vV]
    for j in range(2):
        a(f"v_mov_b32 v{M[j]}, 0xff800000")
        for i in range(16): a(f"v_mov_b32 v{C[j]+i}, 0"); a(f"v_mov_b32 v{O[j]+i}, 0")
    a(f"s_mov_b32 s{sSlotN}, 0")
    a("L_slow_pass:")
    a(f"s_mov_b32 s{sC}, 0")
    a("L_slow_it:")
    a(f"s_lshr_b32 s{sT}, s{sC}, 2"); a(f"s_mul_i32 s{sT}, s{sT}, {CHUNK}")
    a(f"s_bfe_u32 s{sT2}, s{sC}, 0x10001"); a(f"s_mul_i32 s{sT2}, s{sT2}, {GRP}")
    a(f"s_add_u32 s{sT}, s{sT}, s{sT2}"); a(f"s_add_u32 s{sT}, s{sT}, {WS_KV}")
    a(f"s_and_b32 s{sT2}, s{sC}, 1")
    a(f"s_lshl_b32 s{sT3}, s{sT2}, 10"); a(f"s_add_u32 s{sT3}, s{sT3}, s{sT}")
    for q in range(2): a(f"buffer_load_dwordx4 {v(K1[q],4)}, v{vK0}, s[{sWS}:{sWS+3}], s{sT3} offen offset:{2048*q} sc1")
    a(f"s_lshl_b32 s{sT3}, s{sT2}, 3"); a(f"s_add_u32 s{sT3}, s{sT3}, s{sT}"); a(f"s_add_u32 s{sT3}, s{sT3}, 4096")
    a(f"buffer_load_dwordx2 {v(K2[0],2)}, v{vK0}, s[{sWS}:{sWS+3}], s{sT3} offen sc1")
    a(f"s_mul_i32 s{sT3}, s{sT2}, 1344"); a(f"s_add_u32 s{sT3}, s{sT3}, s{sT}")
    for q in range(2):
        a(f"buffer_load_dwordx4 {v(V0[q],4)}, v{vV0}, s[{sWS}:{sWS+3}], s{sT3} offen offset:{2688*q} sc1")
        a(f"buffer_load_dwordx4 {v(V1[q],4)}, v{vV0}, s[{sWS}:{sWS+3}], s{sT3} offen offset:{2688*q+672} sc1")
    a("s_waitcnt vmcnt(0)")
    for q in range(2):
        for j in range(2):
            Sx = S[2*q+j]
            a(f"v_mfma_f32_32x32x8_bf16 {v(Sx,16)}, {v(K2[0],2)}, {v((Q2a if q==0 else Q2b)[j],2)}, {v(C[j],16)}")
            a(f"v_mfma_f32_32x32x16_bf16 {v(Sx,16)}, {v(K1[q],4)}, {v(Q1[j],4)}, {v(Sx,16)}")
    a("s_nop 15")
    a(f"s_cmp_eq_u32 s{sSlotN}, 1"); a("s_cbranch_scc1 L_slow_p2")
    for q in range(2):
        for j in range(2): rowmax(S[2*q+j], M[j], True)
    a("s_branch L_slow_nx")
    a("L_slow_p2:")
    for i in range(64): a(f"v_exp_f32 v{S[0]+i}, v{S[0]+i}")
    a("s_nop 1")
    for q in range(2):
        for j in range(2):
            for sidx in range(2):
                a(f"v_smfmac_f32_32x32x32_bf16 {v(O[j],16)}, {v((V0 if sidx==0 else V1)[q],4)}, {v(S[2*q+j]+8*sidx,8)}, v{vIdx}")
    a("s_nop 15")
    a("L_slow_nx:")
    a(f"s_add_u32 s{sC}, s{sC}, 1"); a(f"s_cmp_lt_u32 s{sC}, 32"); a("s_cbranch_scc1 L_slow_it")
    a(f"s_cmp_eq_u32 s{sSlotN}, 1"); a("s_cbranch_scc1 L_slow_ret")
    for j in range(2): setC(j, M[j], vT)
    a(f"s_mov_b32 s{sSlotN}, 1")
    a("s_branch L_slow_pass")
    assert S[1] == S[0]+16 and S[3] == S[0]+48
    hi_a = max(R.hi, RA.hi, RO.hi, KW+8*NKW)

    a("L_helper:")
    NK = opt.get("nk", 2)
    H = Regs(5)
    hT = H(8, 4); hDma = H(); hP = H(5); hAt = H(); PR = H(8, 2)
    a(f"s_sub_u32 s{sH}, s{sW}, 4")
    a(f"s_sub_u32 s{sCh}, s2, 96"); a(f"s_lshl_b32 s{sCh}, s{sCh}, 2"); a(f"s_add_u32 s{sCh}, s{sCh}, s{sH}")
    a(f"s_lshl_b32 s{sT}, s{sCh}, 8")
    a(f"v_lshlrev_b32 v{hT+2}, 2, v{vL}"); a(f"v_add_u32 v{hT}, s{sT}, v{hT+2}")
    a(f"s_lshl_b32 s{sT}, s{sCh}, 1"); a(f"v_mov_b32 v{hT+1}, s{sT}")
    tS = H(); tTr = H(); tWr = H(); tRd = H(); tDst = H()
    a(f"s_lshr_b32 s{sT}, s2, 3"); a(f"s_mul_i32 s{sT}, s{sT}, 200"); a(f"s_mul_i32 s{sT2}, s{sH}, 50"); a(f"s_add_u32 s{sT}, s{sT}, s{sT2}")
    a(f"v_add_u32 v{hT+3}, s{sT}, v{vL}"); a(f"v_lshlrev_b32 v{hT+3}, 7, v{hT+3}")
    a(f"v_lshrrev_b32 v{hT+4}, 1, v{vL}"); a(f"v_mul_u32_u24 v{hT+4}, 1280, v{hT+4}"); a(f"v_and_b32 v{hT+5}, 1, v{vL}")
    a(f"v_lshl_add_u32 v{tS}, v{hT+5}, 4, v{hT+4}")
    sCt = sSlotD; sUG = sGo; sUL = sBound
    a(f"s_cmp_ge_u32 s{sS}, 3"); a(f"s_cselect_b32 s{sCt}, 2, 0"); a(f"s_add_u32 s{sCt}, s{sCt}, s{sS}")
    a(f"s_mul_i32 s{sUG}, s{sG}, {64*1280}"); a(f"s_lshl_b32 s{sT}, s{sCt}, 7"); a(f"s_add_u32 s{sUG}, s{sUG}, s{sT}")
    a(f"s_lshl_b32 s{sT}, s{sH}, 5"); a(f"s_add_u32 s{sUG}, s{sUG}, s{sT}")
    a(f"s_mul_i32 s{sUL}, s{sH}, {KRP}"); a(f"s_add_u32 s{sUL}, s{sUL}, {L_KR}")
    a(f"v_mov_b32 v{hT+6}, 0"); a(f"v_mov_b32 v{hT+7}, 0")
    a(f"v_and_b32 v{hT+4}, 3, v{vL}"); a(f"v_lshl_add_u32 v{hT+4}, v{hT+4}, 3, s{sUL}")
    a(f"ds_write_b64 v{hT+4}, {v(hT+6,2)}")
    a(f"s_cmp_lg_u32 s{sS}, 2"); a("s_cbranch_scc1 L_h_z1")
    a(f"v_subrev_u32 v{hT+4}, {4*KRP}, v{hT+4}"); a(f"ds_write_b64 v{hT+4}, {v(hT+6,2)}")
    a(f"v_subrev_u32 v{hT+4}, {4*KRP}, v{hT+4}"); a(f"ds_write_b64 v{hT+4}, {v(hT+6,2)}")
    a("L_h_z1:")
    a(f"s_cmp_lt_u32 s{sS}, 3")
    a("s_waitcnt lgkmcnt(0)")
    stamp("h")
    a("s_cbranch_scc1 L_h_pre_tr")
    a(f"global_load_ushort v{PR+6}, v{hT+1}, s[{pLdt}:{pLdt+1}]")
    for i, p in enumerate((pAre, pAim, pBre, pBim, pCre, pCim)):
        a(f"global_load_dword v{PR+i}, v{hT}, s[{p}:{p+1}]")
    a(f"global_load_ushort v{PR+7}, v{hT+1}, s[{pDs}:{pDs+1}]")
    a("L_h_pre_tr:")
    a("s_mov_b32 exec_hi, 0x3ffff")
    a(f"global_load_dword v3, v{hT+3}, s[{pWQ}:{pWQ+1}]")
    a("s_mov_b32 exec_hi, -1")
    srd(a, sX, pU, 2048*1280)
    def u_load():
        a(f"s_mov_b32 m0, s{sUL}")
        a(f"s_cmp_eq_u32 s{sG}, 0"); a(f"s_cselect_b32 s{sT}, 0, 1280"); a(f"s_cselect_b32 s{sT2}, 0x40000000, 0")
        a(f"v_add_u32 v{tTr}, s{sT2}, v{tS}"); a("s_mov_b64 exec, 3")
        a(f"s_sub_u32 s{sT}, s{sUG}, s{sT}")
        a(f"buffer_load_dwordx4 v{tTr}, s[{sX}:{sX+3}], s{sT} offen lds")
        a("s_mov_b64 exec, -1")
        a("s_add_u32 m0, m0, 32"); a(f"s_add_u32 s{sT}, s{sUG}, {32*1280}")
        a(f"buffer_load_dwordx4 v{tS}, s[{sX}:{sX+3}], s{sUG} offen lds")
        a("s_add_u32 m0, m0, 1024")
        a(f"buffer_load_dwordx4 v{tS}, s[{sX}:{sX+3}], s{sT} offen lds")
    u_load()
    a("s_barrier")
    a(f"s_cmp_lg_u32 s{sS}, 2"); a("s_cbranch_scc1 L_h_z2")
    for i in range(2):
        a(f"s_sub_u32 s{sUL}, s{sUL}, {4*KRP}"); a(f"s_add_u32 s{sUG}, s{sUG}, 128")
        u_load()
    a(f"s_add_u32 s{sUL}, s{sUL}, {8*KRP}")
    a("L_h_z2:")
    a(f"s_load_dword s{sTag}, s[{pWS}:{pWS+1}], {WS_TAG}")
    a(f"v_lshrrev_b32 v{hT}, 4, v{vL}"); a(f"v_bfe_u32 v{hT+1}, v{vL}, 2, 2"); a(f"v_lshl_add_u32 v{hT+1}, v{hT}, 3, v{hT+1}")
    a(f"v_lshlrev_b32 v{hT+1}, 2, v{hT+1}"); a(f"v_and_b32 v{hT+3}, 3, v{vL}"); a(f"v_add_u32 v{hT+1}, v{hT+1}, v{hT+3}")
    a(f"v_lshl_add_u32 v{tTr}, v{hT+1}, 3, s{sUL}")
    a(f"v_and_b32 v{hT+1}, 15, v{vL}"); a(f"v_mul_u32_u24 v{hT+1}, 144, v{hT+1}"); a(f"v_lshl_add_u32 v{hT+1}, v{hT}, 4, v{hT+1}")
    a(f"v_add_u32 v{tWr}, s{sUL}, v{hT+1}")
    a(f"v_lshrrev_b32 v{hT}, 3, v{vL}"); a(f"v_and_b32 v{hT+1}, 7, v{vL}"); a(f"v_lshlrev_b32 v{hT+1}, 4, v{hT+1}")
    a(f"v_mul_u32_u24 v{hT+3}, 144, v{hT}"); a(f"v_add3_u32 v{tRd}, v{hT+3}, v{hT+1}, s{sUL}")
    a(f"v_mul_u32_u24 v{hT+3}, {UTP}, v{hT}"); a(f"v_add_u32 v{tDst}, v{hT+3}, v{hT+1}")
    sUD = sC
    a(f"s_lshl_b32 s{sUD}, s{sCt}, 2"); a(f"s_add_u32 s{sUD}, s{sUD}, s{sH}"); a(f"s_mul_i32 s{sUD}, s{sUD}, {16*UTP}")
    a(f"s_lshl_b32 s{sT}, s{sG}, 7"); a(f"s_add_u32 s{sUD}, s{sUD}, s{sT}"); a(f"s_add_u32 s{sUD}, s{sUD}, {WS_UT+128}")
    def u_a(B):
        for odd in range(2):
            for Y in range(2):
                for t in range(2): a(f"ds_read_b64_tr_b16 {v(B+8*odd+4*Y+2*t,2)}, v{tTr} offset:{32+(32*Y+4*t-odd)*32}")
    def u_b(B):
        for odd in range(2):
            for Y in range(2): a(f"ds_write_b128 v{tWr}, {v(B+8*odd+4*Y,4)} offset:{2304*odd+64*Y}")
        for odd in range(2):
            for b in range(2): a(f"ds_read_b128 {v(B+8*odd+4*b,4)}, v{tRd} offset:{2304*odd+1152*b}")
    def u_c(B):
        for odd in range(2):
            for b in range(2):
                if (odd, b) == (0, 0): a(f"buffer_store_dwordx4 {v(B,4)}, v{tDst}, s[{sWS}:{sWS+3}], s{sUD} offen sc1")
                else:
                    a(f"s_add_u32 s{sT5}, s{sUD}, {4224*odd+8*UTP*b}")
                    a(f"buffer_store_dwordx4 {v(B+8*odd+4*b,4)}, v{tDst}, s[{sWS}:{sWS+3}], s{sT5} offen sc1")
    a(f"v_lshlrev_b32 v{hDma}, 4, v{vL}")
    srd(a, sWS, pWS, WS_SIZE)
    srd(a, sWQ, pWO, 640*1280)
    wpattern(hP, vL, hT, False)
    a(f"s_lshr_b32 s{sGo}, s{sG}, 2"); a(f"s_add_u32 s{sGo}, s{sGo}, 2"); a(f"s_and_b32 s{sGo}, s{sGo}, 7")
    a(f"s_mul_i32 s{sGo}, s{sGo}, {CHUNK}"); a(f"s_add_u32 s{sGo}, s{sGo}, {WS_KV}")
    a(f"s_mov_b32 s{sSlotD}, 0")
    sWoL = sSlotN; sWoG = sT4
    a(f"s_mul_i32 s{sWoL}, s{sH}, {5*5120}"); a(f"s_add_u32 s{sWoL}, s{sWoL}, {L_WO}")
    a(f"s_mul_i32 s{sWoG}, s{sH}, {5*40960}"); a(f"s_mul_i32 s{sT}, s{sS}, 160"); a(f"s_add_u32 s{sWoG}, s{sWoG}, s{sT}")
    def wo_step():
        a(f"s_mov_b32 m0, s{sWoL}")
        a(f"s_add_u32 s{sWoL}, s{sWoL}, 5120")
        wkstep_dma(hP, sWQ, sWoG)
        a(f"s_add_u32 s{sWoG}, s{sWoG}, 40960")
    def hl_wait(k, sleep=2):
        L = lab("tw"); D = lab("twd")
        a(f"v_mov_b32 v{hT+4}, {L_CNT}")
        a(f"s_mov_b32 s{sBound}, {SPIN*4}")
        a(f"{L}:")
        a(f"s_sleep {sleep}")
        a(f"ds_read_b32 v{hT+5}, v{hT+4} offset:{4*k}")
        a(f"s_sub_u32 s{sBound}, s{sBound}, 1"); a(f"s_cbranch_scc1 {D}")
        a("s_waitcnt lgkmcnt(0)")
        a(f"v_cmp_gt_u32 vcc, 4, v{hT+5}")
        a(f"s_cbranch_vccnz {L}")
        a(f"{D}:")
    def pre_b1():
        Lnp = lab("nopoll"); Lna = lab("noat")
        a(f"s_cmp_lg_u32 s{sH}, 3"); a(f"s_cbranch_scc1 {Lnp}")
        hl_wait(4, 8)
        a(f"v_lshlrev_b32 v{hT+4}, 7, v{vL}")
        a(f"s_mov_b32 s{sT5}, {WS_FKV}")
        poll(hT, hT+4, f"s{sT5}", 4, sleep=opt.get("psleep", 8))
        a(f"{Lnp}:")
    def post_b1():
        Lna = lab('noat')
        a(f"v_mov_b32 v{hAt}, 0")
        a(f"s_cmp_lg_u32 s{sH}, 0"); a(f"s_cbranch_scc1 {Lna}")
        srd(a, sA, pDbg, 256)
        a(f"v_mov_b32 v{hAt}, 1")
        a("s_mov_b64 exec, 1")
        a(f"buffer_atomic_add v{hAt}, off, s[{sA}:{sA+3}], 0 sc0 sc1")
        a("s_mov_b64 exec, -1")
        a(f"{Lna}:")
    def tag_advance():
        Lnt = lab("notag")
        a(f"v_readfirstlane_b32 s{sT}, v{hAt}")
        a(f"s_cmp_lg_u32 s{sT}, 255"); a(f"s_cbranch_scc1 {Lnt}")
        a(f"v_mov_b32 v{hT}, s{sTag}")
        a("s_mov_b64 exec, 1")
        a(f"buffer_store_dword v{hT}, off, s[{sWS}:{sWS+3}], 0 offset:{WS_TAG} sc1")
        a("s_mov_b64 exec, -1")
        a(f"{Lnt}:")
    a(f"s_cmp_lt_u32 s{sS}, 3"); a("s_cbranch_scc1 L_h_tr")
    vSw = H(4); vSr = H(); vKb = H(); vKc = H(); vKf = H(); vU = H(); vY = H()
    SEL = H(6)
    a(f"s_mul_i32 s{sU0}, s{sCh}, {UTP}"); a(f"s_add_u32 s{sU0}, s{sU0}, {WS_UT}")
    a(f"s_mul_i32 s{sT}, s{sH}, {SCP}"); a(f"s_add_u32 s{sT}, s{sT}, {L_SC}")
    a(f"v_lshlrev_b32 v{vSw}, 3, v{vL}"); a(f"v_add_u32 v{vSw}, s{sT}, v{vSw}")
    for i in range(1, 4): a(f"v_add_u32 v{vSw+i}, {2112*i}, v{vSw}")
    a(f"v_and_b32 v{hT+4}, 15, v{vL}")
    a(f"v_lshrrev_b32 v{hT+5}, 4, v{vL}")
    a(f"v_mul_u32_u24 v{hT+6}, 528, v{hT+4}"); a(f"v_lshl_add_u32 v{hT+6}, v{hT+5}, 4, v{hT+6}"); a(f"v_add_u32 v{vSr}, s{sT}, v{hT+6}")
    a(f"s_mul_i32 s{sT2}, s{sH}, {KRP}"); a(f"s_add_u32 s{sT2}, s{sT2}, {L_KR}")
    a(f"v_lshlrev_b32 v{hT+6}, 4, v{hT+4}")
    a(f"v_and_b32 v{hT+7}, 1, v{hT+5}"); a(f"v_lshl_add_u32 v{hT+7}, v{hT+7}, 3, v{hT+6}")
    a(f"v_and_b32 v{vKb}, 32, v{vL}"); a(f"v_lshl_add_u32 v{hT+7}, v{vKb}, 4, v{hT+7}")
    a(f"s_add_u32 s{sT3}, s{sT2}, {4088-256}")
    a(f"v_sub_u32 v{vKb}, s{sT3}, v{hT+7}")
    a(f"v_lshlrev_b32 v{hT+7}, 9, v{hT+5}")
    a(f"v_add_u32 v{hT+7}, v{hT+7}, v{hT+6}")
    a("s_mov_b32 exec_lo, 0"); a("s_mov_b32 exec_hi, 0xffff0000")
    a(f"v_add_u32 v{hT+7}, 512, v{hT+7}")
    a("s_mov_b64 exec, -1")
    a(f"s_add_u32 s{sT3}, s{sT2}, {4080-1024-256-512}")
    a(f"v_sub_u32 v{vKc}, s{sT3}, v{hT+7}")
    a(f"v_and_b32 v{hT}, 7, v{vL}"); a(f"v_bfe_u32 v{hT+1}, v{vL}, 4, 1"); a(f"v_lshl_add_u32 v{hT}, v{hT+1}, 3, v{hT}")
    a(f"v_bfe_u32 v{hT+2}, v{vL}, 3, 1")
    a(f"v_lshrrev_b32 v{hT+3}, 5, v{vL}")
    a(f"v_lshlrev_b32 v{hT+7}, 5, v{hT}"); a(f"v_lshl_add_u32 v{hT+7}, v{hT+2}, 9, v{hT+7}")
    a(f"s_add_u32 s{sT3}, s{sT2}, {4064-3072}")
    a(f"v_sub_u32 v{vKf}, s{sT3}, v{hT+7}"); a(f"v_lshl_add_u32 v{vKf}, v{hT+3}, 4, v{vKf}")
    a(f"v_lshrrev_b32 v{hT+7}, 2, v{hT}"); a(f"v_lshlrev_b32 v{hT+7}, 7, v{hT+7}"); a(f"v_lshl_add_u32 v{hT+7}, v{hT+2}, 9, v{hT+7}")
    a(f"v_lshl_add_u32 v{hT+7}, v{hT+3}, 6, v{hT+7}"); a(f"v_and_b32 v{vY}, 3, v{vL}"); a(f"v_lshl_add_u32 v{vY}, v{vY}, 4, v{hT+7}")
    a(f"v_and_b32 v{hT+7}, 2, v{vL}"); a(f"v_lshl_add_u32 v{hT+7}, v{hT+2}, 2, v{hT+7}")
    a(f"v_bfe_u32 v{hT}, v{vL}, 2, 1"); a(f"v_add_u32 v{hT}, v{hT}, v{hT+3}"); a(f"v_lshl_add_u32 v{hT+7}, v{hT}, 3, v{hT+7}")
    a(f"v_lshlrev_b32 v{hT+7}, 1, v{hT+7}"); a(f"v_lshl_add_u32 v{hT+7}, v{hT+1}, 9, v{hT+7}")
    a(f"v_and_b32 v{hT+6}, 1, v{vL}"); a(f"v_mul_u32_u24 v{vU}, 4224, v{hT+6}")
    a(f"v_sub_u32 v{vU}, {4224+128-28}, v{vU}"); a(f"v_add_u32 v{vU}, v{vU}, v{hT+7}")
    def sel(lo, hi): return (2*lo) | (2*lo+1) << 8 | (2*hi) << 16 | (2*hi+1) << 24
    a(f"v_mov_b32 v{SEL}, {sel(3,2):#x}"); a(f"v_mov_b32 v{SEL+1}, {sel(1,0):#x}")
    a(f"v_mov_b32 v{SEL+2}, {sel(2,2):#x}"); a(f"v_mov_b32 v{SEL+3}, {sel(1,1):#x}"); a(f"v_mov_b32 v{SEL+4}, {sel(1,0):#x}")
    a("s_mov_b32 exec_lo, 0")
    a(f"v_mov_b32 v{SEL}, {sel(2,1):#x}"); a(f"v_mov_b32 v{SEL+1}, {sel(0,0):#x}")
    a(f"v_mov_b32 v{SEL+2}, {sel(1,1):#x}"); a(f"v_mov_b32 v{SEL+4}, {sel(0,0):#x}")
    a(f"v_mul_u32_u24 v{SEL+3}, 0x101, v{hT+6}"); a(f"v_lshlrev_b32 v{SEL+3}, 17, v{SEL+3}"); a(f"v_add_u32 v{SEL+3}, {sel(1,0):#x}, v{SEL+3}")
    a(f"v_add_u32 v{SEL+5}, 0x04040404, v{SEL+3}")
    a("s_mov_b32 exec_lo, -1")
    for i in range(4): a(f"v_mov_b32 v{hT+i}, 0")
    vKz = H()
    a(f"v_lshlrev_b32 v{vKz}, 3, v{vL}"); a(f"v_add_u32 v{vKz}, s{sT2}, v{vKz}")
    HK = Regs(H.p)
    Z1 = [HK(2) for _ in range(2)]; Z8 = [HK(2) for _ in range(2)]
    ZB = [HK(2) for _ in range(2)]; Wc = [[HK(2) for _ in range(2)] for _ in range(2)]; Cu = [[HK(2) for _ in range(2)] for _ in range(2)]
    E = [HK(2) for _ in range(2)]; AR = [HK(2) for _ in range(2)]; TB = [HK(2) for _ in range(2)]; TC = [HK(2) for _ in range(2)]
    Z2 = TC; Z4 = TB
    LF = [HK(32, 4) for _ in range(2)]; HF = [HK(32, 4) for _ in range(2)]; DK = [HK(4, 4) for _ in range(4)]; EX = HK(8, 4)
    L2E = 1.4426950408889634
    f2 = lambda x: struct.unpack("<I", struct.pack("<f", x))[0]
    hi_ = struct.unpack("<f", struct.pack("<f", L2E))[0]; lo_ = L2E - hi_
    a(f"v_mov_b32 v{EX}, 0x3f80"); a(f"v_mov_b32 v{EX+1}, 0x3f80")
    a(f"s_mov_b32 s{sT}, {f2(hi_):#x}")
    if opt.get("kprio", 1): a("s_setprio 1")
    a("s_waitcnt vmcnt(9)")
    stamp("h")
    dt = hT+4
    a(f"v_lshlrev_b32 v{hT+5}, 16, v{PR+6}")
    a(f"v_mul_f32 v{hT+6}, {f2(hi_):#x}, v{hT+5}")
    a(f"v_fma_f32 v{hT+7}, v{hT+5}, s{sT}, -v{hT+6}")
    a(f"v_fmac_f32 v{hT+7}, {f2(lo_):#x}, v{hT+5}")
    a(f"v_exp_f32 v{hT+6}, v{hT+6}")
    a(f"v_mul_f32 v{hT+7}, {f2(0.6931471805599453):#x}, v{hT+7}")
    a(f"v_fmac_f32 v{hT+6}, v{hT+6}, v{hT+7}")
    a(f"v_cvt_pk_bf16_f32 v{dt}, v{hT+6}, v{hT+6}")
    a(f"v_lshlrev_b32 v{dt}, 16, v{dt}")
    def unpack(dst, src, m):
        if m == 0: a(f"v_lshlrev_b32 v{dst}, 16, v{src}")
        else: a(f"v_and_b32 v{dst}, 0xffff0000, v{src}")
    fill = []
    def cmul(d, x, y):
        for m in range(2): a(f"v_pk_mul_f32 {v(d[m],2)}, {v(x[m],2)}, {v(y[m],2)} op_sel:[0,0] op_sel_hi:[0,1]")
        for m in range(2): a(f"v_pk_fma_f32 {v(d[m],2)}, {v(x[m],2)}, {v(y[m],2)}, {v(d[m],2)} op_sel:[1,1,0] op_sel_hi:[1,0,1] neg_lo:[0,1,0]")
    for m in range(2):
        for i in range(2): unpack(AR[m]+i, PR+i, m)
    for m in range(2):
        for i in range(2): a(f"v_mul_f32 v{AR[m]+i}, v{dt}, v{AR[m]+i}")
        a(f"v_mul_f32 v{AR[m]}, {f2(L2E):#x}, v{AR[m]}")
        a(f"v_mul_f32 v{AR[m]+1}, {f2(0.15915494309189535):#x}, v{AR[m]+1}")
    def cpow(d, p):
        for m in range(2):
            if p != 1:
                a(f"v_mul_f32 v{E[m]}, {f2(float(p)):#x}, v{AR[m]}"); a(f"v_mul_f32 v{E[m]+1}, {f2(float(p)):#x}, v{AR[m]+1}")
                a(f"v_exp_f32 v{E[m]}, v{E[m]}"); a(f"v_fract_f32 v{E[m]+1}, v{E[m]+1}")
            else:
                a(f"v_exp_f32 v{E[m]}, v{AR[m]}"); a(f"v_fract_f32 v{E[m]+1}, v{AR[m]+1}")
        for m in range(2):
            a(f"v_cos_f32 v{d[m]}, v{E[m]+1}"); a(f"v_sin_f32 v{d[m]+1}, v{E[m]+1}")
        for m in range(2):
            a(f"v_pk_mul_f32 {v(d[m],2)}, {v(d[m],2)}, {v(E[m],2)} op_sel_hi:[1,0]")
    er = [1]; pend = [(EX, 0)]
    def flush():
        if len(pend) == 1:
            e, r_ = pend[0]; a(f"ds_write_b64 v{vSw}, {v(e,2)} offset:{528*r_}")
        elif len(pend) == 2:
            (e0, r0), (e1, r1) = pend
            b = min(r0, r1)//4
            if max(r0, r1) - 4*b > 3:
                a(f"ds_write_b64 v{vSw}, {v(e0,2)} offset:{528*r0}"); a(f"ds_write_b64 v{vSw}, {v(e1,2)} offset:{528*r1}")
            else:
                a(f"ds_write2_b64 v{vSw+b}, {v(e0,2)}, {v(e1,2)} offset0:{66*(r0-4*b)} offset1:{66*(r1-4*b)}")
        pend.clear()
    def row(x, rows, neg):
        e = EX + 2*(er[0] % 4); er[0] += 1
        for m in range(2): a(f"v_cvt_pk_bf16_f32 v{e+m}, v{x[m]}, {'-' if neg else ''}v{x[m]+1}")
        if fill: a(fill.pop(0))
        for r_ in rows:
            if pend and pend[0][1]//4 != r_//4: flush()
            pend.append((e, r_))
            if len(pend) == 2: flush()
        if fill: a(fill.pop(0))
    def frags(dst):
        flush()
        for q in range(8): a(f"ds_read_b128 {v(dst+4*q,4)}, v{vSr} offset:{64*q}")
    cpow(Z8, 8)
    row(Z8, [1], False)
    cur = Z8
    for j in range(2, 32):
        nxt = Cu[j & 1]
        cmul(nxt, cur, Z8); cur = nxt
        row(cur, [j % 16], False)
        if j == 15: frags(LF[0])
    frags(LF[1])
    cmul(ZB, cur, Z8)
    cpow(Z1, 1)
    a("s_waitcnt vmcnt(0)")
    u_a(HF[1])
    for m in range(2):
        for i in range(2): unpack(TB[m]+i, PR+2+i, m); unpack(TC[m]+i, PR+4+i, m)
    for m in range(2): a(f"v_pk_mul_f32 {v(TB[m],2)}, {v(TB[m],2)}, {v(dt,2)} op_sel_hi:[1,0]")
    cmul(Wc[0], TC, TB)
    row(Wc[0], [0], True)
    cur = Wc[0]
    for h_ in range(1, 8):
        nxt = Cu[h_ & 1]; cmul(nxt, cur, Z1); cur = nxt
        row(cur, [h_], True)
    a("s_waitcnt lgkmcnt(4)")
    u_b(HF[1])
    cmul(Z2, Z1, Z1)
    cmul(Wc[1], Wc[0], ZB); row(Wc[1], [8], True)
    cur = Wc[1]
    for i, rows in enumerate(([9], [10, 12], [13], [14])):
        nxt = Cu[i & 1]; cmul(nxt, cur, Z2); cur = nxt
        row(cur, rows, True)
    frags(HF[0])
    def hm(hb):
        return [f"v_mfma_f32_16x16x32_bf16 {v(DK[2*hb+lb],4)}, {v(HF[hb]+4*q,4)}, {v(LF[lb]+4*q,4)}, {'0' if q==0 else v(DK[2*hb+lb],4)}" for q in range(8) for lb in range(2)]
    g_ = [1]
    def nextG():
        cmul(Wc[(g_[0]+1) & 1], Wc[g_[0] & 1], ZB); g_[0] += 1
        return Wc[g_[0] & 1]
    cmul(Z4, Z2, Z2)
    for base in (0, 4):
        G = nextG()
        row(G, [base], True)
        cmul(Cu[0], G, Z4); row(Cu[0], [base+1], True)
        cmul(Cu[1], Cu[0], Z4); row(Cu[1], [base+2], True)
        if base == 0:
            a("s_waitcnt lgkmcnt(1)"); fill += hm(0)
            u_c(HF[1])
    for r_ in (8, 10, 12, 14):
        G = nextG(); row(G, [r_], True)
        cmul(Cu[0], G, Z8); row(Cu[0], [r_+1], True)
    assert not fill
    frags(HF[1])
    a(f"v_lshlrev_b32 v{hT+5}, 16, v{PR+7}")
    a("s_mov_b64 exec, 1"); a(f"v_add_f32 v{DK[0]}, v{DK[0]}, v{hT+5}"); a("s_mov_b64 exec, -1")
    for lb in range(2):
        D = DK[lb]
        a(f"v_cvt_pk_bf16_f32 v{D}, v{D}, v{D+1}"); a(f"v_cvt_pk_bf16_f32 v{D+1}, v{D+2}, v{D+3}")
        a(f"v_perm_b32 v{D+2}, v{D+1}, v{D}, v{SEL}"); a(f"v_perm_b32 v{D+3}, v{D+1}, v{D}, v{SEL+1}")
    m1 = hm(1)
    for q in range(8):
        a(f"s_waitcnt lgkmcnt({7-q})"); a(m1[2*q]); a(m1[2*q+1])
    for lb in range(2): a(f"ds_write_b64 v{vKb}, {v(DK[lb]+2,2)} offset:{256*(1-lb)}")
    a(f"ds_write_b64 v{vKz}, {v(hT,2)} offset:4096")
    a(f"s_mov_b32 s{sT}, {sel(0,0):#x}"); a(f"s_mov_b32 s{sT2}, {sel(3,3):#x}"); a(f"s_mov_b32 s{sT3}, {sel(2,2):#x}")
    for lb in range(2):
        D = DK[2+lb]; X = HF[0] + 8*lb
        a(f"v_cvt_pk_bf16_f32 v{D}, v{D}, v{D+1}"); a(f"v_cvt_pk_bf16_f32 v{D+1}, v{D+2}, v{D+3}")
        for i in range(3): a(f"v_perm_b32 v{X+i}, v{D+1}, v{D}, v{SEL+2+i}")
        a(f"v_perm_b32 v{X+3}, v{D+1}, v{D}, s{sT}")
        a(f"v_perm_b32 v{X+4}, v{D+1}, v{D}, s{sT2}"); a(f"v_perm_b32 v{X+5}, v{D+1}, v{D}, v{SEL+5}")
        a(f"v_perm_b32 v{X+6}, v{D+1}, v{D}, s{sT3}"); a(f"v_perm_b32 v{X+7}, v{D+1}, v{D}, s{sT3}")
    for lb in range(2): a(f"ds_write_b128 v{vKc}, {v(HF[0]+8*lb,4)} offset:{512+256*(1-lb)}")
    a("s_mov_b32 exec_lo, 0")
    for lb in range(2): a(f"ds_write_b128 v{vKc}, {v(HF[0]+8*lb+4,4)} offset:{256*(1-lb)}")
    a("s_mov_b32 exec_lo, -1")
    a("s_setprio 0")
    stamp("h")
    tagfix()
    a("s_waitcnt vmcnt(0)")
    publish(hT+4, WS_FU, sH)
    a(f"v_and_b32 v{hT+4}, 7, v{vL}"); a(f"v_lshlrev_b32 v{hT+4}, 4, v{hT+4}")
    a(f"v_bfe_u32 v{hT+5}, v{vL}, 3, 1"); a(f"v_mul_u32_u24 v{hT+5}, 4224, v{hT+5}"); a(f"v_add_u32 v{hT+4}, v{hT+4}, v{hT+5}")
    a("s_mov_b64 exec, 0xffff")
    a(f"buffer_store_dwordx4 {v(hT,4)}, v{hT+4}, s[{sWS}:{sWS+3}], s{sU0} offen sc1")
    a("s_mov_b64 exec, -1")
    a("s_waitcnt lgkmcnt(0)")
    stamp("h")
    sched = opt.get("sched", [20]*8)
    assert sum(sched) == 160
    NUB = 6
    HC = Regs(H.p)
    UF = [HC(16, 4) for _ in range(NUB)]; KF = [HC(16, 4) for _ in range(2)]; YA = HC(64, 4)
    first = [c for c in range(8) if sched[c]][0]
    cum = [sum(sched[:c]) for c in range(9)]
    uissued = [0]
    def uloads(upto):
        while uissued[0] < upto:
            k = uissued[0]
            for R_ in range(4):
                a(f"buffer_load_dwordx4 {v(UF[k%NUB]+4*R_,4)}, v{vU}, s[{sWS}:{sWS+3}], s{sU0} offen offset:{1024*R_+32*k} sc1")
            uissued[0] += 1
    def kreads(k):
        for D in range(4): a(f"ds_read_b128 {v(KF[k&1]+4*D,4)}, v{vKf} offset:{3072-1024*D+32*k}")
    pairs = [(R_, D) for R_ in range(4) for D in range(4-R_)]
    def upoll():
        a(f"s_lshr_b32 s{sT}, s{sCh}, 6")
        a(f"s_min_u32 s{sT2}, s{sT}, 2"); a(f"s_sub_u32 s{sT3}, s{sT}, 2")
        a(f"s_cmp_ge_u32 s{sT}, 5"); a(f"s_cselect_b32 s{sT2}, s{sT3}, s{sT2}")
        a(f"s_bfe_u32 s{sT}, s{sCh}, 0x20004")
        a(f"s_lshl_b32 s{sT2}, s{sT2}, 12"); a(f"s_lshl_b32 s{sT}, s{sT}, 2"); a(f"s_add_u32 s{sT}, s{sT}, s{sT2}")
        a(f"s_add_u32 s{sT5}, s{sT}, {WS_FU}")
        a(f"v_and_b32 v{hT+4}, 31, v{vL}"); a(f"v_lshlrev_b32 v{hT+4}, 7, v{hT+4}")
        poll(hT, hT+4, f"s{sT5}", sleep=opt.get("psleep", 8))
        stamp("h")
    for c in range(8):
        if 1 <= c <= 6: ring_dma(sH, hDma)
        if 1 <= c <= 5: wo_step()
        if c == 1: post_b1()
        if c == first-1: upoll()
        if c == 0 and first == 0:
            upoll(); uloads((cum[1]+9)//10); a("s_waitcnt vmcnt(0)")
        if c >= first-1 and c < 7:
            assert (cum[c+2]+9)//10 - cum[c]//10 <= NUB
            uloads((cum[c+2]+9)//10)
        for m in range(cum[c], cum[c+1]):
            k, q = divmod(m, 10)
            if m == 0: kreads(0)
            if q == 0:
                if k+1 < 16:
                    kreads(k+1); a("s_waitcnt lgkmcnt(4)")
                else: a("s_waitcnt lgkmcnt(0)")
            R_, D = pairs[q]; N = R_+D
            if not opt.get("noconv"):
                a(f"v_mfma_f32_32x32x16_bf16 {v(YA+16*N,16)}, {v(UF[k%NUB]+4*R_,4)}, {v(KF[k&1]+4*D,4)}, {'0' if k==0 and R_==0 else v(YA+16*N,16)}")
        if cum[c+1] == 160 and sched[c]:
            stamp("h")
            if opt.get("yprio", 1): a("s_setprio 3")
            a(f"s_lshl_b32 s{sT3}, s{sCh}, 12"); a(f"s_add_u32 s{sT3}, s{sT3}, {WS_YT}")
            for N in range(4):
                for i in range(8):
                    a(f"v_add_f32_dpp v{YA+16*N+i}, v{YA+16*N+8+i}, v{YA+16*N+i} row_ror:8 row_mask:0xf bank_mask:0xc")
                if N:
                    for i in range(8):
                        a(f"v_add_f32_dpp v{YA+16*N+i}, v{YA+16*N-8+i}, v{YA+16*N+i} row_ror:8 row_mask:0xf bank_mask:0x3")
                for i in range(4): a(f"v_cvt_pk_bf16_f32 v{YA+16*N+i}, v{YA+16*N+2*i}, v{YA+16*N+2*i+1}")
                a(f"buffer_store_dwordx4 {v(YA+16*N,4)}, v{vY}, s[{sWS}:{sWS+3}], s{sT3} offen offset:{1024*N} sc1")
            a("s_waitcnt vmcnt(0)")
            publish(hT, WS_FY - 96*128, sH)
            a("s_setprio 0")
            stamp("h")
        if c == 0: pre_b1()
        if c < 7:
            a("s_waitcnt vmcnt(0)")
            a("s_barrier")
    tag_advance()
    a("s_branch L_h_end")
    HT = Regs(H.p)
    tSrc = tS; TV = HT(32, 4)
    sTB = sCh; sCt = sU0
    def tr_addr(Ps, Pd, ymode):
        a(f"v_lshrrev_b32 v{hT}, 3, v{vL}"); a(f"v_and_b32 v{hT+1}, 7, v{vL}"); a(f"v_lshlrev_b32 v{hT+1}, 4, v{hT+1}")
        a(f"v_mul_u32_u24 v{hT+2}, {Ps}, v{hT}"); a(f"v_add_u32 v{tSrc}, v{hT+2}, v{hT+1}")
        a(f"v_mul_u32_u24 v{hT+2}, {Pd}, v{hT}"); a(f"v_add_u32 v{tDst}, v{hT+2}, v{hT+1}")
        a(f"v_mul_u32_u24 v{hT+2}, 144, v{hT}"); a(f"v_add3_u32 v{tRd}, v{hT+2}, v{hT+1}, s{sTB}")
        a(f"v_lshrrev_b32 v{hT}, 4, v{vL}"); a(f"v_and_b32 v{hT+2}, 15, v{vL}")
        a(f"v_mul_u32_u24 v{hT+2}, 144, v{hT+2}"); a(f"v_lshl_add_u32 v{hT+2}, v{hT}, 4, v{hT+2}"); a(f"v_add_u32 v{tWr}, s{sTB}, v{hT+2}")
        a(f"v_bfe_u32 v{hT+2}, v{vL}, 2, 2"); a(f"v_lshl_add_u32 v{hT+2}, v{hT}, 3, v{hT+2}"); a(f"v_lshlrev_b32 v{hT+2}, 7, v{hT+2}")
        if not ymode:
            a(f"v_and_b32 v{hT+3}, 3, v{vL}"); a(f"v_lshl_add_u32 v{hT+2}, v{hT+3}, 3, v{hT+2}")
        else:
            a(f"v_and_b32 v{hT+3}, 1, v{vL}"); a(f"v_lshl_add_u32 v{hT+2}, v{hT+3}, 3, v{hT+2}")
            a(f"v_and_b32 v{hT+3}, 2, v{vL}"); a(f"v_lshl_add_u32 v{hT+2}, v{hT+3}, 5, v{hT+2}")
        a(f"v_add_u32 v{tTr}, s{sTB}, v{hT+2}")
    def tr_load(srd_, soff, Ps, sc):
        a(f"s_add_u32 m0, s{sTB}, 128")
        for b in range(8):
            a(f"buffer_load_dwordx4 v{tSrc}, s[{srd_}:{srd_+3}], s{soff} offen {sc} lds")
            if b < 7: a("s_add_u32 m0, m0, 1024"); a(f"s_add_u32 s{soff}, s{soff}, {8*Ps}")
    def tr_read(buf, odd, xs):
        for X in range(4):
            for Y in range(2):
                for t in range(2):
                    a(f"ds_read_b64_tr_b16 {v(buf+8*X+4*Y+2*t,2)}, v{tTr} offset:{128+(32*Y+4*t-odd)*128+xs*X}")
    def tr_mid(buf):
        for X in range(4):
            for Y in range(2): a(f"ds_write_b128 v{tWr}, {v(buf+8*X+4*Y,4)} offset:{2304*X+64*Y}")
        a("s_waitcnt lgkmcnt(0)")
        for b in range(8): a(f"ds_read_b128 {v(buf+4*b,4)}, v{tRd} offset:{1152*b}")
    def tr_store(buf, srd_, soff, Pd, sc, wait):
        for b in range(8):
            if wait: a(f"s_waitcnt lgkmcnt({7-b})")
            a(f"buffer_store_dwordx4 {v(buf+4*b,4)}, v{tDst}, s[{srd_}:{srd_+3}], s{soff} offen {sc}")
            if b < 7: a(f"s_add_u32 s{soff}, s{soff}, {8*Pd}")
    a("L_h_tr:")
    if prof: np_["h"] = 2
    a(f"s_cmp_eq_u32 s{sS}, 2"); a(f"s_cselect_b32 s{sT3}, 3, 1")
    a("s_waitcnt vmcnt(0)")
    stamp("h")
    a("L_tr_go:")
    u_a(TV)
    a("s_waitcnt lgkmcnt(0)")
    u_b(TV)
    Lg2 = lab("g2")
    if opt.get("trstore", 7) >= 0:
        a(f"s_cmp_eq_u32 s{sS}, 2"); a(f"s_cbranch_scc1 {Lg2}")
        hl_wait(opt.get("trstore", 7))
        a(f"{Lg2}:")
    a("s_waitcnt lgkmcnt(0)")
    stamp("h")
    u_c(TV)
    for x in (tTr, tWr, tRd): a(f"v_subrev_u32 v{x}, {4*KRP}, v{x}")
    a(f"s_add_u32 s{sUD}, s{sUD}, {64*UTP}")
    a(f"s_sub_u32 s{sT3}, s{sT3}, 1"); a(f"s_cmp_lg_u32 s{sT3}, 0")
    a("s_nop 1")
    a("s_cbranch_scc1 L_tr_go")
    tagfix()
    a("s_waitcnt vmcnt(0)")
    publish(hT, WS_FU, sH)
    stamp("h")
    a("L_h_trskip:")
    pre_b1()
    a("s_barrier")
    post_b1()
    a(f"s_mov_b32 s{sC}, 1")
    a("L_h_loop:")
    ring_dma(sH, hDma)
    Lw = lab("nw")
    a(f"s_cmp_eq_u32 s{sC}, 6"); a(f"s_cbranch_scc1 {Lw}")
    wo_step()
    a(f"{Lw}:")
    a("s_waitcnt vmcnt(0)")
    a("s_barrier")
    a(f"s_add_u32 s{sC}, s{sC}, 1"); a(f"s_cmp_lt_u32 s{sC}, 7"); a("s_cbranch_scc1 L_h_loop")
    tag_advance()
    a(f"s_mul_i32 s{sCt}, s{sS}, 3"); a(f"s_add_u32 s{sCt}, s{sCt}, s{sH}")
    a(f"s_cmp_eq_u32 s{sH}, 3"); a(f"s_cselect_b32 s{sT}, 2, 0"); a(f"s_cmp_gt_u32 s{sT}, s{sS}")
    a("s_cbranch_scc1 L_h_end")
    a(f"s_mul_i32 s{sTB}, s{sH}, 9216"); a(f"s_add_u32 s{sTB}, s{sTB}, {L_KR}")
    a(f"s_cmp_ge_u32 s{sH}, 2"); a(f"s_cselect_b32 s{sT}, {LDS_TOTAL}, 0"); a(f"s_sub_u32 s{sTB}, s{sTB}, s{sT}")
    tr_addr(4096, 2560, True)
    srd(a, sA, pOut, 2048*2560)
    a(f"v_lshrrev_b32 v{hT+4}, 2, v{vL}"); a(f"v_lshlrev_b32 v{hT+4}, 5, v{hT+4}"); a(f"v_and_b32 v{hT+5}, 3, v{vL}")
    a(f"v_add_u32 v{hT+4}, v{hT+4}, v{hT+5}"); a(f"v_lshlrev_b32 v{hT+4}, 2, v{hT+4}")
    a(f"s_lshl_b32 s{sT5}, s{sCt}, 11"); a(f"s_add_u32 s{sT5}, s{sT5}, {WS_FY}")
    poll(hT, hT+4, f"s{sT5}", sleep=opt.get("psleep", 8))
    stamp("h")
    a(f"s_lshl_b32 s{sT3}, s{sCt}, 18"); a(f"s_lshl_b32 s{sT}, s{sG}, 7"); a(f"s_add_u32 s{sT3}, s{sT3}, s{sT}"); a(f"s_add_u32 s{sT3}, s{sT3}, {WS_YT}")
    tr_load(sWS, sT3, 4096, "sc1")
    a(f"s_mul_i32 s{sT3}, s{sG}, {64*2560}"); a(f"s_lshl_b32 s{sT}, s{sCt}, 7"); a(f"s_add_u32 s{sT3}, s{sT3}, s{sT}"); a(f"s_add_u32 s{sT3}, s{sT3}, 1280")
    a("s_waitcnt vmcnt(0)")
    tr_read(TV, 0, 16)
    a("s_waitcnt lgkmcnt(0)")
    tr_mid(TV)
    tr_store(TV, sA, sT3, 2560, "", True)
    if prof:
        stamp("h"); a("s_waitcnt vmcnt(0)"); stamp("h")
    a("L_h_end:")
    prof_store("h", hT)
    a("L_end:")
    a("s_endpgm")
    nv = max(hi_a, HK.hi, HC.hi, HT.hi)
    return a, nv

HDR = open("cdna_kernels/" + NAME + ".s.ref").read().split("; @launch")[0] if os.path.exists("cdna_kernels/" + NAME + ".s.ref") else ""
def build(path, prof=False, opt=None, verbose=False):
    a, nv = gen(prof, opt)
    lines = hz.fix(a.lines, verbose)
    body = "\n".join(lines) + "\n"
    k = NAME + "_kernel"
    nv = 256 if prof else max(nv, 129)
    txt = HDR + f"; @launch grid=(256,1,1) block=(512,1,1) lds={LDS_TOTAL}\n" + '.amdgcn_target "amdgcn-amd-amdhsa--gfx950"\n'
    txt += kernel_header(k) + body + "L_code_end:\n" + kernel_desc(k, nv)
    txt = txt.replace("CODE_BYTES", f"(L_code_end-{k}-64)&0xfffffffc")
    open(path, "w").write(txt)
    return nv
if __name__ == "__main__":
    nv = build("cdna_kernels/" + NAME + ".s", False, None, "-v" in sys.argv)
    print("vgprs", nv)
    build("k_prof.s", True)
    build("k_slow.s", False, {"forceslow": 1})
    import json
    for i, o in enumerate([x for x in sys.argv[1:] if x.startswith("{")]):
        build(f"k_prof{i+1}.s", True, json.loads(o))
```

```python
import sys, os
sys.path.insert(0, os.path.dirname(os.path.abspath(__file__)))
from asmlib import *
import hz
NAME = "concat_heads__grouped_kv_mqa__ssm_conv_s4__prompt"
WS_TAG=0; WS_FKV=0x1000; WS_FU=0x18000; WS_FY=0x8000; WS_FO=0x10000
WS_KV=0x20000; GRP=10496; CHUNK=21504
WS_O=0x400000; WS_OB=0x400000; WS_UT=0x300000; UTP=8448; WS_YT=0x900000; WS_PROF=0xC00000; WS_SIZE=0x1000000
L_X=21504; L_CNT=103424; L_WK=103552; L_SC=103552; SCP=8448; L_WO=2048; L_U=104448; UP=9216; L_Y=141312; L_C2=104448; L_XR=137344; L_KR=145408; KRP=4608; LDS_TOTAL=163840
sW=3; sG=4; sS=5; sTag=6; sT=7
sX=8; sWQ=12; P=16
pX,pWQ,pWK,pWV,pWO,pU,pAre,pAim,pBre,pBim,pCre,pCim,pLdt,pDs,pOut,pDbg,pWS = [16+2*i for i in range(17)]
sWS=52; sA=56
sT2=50; sT3=51; sC=60; sSlotN=61; sGo=62; sSlotD=63; sBound=64; sCh=65; sU0=66; sH=67; sT4=68; sT5=69
sPr=70
SPIN = 200000

def gen(prof=False, opt=None):
    opt = opt or {}
    a = Asm()
    uid = [0]
    def lab(p="L"):
        uid[0] += 1; return f"{p}_{uid[0]}"
    np_ = {"a": 0, "h": 0}
    phase = ["pro"]
    def stamp(role, extra=False):
        if not prof: return
        if role == "a" and opt.get("tailprof"):
            if phase[0] == "pro": return
        elif extra: return
        i = np_[role]; np_[role] += 1
        assert i < 14
        a(f"{'s_memtime' if opt.get('cyc') else 's_memrealtime'} s[{sPr+2*i}:{sPr+2*i+1}]")
    def prof_store(role, vt):
        if not prof: return
        a("s_waitcnt lgkmcnt(0)")
        a(f"s_lshl_b32 s{sT}, s2, 3"); a(f"s_add_u32 s{sT}, s{sT}, s{sW}"); a(f"s_lshl_b32 s{sT}, s{sT}, 6")
        a(f"s_add_u32 s{sT}, s{sT}, {WS_PROF}")
        a("s_mov_b64 exec, 1")
        a(f"v_mov_b32 v{vt+1}, 0")
        for i in range(np_[role]):
            a(f"v_mov_b32 v{vt}, s{sPr+2*i}")
            a(f"buffer_store_dword v{vt}, v{vt+1}, s[{sWS}:{sWS+3}], s{sT} offen offset:{4*i}")
        a("s_waitcnt vmcnt(0)")
    def poll(vP, vOff, soff, n=1, sleep=0):
        L = lab("poll"); D = lab("pdone")
        a(f"s_mov_b32 s{sBound}, {SPIN}")
        if sleep:
            L0 = lab("poll0"); a(f"s_branch {L0}")
        a(f"{L}:")
        if sleep:
            a(f"s_sleep {sleep}"); a(f"{L0}:")
        a(f"buffer_load_dword{'' if n==1 else 'x'+str(n)} {v(vP,n)}, v{vOff}, s[{sWS}:{sWS+3}], {soff} offen sc1")
        a(f"s_sub_u32 s{sBound}, s{sBound}, 1")
        a(f"s_cbranch_scc1 {D}")
        a("s_waitcnt vmcnt(0)")
        if n == 4:
            for i in range(4): a(f"v_xor_b32 v{vP+i}, s{sTag}, v{vP+i}")
            a(f"v_or3_b32 v{vP}, v{vP}, v{vP+1}, v{vP+2}")
            a(f"v_or_b32 v{vP}, v{vP}, v{vP+3}")
            a(f"v_cmp_ne_u32 vcc, 0, v{vP}")
        else:
            a(f"v_cmp_ne_u32 vcc, s{sTag}, v{vP}")
        a(f"s_cbranch_vccnz {L}")
        a(f"{D}:")
    def publish(vt, base, widx):
        a(f"s_lshl_b32 s{sT}, s2, 7"); a(f"s_lshl_b32 s{sT2}, s{widx}, 2"); a(f"s_add_u32 s{sT}, s{sT}, s{sT2}")
        a(f"s_add_u32 s{sT}, s{sT}, {base}")
        a(f"v_mov_b32 v{vt}, s{sTag}")
        a("s_mov_b64 exec, 1")
        a(f"buffer_store_dword v{vt}, off, s[{sWS}:{sWS+3}], s{sT} sc1")
        a("s_mov_b64 exec, -1")
    def ring_dma(wreg, vDma):
        for k in range(2):
            Lk = lab("dma")
            if k == 1:
                a(f"s_cmp_ge_u32 s{wreg}, 3"); a(f"s_cbranch_scc1 {Lk}")
            a(f"s_mul_i32 s{sT}, s{wreg}, 3072")
            if k: a(f"s_add_u32 s{sT}, s{sT}, {4*3072}")
            a(f"s_add_u32 m0, s{sT}, s{sSlotD}")
            a(f"s_add_u32 s{sT}, s{sT}, s{sGo}")
            for i in range(3):
                a(f"buffer_load_dwordx4 v{vDma}, s[{sWS}:{sWS+3}], s{sT} offen offset:{i*1024} sc1 lds")
            if k == 1: a(f"{Lk}:")
        a(f"s_add_u32 s{sGo}, s{sGo}, {CHUNK}")
        a(f"s_cmp_eq_u32 s{sGo}, {WS_KV+8*CHUNK}")
        a(f"s_cselect_b32 s{sGo}, {WS_KV}, s{sGo}")
        a(f"s_xor_b32 s{sSlotD}, s{sSlotD}, {CHUNK}")
    def wpattern(vP, vL, vt, perm):
        for p in range(5):
            a(f"v_add_u32 v{vt}, {64*p}, v{vL}")
            a(f"v_mul_u32_u24 v{vt+1}, 205, v{vt}")
            a(f"v_lshrrev_b32 v{vt+1}, 11, v{vt+1}")
            a(f"v_mul_u32_u24 v{vt+2}, 10, v{vt+1}")
            a(f"v_sub_u32 v{vt}, v{vt}, v{vt+2}")
            if perm:
                a(f"v_lshrrev_b32 v{vt+2}, 1, v{vt+1}")
                a(f"v_and_b32 v{vt+2}, 4, v{vt+2}")
                a(f"v_xor_b32 v{vt+1}, v{vt+1}, v{vt+2}")
            a(f"v_mul_u32_u24 v{vt+1}, 80, v{vt+1}")
            a(f"v_add_u32 v{vt}, v{vt}, v{vt+1}")
            if 0 < p < 4: a(f"v_subrev_u32 v{vt}, {64*p}, v{vt}")
            a(f"v_lshlrev_b32 v{vP+p}, 4, v{vt}")
    def wkstep_dma(vP, srd_, soff):
        for p in range(4):
            a(f"buffer_load_dwordx4 v{vP+p}, s[{srd_}:{srd_+3}], s{soff} offen offset:{p*1024} lds")
        a("s_add_u32 m0, m0, 4096")
        a(f"buffer_load_dwordx4 v{vP+4}, s[{srd_}:{srd_+3}], s{soff} offen lds")
        a("s_add_u32 m0, m0, 1024")

    if prof:
        a(f"{'s_memtime' if opt.get('cyc') else 's_memrealtime'} s[{sPr}:{sPr+1}]"); np_["a"] = np_["h"] = 1
    a("s_cmp_ge_u32 s2, 256")
    a("s_cbranch_scc1 L_end")
    a("s_load_dwordx16 s[16:31], s[0:1], 0")
    a("s_load_dwordx16 s[32:47], s[0:1], 64")
    a("s_load_dwordx2 s[48:49], s[0:1], 128")
    vL = 1
    a("v_lshrrev_b32 v2, 6, v0")
    a(f"v_and_b32 v{vL}, 63, v0")
    a(f"v_readfirstlane_b32 s{sW}, v2")
    if opt.get("codepf", 1):
        a("s_getpc_b64 s[50:51]")
        if opt.get("codepf", 1) == 1:
            a("s_lshr_b32 s4, s2, 3"); a("s_lshl_b32 s4, s4, 7")
            a("v_lshl_add_u32 v3, v2, 12, s4")
            a(f"v_lshl_add_u32 v3, v{vL}, 15, v3")
            a("v_min_u32 v3, CODE_BYTES, v3")
            a("s_mov_b64 exec, 3")
            a("global_load_dword v4, v3, s[50:51]")
            a("s_mov_b64 exec, -1")
        else:
            a("v_lshlrev_b32 v3, 7, v0")
            a("v_min_u32 v3, CODE_BYTES, v3")
            a("global_load_dword v4, v3, s[50:51]")
    a(f"s_and_b32 s{sG}, s2, 31")
    a(f"s_lshr_b32 s{sS}, s2, 5")
    a("v_mov_b32 v5, 0"); a("v_lshlrev_b32 v6, 2, v0"); a("v_and_b32 v6, 127, v6"); a(f"v_add_u32 v6, {L_CNT}, v6")
    a("ds_write_b32 v6, v5")
    a(f"s_cmp_ge_u32 s{sW}, 4")
    a("s_cbranch_scc1 L_helper")
    NPF = 1 if opt.get("codepf", 1) else 0

    R = Regs(5)
    vT = R(4, 4); vDma = R(); vCnt = R(); vOne = R(); vPo = R(); vPv = R()
    vX0 = R(); vX1 = R(); vP = R(5)
    a(f"v_lshrrev_b32 v{vT}, 3, v{vL}")
    a(f"v_lshrrev_b32 v{vT+1}, 4, v{vL}")
    a(f"v_xor_b32 v{vT+1}, v{vT+1}, v{vL}")
    a(f"v_and_b32 v{vT+1}, 7, v{vT+1}")
    a(f"v_mul_u32_u24 v{vT}, 80, v{vT}")
    a(f"v_add_u32 v{vT}, v{vT}, v{vT+1}")
    a(f"v_lshlrev_b32 v{vX0}, 4, v{vT}")
    a(f"v_xor_b32 v{vX1}, 64, v{vX0}")
    a(f"v_add_u32 v{vX1}, 10240, v{vX1}")
    a(f"s_lshl_b32 s{sT}, s{sG}, 2"); a(f"s_add_u32 s{sT}, s{sT}, s{sW}"); a(f"s_mul_i32 s{sT2}, s{sT}, 20480")
    a(f"s_mul_i32 s{sT3}, s{sW}, 20480"); a(f"s_add_u32 s{sT3}, s{sT3}, {L_X}")
    a(f"v_lshlrev_b32 v{vDma}, 4, v{vL}")
    sI = sCh; sXo = sU0; sWo = sH
    a(f"s_lshr_b32 s{sI}, s{sG}, 3"); a(f"s_add_u32 s{sI}, s{sI}, s{sS}")
    if not opt.get("rot", 1): a(f"s_mov_b32 s{sI}, 0")
    for _ in range(2):
        a(f"s_sub_u32 s{sC}, s{sI}, 5"); a(f"s_cselect_b32 s{sI}, s{sI}, s{sC}")
    a(f"s_mul_i32 s{sT4}, s{sS}, 160")
    a(f"s_lshl_b32 s{sXo}, s{sI}, 8"); a(f"s_add_u32 s{sXo}, s{sXo}, s{sT2}"); a(f"s_add_u32 s{sC}, s{sT2}, 1280")
    a(f"s_mul_i32 s{sSlotN}, s{sW}, 6144"); a(f"s_add_u32 s{sSlotN}, s{sSlotN}, {L_XR}")
    wpattern(vP, vL, vT, True)
    a("s_waitcnt lgkmcnt(0)")
    srd(a, sX, pX, 2048*1280)
    srd(a, sWQ, pWQ, 640*1280)
    a(f"s_cmp_ge_u32 s{sS}, 2")
    a("s_barrier")
    stamp("a")
    Lnokv = lab("nokv"); Lw1 = lab("w1")
    a(f"s_cbranch_scc1 {Lnokv}")
    def xpieces(js, soff):
        for j in js:
            a(f"buffer_load_dwordx4 v{vX0}, s[{sX}:{sX+3}], s{soff} offen offset:{128*j} lds")
            a("s_add_u32 m0, m0, 1024")
            a(f"buffer_load_dwordx4 v{vX1}, s[{sX}:{sX+3}], s{soff} offen offset:{128*j} lds")
            if j != js[-1]: a("s_add_u32 m0, m0, 896")
    NX0 = opt.get("nx0", 6)
    a(f"s_mov_b32 m0, s{sT3}")
    NXA = opt.get("nxa", 3)
    xpieces(list(range(NXA)), sT2)
    a(f"s_mov_b32 s{sSlotN}, s{sT3}")
    a(f"s_branch {Lw1}")
    a(f"{Lnokv}:")
    sXe = sC; sXr = sSlotN
    def gx(js):
        for j in js:
            a(f"s_add_u32 m0, s{sXr}, {2048*(j%3)}")
            xpieces([0], sXo)
            a(f"s_add_u32 s{sXo}, s{sXo}, 128"); a(f"s_cmp_eq_u32 s{sXo}, s{sXe}"); a(f"s_cselect_b32 s{sXo}, s{sT2}, s{sXo}")
    def gw(i):
        a(f"s_lshl_b32 s{sWo}, s{sI}, 2"); a(f"s_add_u32 s{sWo}, s{sWo}, s{sW}"); a(f"s_mul_i32 s{sWo}, s{sWo}, 40960"); a(f"s_add_u32 s{sWo}, s{sWo}, s{sT4}")
        if i == 0: a(f"s_mul_i32 m0, s{sW}, 5120")
        else: a(f"s_add_u32 m0, s{sT3}, {5120*(i-1)}")
        wkstep_dma(vP, sWQ, sWo)
        a(f"s_add_u32 s{sI}, s{sI}, 1"); a(f"s_cmp_eq_u32 s{sI}, 5"); a(f"s_cselect_b32 s{sI}, 0, s{sI}")
    gx([0, 1, 2])
    if opt.get("w0early", 0): gw(0)
    a(f"{Lw1}:")
    a(f"s_load_dword s{sTag}, s[{pWS}:{pWS+1}], {WS_TAG}")
    srd(a, sWS, pWS, WS_SIZE)
    vXr = R(2); vAB = R(2); vE = R(2); vAB2 = R(2); vE2 = R(2)
    a(f"v_and_b32 v{vT}, 15, v{vL}")
    a(f"v_lshrrev_b32 v{vT+1}, 4, v{vL}")
    a(f"v_lshrrev_b32 v{vT+2}, 1, v{vT}")
    a(f"v_xor_b32 v{vT+2}, v{vT+2}, v{vT+1}")
    a(f"v_lshlrev_b32 v{vT+2}, 4, v{vT+2}")
    a(f"v_lshlrev_b32 v{vT}, 7, v{vT}")
    a(f"v_add3_u32 v{vXr}, v{vT}, v{vT+2}, s{sSlotN}")
    a(f"v_xor_b32 v{vXr+1}, 64, v{vXr}")
    a(f"v_bfe_u32 v{vT}, v{vL}, 2, 2")
    a(f"v_lshl_add_u32 v{vT}, v{vT+1}, 3, v{vT}")
    vKM = 19; vKE = 25; assert vP == 20 and vXr == 26
    a(f"v_mul_u32_u24 v{vT+2}, 40, v{vT}")
    a(f"v_add_u32 v{vKE}, {L_WK+32}, v{vT+2}")
    a(f"v_and_b32 v{vT+3}, 3, v{vL}")
    a(f"v_lshl_add_u32 v{vT+2}, v{vT+3}, 3, v{vT+2}")
    a(f"v_add_u32 v{vKM}, {L_WK}, v{vT+2}")
    a(f"v_and_b32 v{vT+2}, 1, v{vT+1}")
    a(f"v_lshl_add_u32 v{vT}, v{vT+2}, 2, v{vT}")
    a(f"v_xor_b32 v{vT+2}, 4, v{vT}")
    a(f"v_mul_u32_u24 v{vT}, 160, v{vT}")
    a(f"v_mul_u32_u24 v{vT+2}, 160, v{vT+2}")
    a(f"v_mul_u32_u24 v{vT+3}, 40, v{vT+3}")
    a(f"v_add3_u32 v{vE2}, v{vT}, v{vT+3}, 32"); a(f"v_add3_u32 v{vE2+1}, v{vT+2}, v{vT+3}, 32")
    a(f"v_and_b32 v{vT+3}, 1, v{vL}")
    a(f"v_mul_u32_u24 v{vT+3}, 40, v{vT+3}")
    a(f"v_and_b32 v{vT+1}, 2, v{vL}")
    a(f"v_lshl_add_u32 v{vT+3}, v{vT+1}, 3, v{vT+3}")
    a(f"v_add_u32 v{vAB2}, v{vT}, v{vT+3}"); a(f"v_add_u32 v{vAB2+1}, v{vT+2}, v{vT+3}")
    for x, y in ((vAB2, vAB), (vAB2+1, vAB+1), (vE2, vE), (vE2+1, vE+1)):
        a(f"v_add_u32 v{y}, 51200, v{x}")
    vSig = 7
    a(f"v_mov_b32 v{vCnt}, {L_CNT}"); a(f"v_mov_b32 v{vOne}, 1")
    a(f"v_min_u32 v{vSig}, 1, v{vL}"); a(f"v_mul_u32_u24 v{vSig}, {LDS_TOTAL-L_CNT}, v{vSig}"); a(f"v_add_u32 v{vSig}, {L_CNT}, v{vSig}")
    a(f"s_and_b32 s{sT}, s{sG}, 28"); a(f"s_add_u32 s{sT}, s{sT}, s{sW}")
    a(f"v_mov_b32 v{vT+1}, s{sT}")
    a(f"v_and_b32 v{vT+2}, 4, v{vL}"); a(f"v_lshl_add_u32 v{vT+1}, v{vT+2}, 3, v{vT+1}")
    a(f"v_lshlrev_b32 v{vT+1}, 5, v{vT+1}"); a(f"v_and_b32 v{vT+2}, 3, v{vL}"); a(f"v_add_u32 v{vT+1}, v{vT+1}, v{vT+2}")
    a(f"v_lshlrev_b32 v{vPo}, 2, v{vT+1}"); a(f"v_add_u32 v{vPo}, {WS_FKV}, v{vPo}")
    def tagfix(): a(f"s_mul_i32 s{sTag}, s{sTag}, 1664525"); a(f"s_add_u32 s{sTag}, s{sTag}, 1013904223")
    def lsig(k):
        a(f"ds_add_u32 v{vSig}, v{vOne} offset:{4*k}")
    def lwait(k, n=4):
        L = lab("ls"); D = lab("lsd")
        a(f"s_mov_b32 s{sBound}, {SPIN*4}")
        a(f"{L}:")
        a(f"ds_read_b32 v{vT}, v{vCnt} offset:{4*k}")
        a(f"s_sub_u32 s{sBound}, s{sBound}, 1"); a(f"s_cbranch_scc1 {D}")
        a("s_waitcnt lgkmcnt(0)")
        a(f"v_cmp_gt_u32 vcc, {n}, v{vT}")
        a(f"s_cbranch_vccnz {L}")
        a(f"{D}:")
    XF = R(80, 4); ACC = R(20, 4); WF = [R(20, 4), R(20, 4), R(20, 4)]
    assert R.p == 196 and ACC == 116
    RA = Regs(20)
    NB = 4
    Q1 = [RA(4, 4) for _ in range(2)]; Q2a = [RA(2) for _ in range(2)]; Q2b = [RA(2) for _ in range(2)]
    C = [RA(16, 4) for _ in range(2)]
    K1 = [RA(4, 4) for _ in range(2)]; K2 = [RA(4, 4) for _ in range(2)]
    V0 = [RA(4, 4) for _ in range(2)]; V1 = [RA(4, 4), 236]
    assert RA.p <= ACC
    S = [140+16*i for i in range(NB)]; O = [204, 220]
    vK0, vV0, vK, vV, vIdx = range(240, 245); RA.hi = 245
    vLow = 245
    a(f"v_mov_b32 v{vLow}, 0x30800000")
    a(f"v_mov_b32 v{vIdx}, 0xdddd")
    a(f"v_mov_b32 v{vK0}, v{vDma}")
    a(f"v_and_b32 v{vT+2}, 31, v{vL}"); a(f"v_min_u32 v{vT+2}, 20, v{vT+2}"); a(f"v_lshlrev_b32 v{vT+2}, 4, v{vT+2}")
    a(f"v_lshrrev_b32 v{vT+3}, 5, v{vL}"); a(f"v_mul_u32_u24 v{vT+3}, 336, v{vT+3}")
    a(f"v_add_u32 v{vV0}, v{vT+2}, v{vT+3}"); a(f"v_add_u32 v{vV0}, 5120, v{vV0}")
    a("s_mov_b32 exec_lo, 0xeef00000"); a("s_mov_b32 exec_hi, 0xeef00000")
    a(f"v_mov_b32 v{vV0}, {LDS_TOTAL}")
    a("s_mov_b64 exec, -1")
    a(f"v_mov_b32 v{vK}, v{vK0}"); a(f"v_mov_b32 v{vV}, v{vV0}")
    for i in range(196, 240): a(f"v_mov_b32 v{i}, 0")
    import struct
    cbits = struct.unpack("<I", struct.pack("<f", (20**-0.5)*1.4426950408889634))[0]
    if opt.get("qprio", 1): a("s_setprio 2")
    def xrd(k, off): return f"ds_read_b128 {v(XF+4*k,4)}, v{vXr+(k&1)} offset:{off}"
    class Q:
        def __init__(self, name, cap_): self.q = []; self.name = name; self.cap = cap_
        def add(self, tag, n=1): self.q += [tag]*n
        def wait(self, *tags):
            idx = [i for i, t in enumerate(self.q) if t in tags]
            if not idx: return
            n = len(self.q) - 1 - max(idx)
            a(f"s_waitcnt {self.name}({min(n, self.cap)})")
            self.q = self.q[len(self.q)-min(n, self.cap):]
    def xstream(mm, post, DS):
        for j in range(11):
            n = 0
            if j < 10:
                a(f"s_waitcnt vmcnt({2*(min(10, j+NX0)-j-1)})")
                a(xrd(2*j, 2048*j)); a(xrd(2*j+1, 2048*j)); DS.add(("x", j), 2)
                if j+NX0 < 10:
                    a(f"s_add_u32 m0, s{sT3}, {1920*(j+NX0)}")
                    xpieces([j+NX0], sXo)
            if j >= 1:
                DS.wait(("x", j-1), ("k", 2*j-2), ("k", 2*j-1))
                mm(2*j-2); mm(2*j-1)
                post(j)
    def qrd(addr, buf):
        hi = addr >= 51200
        off = addr - (51200 if hi else 0)
        r = []
        for t5 in range(5):
            for t in range(2):
                if t5 < 4: r.append(f"ds_read_b64_tr_b16 {v(buf+4*t5+2*t,2)}, v{(vAB if hi else vAB2)+t} offset:{off+80*(t5>>1)+8*(t5&1)}")
                else: r.append(f"ds_read_b64_tr_b16 {v(buf+16+2*t,2)}, v{(vE if hi else vE2)+t} offset:{off}")
        return r
    def cap(fn):
        keep = a.lines; a.lines = []
        fn()
        got = a.lines; a.lines = keep
        gr = [[]]
        for l in got:
            gr[-1].append(l)
            if "exec_hi, -1" in l and len(gr) > 1 and len(gr[-1]) == 1: gr[-2].append(gr[-1].pop())
            if "buffer_load" in l: gr.append([])
        if len(gr) > 1:
            t_ = gr.pop(); gr[-1] += t_
        return gr
    spins = []
    def qpipe(ks, VM, dma, hook):
        DS = Q("lgkmcnt", 15)
        for n in range(2):
            for x in qrd(ks[n][1], WF[n]): a(x)
            DS.add(("w", n), 10)
        for n, (k, _) in enumerate(ks):
            buf = WF[n % 3]
            nx = qrd(ks[n+2][1], WF[(n+2) % 3]) if n+2 < len(ks) else []
            hook(n, DS)
            DS.wait(("w", n), ("x", k//2))
            chk = n % 4 == 2 and nx
            per = [0, 0, 4, 3, 3] if chk else [2]*5
            for t5 in range(5):
                if not opt.get("noq"): a(f"v_mfma_f32_16x16x32_bf16 {v(ACC+4*t5,4)}, {v(buf+4*t5,4)}, {v(XF+4*k,4)}, {'0' if n==0 else v(ACC+4*t5,4)}")
                if chk and t5 == 2:
                    Ls = lab("spin"); Lb = lab("back")
                    DS.wait("chk")
                    a(f"v_cmp_gt_u32 vcc, 4, v{vT}"); a(f"s_cbranch_vccnz {Ls}"); a(f"{Lb}:")
                    spins.append((Ls, Lb, CW[n//4+1]))
                for x in nx[sum(per[:t5]):sum(per[:t5+1])]: a(x); DS.add(("w", n+2))
                for tag, dep, lines in dma.get(5*n+t5, []):
                    if dep is not None: DS.wait(dep)
                    for x in lines: a(x)
                    VM.add(tag)
            if n % 4 == 1 and n+3 < len(ks):
                a(f"ds_read_b32 v{vT}, v{vCnt} offset:{4*CW[n//4+1]}"); DS.add("chk")
    def pload(): a(f"buffer_load_dword v{vPv}, v{vPo}, s[{sWS}:{sWS+3}], 0 offen sc1")
    def gate():
        a(f"v_cmp_ne_u32 vcc, s{sTag}, v{vPv}")
        a(f"s_mov_b64 s[{sA}:{sA+1}], s[{sWS}:{sWS+1}]"); a(f"s_mov_b32 s{sA+3}, s{sWS+3}")
        a("s_cmp_eq_u64 vcc, 0")
        a(f"s_cselect_b32 s{sA+2}, s{sWS+2}, 0"); a(f"s_cselect_b32 s{sSlotD}, 1, 0")
    def own_dma(slot, sWS=sWS):
        a(f"s_lshr_b32 s{sGo}, s{sG}, 2"); a(f"s_mul_i32 s{sGo}, s{sGo}, {CHUNK}"); a(f"s_add_u32 s{sGo}, s{sGo}, {WS_KV}")
        a(f"s_lshr_b32 s{sT}, s{sW}, 1"); a(f"s_mul_i32 s{sT}, s{sT}, {GRP}"); a(f"s_and_b32 s{sT2}, s{sW}, 1")
        for mul, add, parts in ((2048, 0, [(0, None), (1024, None)]), (512, 4096, [(0, (-1, 0))]), (2688, 5120, [(0, None), (1024, None), (2048, (-1, 0xff))])):
            a(f"s_mul_i32 s{sT5}, s{sT2}, {mul}"); a(f"s_add_u32 s{sT5}, s{sT5}, s{sT}")
            a(f"s_add_u32 m0, s{sT5}, {slot+add}")
            a(f"s_add_u32 s{sT5}, s{sT5}, s{sGo}")
            if add: a(f"s_add_u32 s{sT5}, s{sT5}, {add}")
            for off, ex in parts:
                if ex: a(f"s_mov_b32 exec_hi, {ex[1]}")
                a(f"buffer_load_dwordx4 v{vDma}, s[{sWS}:{sWS+3}], s{sT5} offen offset:{off} sc1 lds")
                if ex: a("s_mov_b32 exec_hi, -1")
    CW = [1, 2, 5, 6, 7]
    a(f"s_mov_b32 s{sSlotD}, 0")
    Lq = lab("qonly"); Lj = lab("join")
    a(f"s_cmp_ge_u32 s{sS}, 2")
    a(f"s_cbranch_scc1 {Lq}")
    KW = ACC + 12; NKW = (196 - KW)//8
    def kvrd(k):
        b = KW + 8*(k % NKW)
        return [f"ds_read_b64_tr_b16 {v(b+2*t,2)}, v{vKM} offset:{1280*k+160*t}" for t in range(2)] + \
               [f"ds_read_b64_tr_b16 {v(b+4+2*t,2)}, v{vKE} offset:{1280*k+160*t}" for t in range(2)]
    a(f"s_mov_b32 s{sXo}, s{sT2}")
    a(f"s_add_u32 m0, s{sT3}, {1920*NXA}")
    xpieces(list(range(NXA, NX0)), sXo)
    a(f"s_lshr_b32 s{sT}, s{sG}, 2"); a(f"s_mul_i32 s{sT}, s{sT}, {CHUNK}")
    a(f"s_bfe_u32 s{sT2}, s{sG}, 0x10001"); a(f"s_mul_i32 s{sT2}, s{sT2}, {GRP}")
    a(f"s_add_u32 s{sT}, s{sT}, s{sT2}"); a(f"s_add_u32 s{sGo}, s{sT}, {WS_KV}")
    a(f"s_and_b32 s{sT}, s{sG}, 1"); a(f"s_lshl_b32 s{sT}, s{sT}, 1"); a(f"s_lshr_b32 s{sT2}, s{sW}, 1"); a(f"s_add_u32 s{sC}, s{sT}, s{sT2}")
    a(f"s_and_b32 s{sT5}, s{sW}, 1")
    lwait(0)
    tagfix()
    stamp("a")
    NPRE = opt.get("npre", 4)
    for k in range(NPRE):
        for x in kvrd(k): a(x)
    def wsig():
        a(f"s_lshl_b32 s{sH}, s{sW}, 2"); a(f"v_add_u32 v{vT}, s{sH}, v{vCnt}")
        a("s_mov_b64 exec, 1"); a(f"ds_add_u32 v{vT}, v{vOne} offset:32"); a("s_mov_b64 exec, -1")
    def kvproj(isK):
        D1 = ACC; D2 = ACC+4
        DS = Q("lgkmcnt", 15)
        for k in range(NPRE): DS.add(("k", k), 4)
        def mm(k):
            b = KW + 8*(k % NKW)
            nx = kvrd(k+NPRE) if k+NPRE < 20 else []
            for D, o in ((D1, 0), (D2, 4)):
                A_, B_ = v(b+o,4), v(XF+4*k,4)
                if not isK: A_, B_ = B_, A_
                a(f"v_mfma_f32_16x16x32_bf16 {v(D,4)}, {A_}, {B_}, {'0' if k==0 else v(D,4)}")
                for x in nx[o//2:o//2+2]: a(x); DS.add(("k", k+NPRE))
        def post(j):
            if j == opt.get("kvt", -1): wsig(); DS.add("sig")
        xstream(mm, post, DS)
    LV = lab("isv"); LKd = lab("kvdone")
    a(f"s_cmp_eq_u32 s{sS}, 1"); a(f"s_cbranch_scc1 {LV}")
    def pack_swap():
        D1 = ACC; D2 = ACC+4
        a(f"v_cvt_pk_bf16_f32 v{ACC+8}, v{D1}, v{D1+1}"); a(f"v_cvt_pk_bf16_f32 v{ACC+9}, v{D1+2}, v{D1+3}")
        a(f"v_cvt_pk_bf16_f32 v{ACC+10}, v{D2}, v{D2+1}"); a(f"v_cvt_pk_bf16_f32 v{ACC+11}, v{D2+2}, v{D2+3}")
        a(f"v_permlane16_swap_b32 v{ACC+8}, v{ACC+10}")
        a(f"v_permlane16_swap_b32 v{ACC+9}, v{ACC+11}")
    a(f"v_and_b32 v{vT+2}, 15, v{vL}"); a(f"v_lshlrev_b32 v{vT+2}, 4, v{vT+2}")
    a(f"v_and_b32 v{vT+3}, 32, v{vL}"); a(f"v_lshl_add_u32 v{vT+3}, v{vT+3}, 4, v{vT+2}")
    a(f"s_lshl_b32 s{sT5}, s{sT5}, 8"); a(f"s_add_u32 s{sGo}, s{sGo}, s{sT5}")
    a(f"s_lshl_b32 s{sT}, s{sC}, 10"); a(f"s_add_u32 s{sT}, s{sT}, s{sGo}")
    a(f"s_lshr_b32 s{sT2}, s{sC}, 1"); a(f"s_lshl_b32 s{sT2}, s{sT2}, 9"); a(f"s_add_u32 s{sT2}, s{sT2}, s{sGo}")
    a(f"s_and_b32 s{sT5}, s{sC}, 1"); a(f"s_lshl_b32 s{sT5}, s{sT5}, 3"); a(f"s_add_u32 s{sT2}, s{sT2}, s{sT5}"); a(f"s_add_u32 s{sT2}, s{sT2}, 4096")
    kvproj(True)
    for i in range(8): a(f"v_mul_f32 v{ACC+i}, {cbits:#x}, v{ACC+i}")
    pack_swap()
    a("s_mov_b32 exec_lo, 0xffff"); a("s_mov_b32 exec_hi, 0xffff")
    a(f"buffer_store_dwordx4 {v(ACC+8,4)}, v{vT+3}, s[{sWS}:{sWS+3}], s{sT} offen sc1")
    a("s_mov_b32 exec_lo, 0xffff0000"); a("s_mov_b32 exec_hi, 0")
    a(f"buffer_store_dwordx2 {v(ACC+8,2)}, v{vT+2}, s[{sWS}:{sWS+3}], s{sT2} offen sc1")
    a(f"s_branch {LKd}")
    a(f"{LV}:")
    a(f"v_and_b32 v{vT+2}, 31, v{vL}"); a(f"v_lshlrev_b32 v{vT+2}, 4, v{vT+2}")
    a(f"v_lshrrev_b32 v{vT+3}, 5, v{vL}"); a(f"v_mul_u32_u24 v{vT+3}, 336, v{vT+3}"); a(f"v_add_u32 v{vT+3}, v{vT+3}, v{vT+2}")
    a(f"s_mul_i32 s{sT5}, s{sT5}, 672"); a(f"s_mul_i32 s{sT}, s{sC}, 1344"); a(f"s_add_u32 s{sT}, s{sT}, s{sT5}")
    a(f"s_add_u32 s{sT}, s{sT}, s{sGo}"); a(f"s_add_u32 s{sT}, s{sT}, 5120")
    kvproj(False)
    pack_swap()
    a("s_mov_b32 exec_lo, 0x100000"); a("s_mov_b32 exec_hi, 0x100000")
    for i in range(4): a(f"v_mov_b32 v{ACC+8+i}, 0x3f803f80")
    a("s_mov_b32 exec_lo, 0x1fffff"); a("s_mov_b32 exec_hi, 0x1fffff")
    a(f"buffer_store_dwordx4 {v(ACC+8,4)}, v{vT+3}, s[{sWS}:{sWS+3}], s{sT} offen sc1")
    a(f"{LKd}:")
    a("s_mov_b64 exec, -1")
    stamp("a")
    wsig()
    a("s_waitcnt vmcnt(0)")
    publish(vT, WS_FKV, sW)
    stamp("a")
    KVS = opt.get("kvs", 14)
    def kvslots(dma):
        for i_, gr in enumerate(cap(lambda: own_dma(0, sA))): dma.setdefault(5*KVS+3+2*i_, []).append(("kv", None, gr))
    def kvdone(DS):
        Lz = lab("z")
        DS.wait(("w", 19))
        a("s_waitcnt vmcnt(0)")
        a(f"s_cmp_eq_u32 s{sSlotD}, 0"); a(f"s_cbranch_scc1 {Lz}"); lsig(4); a(f"{Lz}:")
    def kvhook(n, DS):
        if n == 4: lsig(12); DS.add("sig")
        if n == 8: pload()
        if n == 12:
            stamp("a")
            lwait(12)
        if n == KVS: a("s_waitcnt vmcnt(0)"); gate()
        if n == 19: kvdone(DS)
    lwait(CW[0])
    dma = {}; kvslots(dma)
    qpipe([(16+w_, 5120*w_) if i == 0 else (4*w_+i-1, L_X + 5120*(4*w_+i-1)) for i in range(5) for w_ in range(4)], Q("vmcnt", 63), dma, kvhook)
    a(f"s_branch {Lj}")
    a(f"{Lq}:")
    if prof and not opt.get("tailprof"): np_["a"] -= 4
    def xget(js):
        for j in js:
            for t in range(2): a(xrd(2*j+t, 2048*(j%3)))
    VM = Q("vmcnt", 63)
    VM.add("x012", 6); VM.add("W0", 5)
    if not opt.get("w0early", 0): gw(0)
    gw(1); VM.add("W1", 5)
    VM.wait("x012"); xget([0, 1, 2]); a("s_waitcnt lgkmcnt(0)")
    stamp("a")
    tagfix()
    gx([3, 4, 5]); VM.add("x345", 6)
    VM.wait("W0"); lsig(CW[0])
    dma = {}
    pos = [0]; DP = opt.get("dp", 2)
    def put(tag, fn, start=0, dep=None):
        pos[0] = max(pos[0], start)
        for gr in cap(fn):
            dma.setdefault(pos[0], []).append((tag, dep, gr)); pos[0] += DP
    XG2 = opt.get("xg2", 5)
    put("W2", lambda: gw(2)); put("x678", lambda: gx([6, 7, 8]), 8, ("x", 5)); put("W3", lambda: gw(3))
    put("x9", lambda: gx([9]), 5*XG2+3, ("x", 6)); put("W4", lambda: gw(4)); put("pl", pload, 5*opt.get("plstep", 10))
    kvslots(dma)
    def qhook(n, DS):
        def get(js):
            xget(js)
            for j in js: DS.add(("x", j), 2)
        later = {t for sl, l in dma.items() if sl >= 5*n for t, _, _ in l}
        assert not (n == XG2 and "x678" in later) and not (n == 13 and "x9" in later) and not (n % 4 == 1 and f"W{n//4+1}" in later) and not (n == KVS and "pl" in later) and not (n == 19 and later)
        if n == 1: VM.wait("x345"); get([3, 4, 5])
        if n == XG2: VM.wait("x678"); get([6, 7, 8])
        if n == 13: VM.wait("x9"); get([9])
        if n % 4 == 1 and n < 16:
            VM.wait(f"W{n//4+1}"); lsig(CW[n//4+1]); DS.add("sig")
        if n in (4, 12, 16): stamp("a")
        if n == KVS: VM.wait("pl"); gate()
        if n == 15: DS.wait(("x", 9)); lsig(13); DS.add("sig")
        if n == 19: kvdone(DS)
    lwait(CW[0])
    qpipe([(4*i+w_, 5120*w_ if i == 0 else L_X + 20480*w_ + 5120*(i-1)) for i in range(5) for w_ in range(4)], VM, dma, qhook)
    a(f"{Lj}:")
    stamp("a")
    Lp4 = lab("p4")
    a(f"s_cmp_eq_u32 s{sSlotD}, 1"); a(f"s_cbranch_scc1 {Lp4}")
    poll(vPv, vPo, "0")
    own_dma(0)
    a("s_waitcnt vmcnt(0)")
    lsig(4)
    a(f"{Lp4}:")
    stamp("a")
    a("s_setprio 0")
    lwait(4, 8)
    a("s_setprio 2")
    a(f"ds_read_b128 {v(K1[0],4)}, v{vK}"); a(f"ds_read_b128 {v(K2[0],4)}, v{vK} offset:4096")
    a(f"ds_read_b128 {v(V0[0],4)}, v{vV}"); a(f"ds_read_b128 {v(V1[0],4)}, v{vV} offset:672")
    for j in range(2):
        for i in range(4): a(f"v_cvt_pk_bf16_f32 v{Q1[j]+i}, v{ACC+8*j+2*i}, v{ACC+8*j+2*i+1}")
    for i in range(2):
        a(f"v_cvt_pk_bf16_f32 v{Q2a[0]+i}, v{ACC+16+2*i}, v{ACC+17+2*i}")
        a(f"v_mov_b32 v{Q2a[1]+i}, 0"); a(f"v_mov_b32 v{Q2b[0]+i}, 0")
        a(f"v_mov_b32 v{Q2b[1]+i}, v{Q2a[0]+i}")
    for i in range(2):
        a(f"v_permlane32_swap_b32 v{Q2a[0]+i}, v{Q2a[1]+i}")
        a(f"v_permlane32_swap_b32 v{Q2b[0]+i}, v{Q2b[1]+i}")
    a(f"s_lshl_b32 s{sT}, s{sG}, 7"); a(f"s_add_u32 s{sT}, s{sT}, {WS_FO}")
    a(f"v_and_b32 v{vPo}, 7, v{vL}"); a(f"v_lshlrev_b32 v{vPo}, 12, v{vPo}"); a(f"v_add_u32 v{vPo}, s{sT}, v{vPo}")
    phase[0] = "tail"
    stamp("a")
    TPC = 8
    def rdK1(T):
        Tl = T % TPC
        return f"ds_read_b128 {v(K1[T%2],4)}, v{vK} offset:{(Tl//4)*GRP + (Tl%4)*1024}"
    def rdK2(T):
        Tl = T % TPC
        return f"ds_read_b128 {v(K2[(T//4)%2],4)}, v{vK} offset:{(Tl//4)*GRP+4096}"
    def rdV(T, sidx):
        Tl = T % TPC
        buf = (V0 if sidx == 0 else V1)[T%2]
        return f"ds_read_b128 {v(buf,4)}, v{vV} offset:{(Tl//4)*GRP+(Tl%4)*1344+sidx*672}"
    def qkA(n, cz=False):
        T, j = divmod(n, 2); t4 = T % 4
        q = Q2a[j] if t4 < 2 else Q2b[j]
        return f"v_mfma_f32_32x32x8_bf16 {v(S[n%NB],16)}, {v(K2[(T//4)%2]+2*(t4&1),2)}, {v(q,2)}, " + ("0" if cz else v(C[j],16))
    def qkB(n):
        T, j = divmod(n, 2)
        return f"v_mfma_f32_32x32x16_bf16 {v(S[n%NB],16)}, {v(K1[T%2],4)}, {v(Q1[j],4)}, {v(S[n%NB],16)}"
    def pv(n, sidx):
        T, j = divmod(n, 2)
        buf = (V0 if sidx == 0 else V1)[T%2]
        return f"v_smfmac_f32_32x32x32_bf16 {v(O[j],16)}, {v(buf,4)}, {v(S[n%NB]+8*sidx,8)}, v{vIdx}"
    def rowmax(Sj, dst, init=None):
        if init is None:
            a(f"v_max3_f32 v{dst}, v{Sj}, v{Sj+1}, v{Sj+2}")
            for i in range(3, 15, 2): a(f"v_max3_f32 v{dst}, v{dst}, v{Sj+i}, v{Sj+i+1}")
            a(f"v_max_f32 v{dst}, v{dst}, v{Sj+15}")
        else:
            for i in range(0, 16, 2): a(f"v_max3_f32 v{dst}, v{dst}, v{Sj+i}, v{Sj+i+1}")
    def setC(j, m, t2):
        a(f"v_mov_b32 v{t2}, v{m}")
        a(f"v_permlane32_swap_b32 v{m}, v{t2}")
        a(f"v_max_f32 v{m}, v{m}, v{t2}")
        for i in range(16): a(f"v_sub_f32 v{C[j]+i}, 0, v{m}")
    vPr = 250
    a("s_waitcnt lgkmcnt(2)")
    M0 = opt.get("m0", 0)
    if M0:
        for j in range(2):
            a(qkA(j, True)); a(qkB(j))
        for j in range(2):
            rowmax(S[j], vT)
            setC(j, vT, vT+1)
            if j == 0:
                for i in range(16): a(f"v_add_f32 v{S[0]+i}, v{S[0]+i}, v{C[0]+i}")
    else:
        a(qkA(0, True)); a(qkB(0))
    a(f"s_mov_b32 s{sC}, 0")
    a(f"s_mov_b32 s{sSlotN}, {CHUNK}")
    a("s_waitcnt lgkmcnt(0)")
    if not M0: a("s_nop 9")
    if prof: a("s_memtime s[8:9]"); a("s_memrealtime s[10:11]")
    a(".p2align 6")
    a("L_loop:")
    for n in range(16):
        T, j = divmod(n, 2)
        ins = {i: [] for i in range(17)}
        POS = opt.get("pos", [0,4,8,12])
        ins[POS[0]].append(qkA(n+1, not M0))
        ins[POS[1]].append(qkB(n+1))
        ins[POS[2]].append(pv(n-1, 1))
        ins[POS[3]].append(pv(n, 0))
        if j == 0:
            ins[0] += [rdK1(T+1), rdV(T+1,0)]
            if (T+1) % 4 == 0: ins[0].append(rdK2(T+1))
            ins[12].append("s_waitcnt lgkmcnt(0)")
        else:
            ins[0].append(rdV(T+1,1))
        if n == 13:
            ins[12] += ["s_waitcnt vmcnt(0) lgkmcnt(0)"] + (["s_memrealtime s[98:99]"] if prof else []) + ["s_barrier"] + (["s_memrealtime s[100:101]"] if prof else [])
            ins[13] += [f"v_add_u32 v{vK}, s{sSlotN}, v{vK0}", f"v_add_u32 v{vV}, s{sSlotN}, v{vV0}"]
        if n == 14:
            ins[8] += [f"s_xor_b32 s{sSlotN}, s{sSlotN}, {CHUNK}"]
        if n == 15:
            if prof: ins[4] += [f"s_mov_b32 m0, s{sC}", f"v_writelane_b32 v{vPr}, s98, m0", f"v_writelane_b32 v{vPr+1}, s100, m0"]
            ins[8] += [f"s_add_u32 s{sC}, s{sC}, 1", f"s_cmp_lt_u32 s{sC}, 8"]
        for i in range(16):
            for x in ins[i]:
                if x: a(x)
            a(f"v_exp_f32 v{S[n%NB]+i}, v{S[n%NB]+i}")
    a("s_cbranch_scc1 L_loop")
    a(pv(15, 1))
    pload()
    if prof:
        a("s_memtime s[12:13]"); a("s_memrealtime s[14:15]"); a("s_waitcnt lgkmcnt(0)")
        a("s_sub_u32 s12, s12, s8"); a("s_sub_u32 s14, s14, s10")
        a(f"v_writelane_b32 v{vPr}, s12, 8"); a(f"v_writelane_b32 v{vPr}, s14, 9")
    stamp("a")
    a("s_waitcnt lgkmcnt(0)")
    stamp("a", True)
    for j in range(2):
        a(f"v_add_f32 v{vT+j}, |v{O[j]}|, |v{O[j]+12}|")
        for i in range(1, 12): a(f"v_add_f32 v{vT+j}, |v{O[j]+i}|, v{vT+j}")
    a(f"v_add_f32 v{vT}, v{vT}, v{vT+1}")
    thr = 0x71800000 if not opt.get("forceslow") else 0
    a(f"v_cmp_nle_f32 vcc, v{vT}, v{vT+1}" if False else f"v_cmp_ngt_f32 vcc, {thr:#x}, v{vT}")
    a("s_cbranch_vccnz L_slow")
    a(f"v_min_f32 v{vT}, v{O[0]+12}, v{O[1]+12}")
    a(f"v_cmp_ngt_f32 vcc, v{vT}, v{vLow}")
    a("s_cbranch_vccnz L_slow")
    a("L_slow_ret:")
    stamp("a", True)
    for j in range(2):
        a(f"v_rcp_f32 v{vT+j}, v{O[j]+12}")
    a(f"s_lshl_b32 s{sGo}, s{sG}, 5"); a(f"s_add_u32 s{sGo}, s{sGo}, s{sW}"); a(f"s_mul_i32 s{sGo}, s{sGo}, 2560")
    a(f"s_add_u32 s{sGo}, s{sGo}, {WS_O}")
    a(f"s_mul_i32 s{sT3}, s{sS}, 10240"); a(f"s_add_u32 s{sT3}, s{sT3}, s{sGo}")
    PK = 236; vO8 = 246; sOwn = sCh
    a(f"s_mov_b32 s{sOwn}, s{sT3}")
    ASC = opt.get("asc", "")
    for j in range(2):
        for i in range(12): a(f"v_mul_f32 v{O[j]+i}, v{O[j]+i}, v{vT+j}")
        for i in range(6): a(f"v_cvt_pk_bf16_f32 v{O[j]+i}, v{O[j]+2*i}, v{O[j]+2*i+1}")
        for i in range(4): a(f"v_min_u32 v{PK+4*j+i}, -2, v{O[j]+i}")
        a(f"buffer_store_dwordx4 {v(PK+4*j,4)}, v{vDma}, s[{sWS}:{sWS+3}], s{sOwn} offen offset:{1024*j} {ASC}")
    a(f"v_lshlrev_b32 v{vO8}, 3, v{vL}")
    for i in range(2): a(f"v_permlane32_swap_b32 v{O[0]+4+i}, v{O[1]+4+i}")
    for i in range(2): a(f"v_min_u32 v{PK+8+i}, -2, v{O[0]+4+i}")
    a(f"buffer_store_dwordx2 {v(PK+8,2)}, v{vO8}, s[{sWS}:{sWS+3}], s{sOwn} offen offset:2048 {ASC}")
    def bstore():
        Lb = lab("bst")
        a(f"s_bitcmp1_b32 s{sSlotN}, 4"); a(f"s_cbranch_scc1 {Lb}")
        a(f"s_bitset1_b32 s{sSlotN}, 4")
        a(f"s_add_u32 s{sT3}, s{sOwn}, {WS_OB}")
        for j in range(2): a(f"buffer_store_dwordx4 {v(PK+4*j,4)}, v{vDma}, s[{sWS}:{sWS+3}], s{sT3} offen offset:{1024*j} sc1")
        a(f"buffer_store_dwordx2 {v(PK+8,2)}, v{vO8}, s[{sWS}:{sWS+3}], s{sT3} offen offset:2048 sc1")
        a(f"{Lb}:")
    a(f"s_mov_b32 s{sSlotN}, 0")
    if opt.get("bearly", 1): bstore()
    stamp("a", True)
    RO = Regs(20)
    vWm = RO(); vWl = RO(); vSt = RO(); vRd = RO(3); vOut = RO(3)
    OF = RO(80, 4); AC = RO(20, 4); NWB = 5
    WB = [RO(20, 4) for _ in range(NWB)]
    assert RO.p <= PK; RO.hi = 247
    a(f"v_bfe_u32 v{vT}, v{vL}, 2, 2")
    a(f"v_bfe_u32 v{vT+1}, v{vL}, 4, 1")
    a(f"v_mul_u32_u24 v{vT+1}, 20, v{vT+1}"); a(f"v_add_u32 v{vT}, v{vT}, v{vT+1}")
    a(f"v_lshrrev_b32 v{vT+1}, 5, v{vL}")
    a(f"v_mul_u32_u24 v{vT+2}, 40, v{vT+1}"); a(f"v_add3_u32 v{vT+2}, v{vT+2}, v{vT}, 16")
    a(f"v_lshl_add_u32 v{vT}, v{vT+1}, 2, v{vT}")
    a(f"v_and_b32 v{vT+1}, 3, v{vL}"); a(f"v_mul_u32_u24 v{vT+1}, 40, v{vT+1}"); a(f"v_add_u32 v{vT+1}, {L_WO+51200}, v{vT+1}")
    a(f"v_mul_u32_u24 v{vT}, 160, v{vT}"); a(f"v_add_u32 v{vWm}, v{vT}, v{vT+1}")
    a(f"v_mul_u32_u24 v{vT+2}, 160, v{vT+2}"); a(f"v_add_u32 v{vWl}, v{vT+2}, v{vT+1}")
    srd(a, sA, pOut, 2048*2560)
    steps = []
    for p in (2, 3, 0, 1):
        steps += [("m", 2*p, 0), ("m", 2*p, 1), ("m", 2*p+1, 0), ("m", 2*p+1, 1), ("l", 2*p, 0)]
    def wrd(n):
        kind, sp, j = steps[n]; buf = WB[n % NWB]; r = []
        sub = 51200 if sp >= 4 else 0
        for t5 in range(5):
            for t in range(2):
                if kind == "m": r.append(f"ds_read_b64_tr_b16 {v(buf+4*t5+2*t,2)}, v{vWm} offset:{(80*sp+40*j+8*t)*160+8*t5-sub}")
                else: r.append(f"ds_read_b64_tr_b16 {v(buf+4*t5+2*t,2)}, v{vWl} offset:{80*(sp+t)*160+8*t5-sub}")
        return r
    a(f"v_mov_b32 v{vCnt}, {L_C2}")
    for n in range(NWB-1):
        for x in wrd(n): a(x)
        a("s_waitcnt lgkmcnt(4)")
    stamp("a", True)
    a(f"s_waitcnt vmcnt({3 if opt.get('bearly', 1) else 0})")
    stamp("a")
    Lf = lab("fl")
    a(f"v_cmp_ne_u32 vcc, s{sTag}, v{vPv}"); a(f"s_cbranch_vccz {Lf}")
    poll(vPv, vPo, "0", 1, sleep=opt.get("fsleep", 2))
    a(f"{Lf}:")
    stamp("a")
    def oload(p):
        for q in range(2):
            a(f"s_add_u32 s{sT3}, s{sGo}, {10240*(2*p+q)}")
            for j in range(2):
                a(f"buffer_load_dwordx4 {v(OF+20*p+8*q+4*j,4)}, v{vDma}, s[{sWS}:{sWS+3}], s{sT3} offen offset:{1024*j} sc1")
            a(f"buffer_load_dwordx2 {v(OF+20*p+16+2*q,2)}, v{vO8}, s[{sWS}:{sWS+3}], s{sT3} offen offset:2048 sc1")
    def ocheck(p):
        b = OF+20*p
        a(f"v_max3_u32 v{vT}, v{b}, v{b+1}, v{b+2}"); a(f"v_max3_u32 v{vT+1}, v{b+3}, v{b+4}, v{b+5}")
        for i in range(7): a(f"v_max3_u32 v{vT+(i&1)}, v{vT+(i&1)}, v{b+6+2*i}, v{b+7+2*i}")
        a(f"v_max_u32 v{vT}, v{vT}, v{vT+1}")
        a(f"v_cmp_eq_u32 vcc, -1, v{vT}")
    for p in range(4): oload(p)
    a(f"s_mul_i32 s{sT}, s{sW}, 2816"); a(f"s_add_u32 s{sT}, s{sT}, {L_WO+51200}")
    a(f"v_and_b32 v{vT}, 15, v{vL}"); a(f"v_mul_u32_u24 v{vT}, 176, v{vT}")
    a(f"v_lshrrev_b32 v{vT+1}, 4, v{vL}"); a(f"v_mul_u32_u24 v{vT+1}, 40, v{vT+1}"); a(f"v_add3_u32 v{vSt}, v{vT}, v{vT+1}, s{sT}")
    for m in range(3):
        a(f"v_add_u32 v{vT}, {64*m}, v{vL}"); a(f"v_mul_u32_u24 v{vT+1}, 205, v{vT}"); a(f"v_lshrrev_b32 v{vT+1}, 11, v{vT+1}")
        a(f"v_add_u32 v{vT+2}, v{vT}, v{vT+1}"); a(f"v_lshl_add_u32 v{vRd+m}, v{vT+2}, 4, s{sT}")
        a(f"v_mul_u32_u24 v{vT+1}, 150, v{vT+1}"); a(f"v_add_lshl_u32 v{vOut+m}, v{vT}, v{vT+1}, 4")
    a(f"s_mov_b32 s{sC}, 0")
    for n in range(20):
        p, r_ = divmod(n, 5)
        if r_ == 0:
            Lr = lab("rnd"); Lg = lab("go")
            if p == 0:
                a("s_waitcnt vmcnt(18)"); ocheck(0); a(f"s_cbranch_vccz {Lg}")
            else:
                a(f"s_bitcmp1_b32 s{sSlotN}, {p}"); a(f"s_cbranch_scc1 {Lg}")
            a(f"{Lr}:")
            La = lab("ab")
            a(f"s_add_u32 s{sC}, s{sC}, 1"); a(f"s_cmp_lt_u32 s{sC}, {opt.get('arounds', 12)}"); a(f"s_cbranch_scc1 {La}")
            bstore()
            a(f"s_xor_b32 s{sGo}, s{sGo}, {WS_O ^ (WS_O+WS_OB):#x}")
            a(f"{La}:")
            if opt.get("rsleep", 0): a(f"s_sleep {opt['rsleep']}")
            a("s_waitcnt vmcnt(0)")
            for q in range(p, 4):
                Lo = lab("ok"); Ln = lab("nx")
                if q > p:
                    a(f"s_bitcmp1_b32 s{sSlotN}, {q}"); a(f"s_cbranch_scc1 {Ln}")
                ocheck(q); a(f"s_cbranch_vccz {Lo}")
                oload(q); a(f"s_branch {Ln}")
                a(f"{Lo}:"); a(f"s_bitset1_b32 s{sSlotN}, {q}")
                a(f"{Ln}:")
            a(f"s_bitcmp1_b32 s{sSlotN}, {p}"); a(f"s_cbranch_scc1 {Lg}")
            a(f"s_cmp_lt_u32 s{sC}, {SPIN//4}"); a(f"s_cbranch_scc1 {Lr}")
            a("s_waitcnt vmcnt(0)")
            a(f"{Lg}:")
            if p == 3: bstore()
            if p in (0, 1, 3): stamp("a", True)
        if n == opt.get("odrop", 5): a("s_setprio 0")
        nn = n + NWB - 1
        nx = []
        if nn < 20:
            if nn == 10:
                lwait(0)
                a(f"v_subrev_u32 v{vWm}, 51200, v{vWm}"); a(f"v_subrev_u32 v{vWl}, 51200, v{vWl}")
            nx = wrd(nn)
        out_allowed = min(10, 10*(min(19, nn-1) - n))
        a(f"s_waitcnt lgkmcnt({out_allowed})")
        if n == 10: lsig((L_C2-L_CNT)//4 + 3)
        for t5 in range(5):
            a(f"v_mfma_f32_16x16x32_bf16 {v(AC+4*t5,4)}, {v(WB[n%NWB]+4*t5,4)}, {v(OF+4*n,4)}, {'0' if n==0 else v(AC+4*t5,4)}")
            for x in nx[2*t5:2*t5+2]: a(x)
    a(f"s_lshl_b32 s{sT}, s{sG}, 2"); a(f"s_add_u32 s{sT}, s{sT}, s{sW}"); a(f"s_mul_i32 s{sT}, s{sT}, {16*2560}")
    a(f"s_add_u32 s{sT}, s{sT}, s{sT4}")
    lwait(3)
    for i in range(10): a(f"v_cvt_pk_bf16_f32 v{OF+i}, v{AC+2*i}, v{AC+2*i+1}")
    for i in range(5): a(f"ds_write_b64 v{vSt}, {v(OF+2*i,2)} offset:{8*i}")
    for m in range(3): a(f"ds_read_b128 {v(OF+12+4*m,4)}, v{vRd+m}")
    for m in range(3):
        a(f"s_waitcnt lgkmcnt({2-m})")
        if m == 2: a("s_mov_b32 exec_hi, 0")
        a(f"buffer_store_dwordx4 {v(OF+12+4*m,4)}, v{vOut+m}, s[{sA}:{sA+3}], s{sT} offen")
    if prof:
        stamp("a"); a("s_waitcnt vmcnt(0)"); stamp("a")
        prof_store("a", vT)
        a("s_mov_b64 exec, -1")
        a(f"v_lshlrev_b32 v{vT}, 2, v{vL}")
        a("s_mov_b64 exec, 0xff")
        a(f"s_add_u32 s{sT}, s{sT}, {0x40000}")
        a(f"buffer_store_dword v{vPr}, v{vT}, s[{sWS}:{sWS+3}], s{sT} offen")
        a(f"buffer_store_dword v{vPr+1}, v{vT}, s[{sWS}:{sWS+3}], s{sT} offen offset:32")
        a("s_mov_b64 exec, 0x300")
        a(f"s_add_u32 s{sT}, s{sT}, {0x40000}")
        a(f"buffer_store_dword v{vPr}, v{vT}, s[{sWS}:{sWS+3}], s{sT} offen")
    a("s_endpgm")
    for Ls, Lb, k in spins:
        a(f"{Ls}:"); lwait(k); a(f"s_branch {Lb}")
    a("L_slow:")
    M = [vK, vV]
    for j in range(2):
        a(f"v_mov_b32 v{M[j]}, 0xff800000")
        for i in range(16): a(f"v_mov_b32 v{C[j]+i}, 0"); a(f"v_mov_b32 v{O[j]+i}, 0")
    a(f"s_mov_b32 s{sSlotN}, 0")
    a("L_slow_pass:")
    a(f"s_mov_b32 s{sC}, 0")
    a("L_slow_it:")
    a(f"s_lshr_b32 s{sT}, s{sC}, 2"); a(f"s_mul_i32 s{sT}, s{sT}, {CHUNK}")
    a(f"s_bfe_u32 s{sT2}, s{sC}, 0x10001"); a(f"s_mul_i32 s{sT2}, s{sT2}, {GRP}")
    a(f"s_add_u32 s{sT}, s{sT}, s{sT2}"); a(f"s_add_u32 s{sT}, s{sT}, {WS_KV}")
    a(f"s_and_b32 s{sT2}, s{sC}, 1")
    a(f"s_lshl_b32 s{sT3}, s{sT2}, 10"); a(f"s_add_u32 s{sT3}, s{sT3}, s{sT}")
    for q in range(2): a(f"buffer_load_dwordx4 {v(K1[q],4)}, v{vK0}, s[{sWS}:{sWS+3}], s{sT3} offen offset:{2048*q} sc1")
    a(f"s_lshl_b32 s{sT3}, s{sT2}, 3"); a(f"s_add_u32 s{sT3}, s{sT3}, s{sT}"); a(f"s_add_u32 s{sT3}, s{sT3}, 4096")
    a(f"buffer_load_dwordx2 {v(K2[0],2)}, v{vK0}, s[{sWS}:{sWS+3}], s{sT3} offen sc1")
    a(f"s_mul_i32 s{sT3}, s{sT2}, 1344"); a(f"s_add_u32 s{sT3}, s{sT3}, s{sT}")
    for q in range(2):
        a(f"buffer_load_dwordx4 {v(V0[q],4)}, v{vV0}, s[{sWS}:{sWS+3}], s{sT3} offen offset:{2688*q} sc1")
        a(f"buffer_load_dwordx4 {v(V1[q],4)}, v{vV0}, s[{sWS}:{sWS+3}], s{sT3} offen offset:{2688*q+672} sc1")
    a("s_waitcnt vmcnt(0)")
    for q in range(2):
        for j in range(2):
            Sx = S[2*q+j]
            a(f"v_mfma_f32_32x32x8_bf16 {v(Sx,16)}, {v(K2[0],2)}, {v((Q2a if q==0 else Q2b)[j],2)}, {v(C[j],16)}")
            a(f"v_mfma_f32_32x32x16_bf16 {v(Sx,16)}, {v(K1[q],4)}, {v(Q1[j],4)}, {v(Sx,16)}")
    a("s_nop 15")
    a(f"s_cmp_eq_u32 s{sSlotN}, 1"); a("s_cbranch_scc1 L_slow_p2")
    for q in range(2):
        for j in range(2): rowmax(S[2*q+j], M[j], True)
    a("s_branch L_slow_nx")
    a("L_slow_p2:")
    for i in range(64): a(f"v_exp_f32 v{S[0]+i}, v{S[0]+i}")
    a("s_nop 1")
    for q in range(2):
        for j in range(2):
            for sidx in range(2):
                a(f"v_smfmac_f32_32x32x32_bf16 {v(O[j],16)}, {v((V0 if sidx==0 else V1)[q],4)}, {v(S[2*q+j]+8*sidx,8)}, v{vIdx}")
    a("s_nop 15")
    a("L_slow_nx:")
    a(f"s_add_u32 s{sC}, s{sC}, 1"); a(f"s_cmp_lt_u32 s{sC}, 32"); a("s_cbranch_scc1 L_slow_it")
    a(f"s_cmp_eq_u32 s{sSlotN}, 1"); a("s_cbranch_scc1 L_slow_ret")
    for j in range(2): setC(j, M[j], vT)
    a(f"s_mov_b32 s{sSlotN}, 1")
    a("s_branch L_slow_pass")
    assert S[1] == S[0]+16 and S[3] == S[0]+48
    hi_a = max(R.hi, RA.hi, RO.hi, KW+8*NKW)

    a("L_helper:")
    H = Regs(5)
    hT = H(8, 4); hDma = H(); hP = H(5); PR = H(8, 2)
    sCg = sU0
    a(f"s_sub_u32 s{sH}, s{sW}, 4")
    a(f"s_and_b32 s{sT}, s2, 7"); a(f"s_mul_i32 s{sT}, s{sT}, 20"); a(f"s_lshr_b32 s{sT3}, s2, 3")
    a(f"s_add_u32 s{sCg}, s{sT}, s{sT3}"); a(f"s_sub_u32 s{sCg}, s{sCg}, 12")
    a(f"s_lshl_b32 s{sCh}, s{sCg}, 2"); a(f"s_add_u32 s{sCh}, s{sCh}, s{sH}")
    a(f"s_lshl_b32 s{sT}, s{sCh}, 8")
    a(f"v_lshlrev_b32 v{hT+2}, 2, v{vL}"); a(f"v_add_u32 v{hT}, s{sT}, v{hT+2}")
    a(f"s_lshl_b32 s{sT}, s{sCh}, 1"); a(f"v_mov_b32 v{hT+1}, s{sT}")
    a(f"s_mul_i32 s{sT}, s{sT3}, 200"); a(f"s_mul_i32 s{sT2}, s{sH}, 50"); a(f"s_add_u32 s{sT}, s{sT}, s{sT2}")
    a(f"v_add_u32 v2, s{sT}, v{vL}"); a(f"v_lshlrev_b32 v2, 7, v2")
    a(f"v_lshlrev_b32 v{hDma}, 4, v{vL}")
    a(f"s_cmp_lt_u32 s{sS}, 3")
    a("s_waitcnt lgkmcnt(0)")
    stamp("h")
    a("s_cbranch_scc1 L_h_pre_tr")
    a(f"global_load_ushort v{PR+6}, v{hT+1}, s[{pLdt}:{pLdt+1}]")
    for i, p in enumerate((pAre, pAim, pBre, pBim, pCre, pCim)):
        a(f"global_load_dword v{PR+i}, v{hT}, s[{p}:{p+1}]")
    a(f"global_load_ushort v{PR+7}, v{hT+1}, s[{pDs}:{pDs+1}]")
    a("s_branch L_h_go")
    a("L_h_pre_tr:")
    a(f"s_cmp_eq_u32 s{sS}, 2"); a("s_cbranch_scc1 L_h_go")
    a(f"s_mul_i32 s{sT}, s{sH}, 7168")
    a(f"s_add_u32 m0, s{sT}, {L_WK}")
    a(f"s_cmp_eq_u32 s{sS}, 0")
    a(f"s_cselect_b32 s{sA}, s{pWK}, s{pWV}")
    a(f"s_cselect_b32 s{sA+1}, s{pWK+1}, s{pWV+1}")
    a(f"s_and_b32 s{sA+1}, s{sA+1}, 0xffff"); a(f"s_mov_b32 s{sA+2}, 25600"); a(f"s_mov_b32 s{sA+3}, 0x20000")
    for i in range(4): a(f"buffer_load_dwordx4 v{hDma}, s[{sA}:{sA+3}], s{sT} offen offset:{1024*i} lds")
    a("s_add_u32 m0, m0, 4096"); a(f"s_add_u32 s{sT}, s{sT}, 4096")
    for i in range(3): a(f"buffer_load_dwordx4 v{hDma}, s[{sA}:{sA+3}], s{sT} offen offset:{1024*i} lds")
    a("L_h_go:")
    WQPF = opt.get("wqpf", -1)
    def wq_pf():
        a("s_mov_b32 exec_hi, 0x3ffff")
        a(f"global_load_dword v3, v2, s[{pWQ}:{pWQ+1}]")
        a("s_mov_b32 exec_hi, -1")
    if WQPF == 0: wq_pf()
    a("s_barrier")
    a(f"s_load_dword s{sTag}, s[{pWS}:{pWS+1}], {WS_TAG}")
    srd(a, sWS, pWS, WS_SIZE)
    srd(a, sWQ, pWO, 640*1280)
    wpattern(hP, vL, hT, False)
    a(f"s_lshr_b32 s{sGo}, s{sG}, 2"); a(f"s_add_u32 s{sGo}, s{sGo}, 1"); a(f"s_and_b32 s{sGo}, s{sGo}, 7")
    a(f"s_mul_i32 s{sGo}, s{sGo}, {CHUNK}"); a(f"s_add_u32 s{sGo}, s{sGo}, {WS_KV}")
    a(f"s_mov_b32 s{sSlotD}, {CHUNK}")
    sWoL = sSlotN; sWoG = sT4
    def wo_set(mul, add):
        a(f"s_mul_i32 s{sT}, s{sH}, {mul}")
        if add: a(f"s_add_u32 s{sT}, s{sT}, {add}")
        a(f"s_mul_i32 s{sWoL}, s{sT}, 5120"); a(f"s_add_u32 s{sWoL}, s{sWoL}, {L_WO}")
        a(f"s_mul_i32 s{sWoG}, s{sT}, 40960"); a(f"s_mul_i32 s{sT}, s{sS}, 160"); a(f"s_add_u32 s{sWoG}, s{sWoG}, s{sT}")
        a(f"s_add_u32 s{sWoG}, s{sWoG}, {10*40960}")
    wo_set(3, 8)
    def wo_step():
        a(f"s_mov_b32 m0, s{sWoL}")
        a(f"s_add_u32 s{sWoL}, s{sWoL}, 5120")
        a(f"s_sub_u32 s{sT}, s{sWoG}, {20*40960}"); a(f"s_cselect_b32 s{sWoG}, s{sWoG}, s{sT}")
        wkstep_dma(hP, sWQ, sWoG)
        a(f"s_add_u32 s{sWoG}, s{sWoG}, 40960")
    def h_sig(k, base=L_C2):
        a(f"v_mov_b32 v{hT+4}, {base}"); a(f"v_mov_b32 v{hT+5}, 1")
        a("s_mov_b64 exec, 1"); a(f"ds_add_u32 v{hT+4}, v{hT+5} offset:{4*k}"); a("s_mov_b64 exec, -1")
    def hl_wait(k, sleep=2, base=L_CNT, n=4):
        L = lab("tw"); D = lab("twd")
        a(f"v_mov_b32 v{hT+4}, {base}")
        a(f"s_mov_b32 s{sBound}, {SPIN*4}")
        a(f"{L}:")
        if sleep: a(f"s_sleep {sleep}")
        a(f"ds_read_b32 v{hT+5}, v{hT+4} offset:{4*k}")
        a(f"s_sub_u32 s{sBound}, s{sBound}, 1"); a(f"s_cbranch_scc1 {D}")
        a("s_waitcnt lgkmcnt(0)")
        a(f"v_cmp_gt_u32 vcc, {n}, v{hT+5}")
        a(f"s_cbranch_vccnz {L}")
        a(f"{D}:")
    def pre_b1():
        Lnp = lab("nopoll")
        a(f"s_cmp_lg_u32 s{sH}, 3"); a(f"s_cbranch_scc1 {Lnp}")
        hl_wait(4, 8, L_CNT, 8)
        a(f"v_lshlrev_b32 v{hT+4}, 7, v{vL}")
        a(f"s_mov_b32 s{sT5}, {WS_FKV}")
        poll(hT, hT+4, f"s{sT5}", 4, sleep=opt.get("psleep", 8))
        h_sig(3, L_CNT)
        a(f"{Lnp}:")
        hl_wait(4, 4, L_CNT, 8)
        hl_wait(3, 2, L_CNT, 1)
        ring_dma(sH, hDma)
    def tag_advance():
        Lnt = lab("notag")
        a(f"s_add_u32 s{sT}, s2, s{sH}"); a(f"s_cmp_lg_u32 s{sT}, 0"); a(f"s_cbranch_scc1 {Lnt}")
        a(f"v_lshlrev_b32 v{hT+4}, 7, v{vL}")
        for i in range(4):
            a(f"s_mov_b32 s{sT5}, {WS_FO+8192*i}")
            poll(hT, hT+4, f"s{sT5}", 1, sleep=4)
        a(f"v_mov_b32 v{hT}, s{sTag}")
        a("s_mov_b64 exec, 1")
        a(f"buffer_store_dword v{hT}, off, s[{sWS}:{sWS+3}], 0 offset:{WS_TAG} sc1")
        a("s_mov_b64 exec, -1")
        a(f"{Lnt}:")
    a(f"s_cmp_lt_u32 s{sS}, 3"); a("s_cbranch_scc1 L_h_tr")
    vSw = H(4); vSr = H(); vKb = H(); vKc = H(); vKf = H(); vU = H(4); vY = H(2)
    SEL = H(6)
    a(f"s_mul_i32 s{sT}, s{sH}, {SCP}"); a(f"s_add_u32 s{sT}, s{sT}, {L_SC}")
    a(f"v_lshlrev_b32 v{vSw}, 3, v{vL}"); a(f"v_add_u32 v{vSw}, s{sT}, v{vSw}")
    for i in range(1, 4): a(f"v_add_u32 v{vSw+i}, {2112*i}, v{vSw}")
    a(f"v_and_b32 v{hT+4}, 15, v{vL}")
    a(f"v_lshrrev_b32 v{hT+5}, 4, v{vL}")
    a(f"v_mul_u32_u24 v{hT+6}, 528, v{hT+4}"); a(f"v_lshl_add_u32 v{hT+6}, v{hT+5}, 4, v{hT+6}"); a(f"v_add_u32 v{vSr}, s{sT}, v{hT+6}")
    a(f"s_mul_i32 s{sT2}, s{sH}, {KRP}"); a(f"s_add_u32 s{sT2}, s{sT2}, {L_KR}")
    a(f"v_lshlrev_b32 v{hT+6}, 4, v{hT+4}")
    a(f"v_and_b32 v{hT+7}, 1, v{hT+5}"); a(f"v_lshl_add_u32 v{hT+7}, v{hT+7}, 3, v{hT+6}")
    a(f"v_and_b32 v{vKb}, 32, v{vL}"); a(f"v_lshl_add_u32 v{hT+7}, v{vKb}, 4, v{hT+7}")
    a(f"s_add_u32 s{sT3}, s{sT2}, {4088-256}")
    a(f"v_sub_u32 v{vKb}, s{sT3}, v{hT+7}")
    a(f"v_lshlrev_b32 v{hT+7}, 9, v{hT+5}")
    a(f"v_add_u32 v{hT+7}, v{hT+7}, v{hT+6}")
    a("s_mov_b32 exec_lo, 0"); a("s_mov_b32 exec_hi, 0xffff0000")
    a(f"v_add_u32 v{hT+7}, 512, v{hT+7}")
    a("s_mov_b64 exec, -1")
    a(f"s_add_u32 s{sT3}, s{sT2}, {4080-1024-256-512}")
    a(f"v_sub_u32 v{vKc}, s{sT3}, v{hT+7}")
    a(f"v_and_b32 v{hT}, 7, v{vL}"); a(f"v_bfe_u32 v{hT+1}, v{vL}, 4, 1"); a(f"v_lshl_add_u32 v{hT}, v{hT+1}, 3, v{hT}")
    a(f"v_bfe_u32 v{hT+2}, v{vL}, 3, 1")
    a(f"v_lshrrev_b32 v{hT+3}, 5, v{vL}")
    a(f"v_lshlrev_b32 v{hT+7}, 5, v{hT}"); a(f"v_lshl_add_u32 v{hT+7}, v{hT+2}, 9, v{hT+7}")
    a(f"s_add_u32 s{sT3}, s{sT2}, {4064-3072}")
    a(f"v_sub_u32 v{vKf}, s{sT3}, v{hT+7}"); a(f"v_lshl_add_u32 v{vKf}, v{hT+3}, 4, v{vKf}")
    a(f"v_lshl_add_u32 v{hT+7}, v{hT+3}, 4, v{hT+7}")
    a(f"v_add_u32 v{vY+1}, s{sT2}, v{hT+7}")
    a(f"s_mul_i32 s{sT3}, s{sH}, {UP}"); a(f"s_add_u32 s{sT3}, s{sT3}, {L_U+2368}"); a(f"v_add_u32 v{vY}, s{sT3}, v{hT+7}")
    a(f"v_and_b32 v{hT+7}, 2, v{vL}"); a(f"v_lshl_add_u32 v{hT+7}, v{hT+2}, 2, v{hT+7}")
    a(f"v_bfe_u32 v{hT}, v{vL}, 2, 1"); a(f"v_add_u32 v{hT}, v{hT}, v{hT+3}"); a(f"v_lshl_add_u32 v{hT+7}, v{hT}, 3, v{hT+7}")
    a(f"v_mul_u32_u24 v{hT+1}, 576, v{hT+1}"); a(f"v_lshl_add_u32 v{hT+7}, v{hT+7}, 1, v{hT+1}")
    a(f"v_and_b32 v{hT+6}, 1, v{vL}"); a(f"v_mul_u32_u24 v{vU}, 4576, v{hT+6}")
    a(f"s_mul_i32 s{sT3}, s{sH}, {UP}"); a(f"s_add_u32 s{sT3}, s{sT3}, {L_U+4640-28}")
    a(f"v_sub_u32 v{vU}, s{sT3}, v{vU}"); a(f"v_add_u32 v{vU}, v{vU}, v{hT+7}")
    for i in range(1, 4): a(f"v_add_u32 v{vU+i}, {1152*i}, v{vU}")
    def sel(lo, hi): return (2*lo) | (2*lo+1) << 8 | (2*hi) << 16 | (2*hi+1) << 24
    a(f"v_mov_b32 v{SEL}, {sel(3,2):#x}"); a(f"v_mov_b32 v{SEL+1}, {sel(1,0):#x}")
    a(f"v_mov_b32 v{SEL+2}, {sel(2,2):#x}"); a(f"v_mov_b32 v{SEL+3}, {sel(1,1):#x}"); a(f"v_mov_b32 v{SEL+4}, {sel(1,0):#x}")
    a("s_mov_b32 exec_lo, 0")
    a(f"v_mov_b32 v{SEL}, {sel(2,1):#x}"); a(f"v_mov_b32 v{SEL+1}, {sel(0,0):#x}")
    a(f"v_mov_b32 v{SEL+2}, {sel(1,1):#x}"); a(f"v_mov_b32 v{SEL+4}, {sel(0,0):#x}")
    a(f"v_mul_u32_u24 v{SEL+3}, 0x101, v{hT+6}"); a(f"v_lshlrev_b32 v{SEL+3}, 17, v{SEL+3}"); a(f"v_add_u32 v{SEL+3}, {sel(1,0):#x}, v{SEL+3}")
    a(f"v_add_u32 v{SEL+5}, 0x04040404, v{SEL+3}")
    a("s_mov_b32 exec_lo, -1")
    for i in range(4): a(f"v_mov_b32 v{hT+i}, 0")
    vKz = H()
    a(f"v_lshlrev_b32 v{vKz}, 3, v{vL}"); a(f"v_add_u32 v{vKz}, s{sT2}, v{vKz}")
    for r_ in (vKb, vKc, vKf, vKz):
        a(f"v_subrev_u32 v{r_}, s{sT2}, v{r_}")
        a(f"v_bfe_u32 v{hT+4}, v{r_}, 4, 1"); a(f"v_mul_u32_u24 v{hT+4}, 2304, v{hT+4}")
        a(f"v_lshrrev_b32 v{hT+5}, 5, v{r_}"); a(f"v_lshl_add_u32 v{hT+4}, v{hT+5}, 4, v{hT+4}")
        a(f"v_and_b32 v{r_}, 15, v{r_}"); a(f"v_add3_u32 v{r_}, v{r_}, v{hT+4}, s{sT2}")
    HK = Regs(H.p)
    Z1 = [HK(2) for _ in range(2)]; Z8 = [HK(2) for _ in range(2)]
    ZB = [HK(2) for _ in range(2)]; Wc = [[HK(2) for _ in range(2)] for _ in range(2)]; Cu = [[HK(2) for _ in range(2)] for _ in range(2)]
    E = [HK(2) for _ in range(2)]; AR = [HK(2) for _ in range(2)]; TB = [HK(2) for _ in range(2)]; TC = [HK(2) for _ in range(2)]
    Z2 = TC; Z4 = TB
    LF = [HK(32, 4) for _ in range(2)]; HF = [HK(32, 4) for _ in range(2)]; DK = [HK(4, 4) for _ in range(4)]; EX = HK(8, 4)
    L2E = 1.4426950408889634
    f2 = lambda x: struct.unpack("<I", struct.pack("<f", x))[0]
    hi_ = struct.unpack("<f", struct.pack("<f", L2E))[0]; lo_ = L2E - hi_
    a(f"v_mov_b32 v{EX}, 0x3f80"); a(f"v_mov_b32 v{EX+1}, 0x3f80")
    a(f"s_mov_b32 s{sT}, {f2(hi_):#x}")
    if opt.get("kprio", 0): a(f"s_setprio {opt['kprio']}")
    if WQPF == 1:
        a("s_waitcnt lgkmcnt(0)"); wq_pf()
    if WQPF == 3: wq_pf()
    a(f"s_waitcnt vmcnt({6 if WQPF in (0, 1, 3) else 5})")
    if WQPF == 2: wq_pf()
    stamp("h")
    if opt.get("k2"):
        a(f"s_mov_b32 s{sC}, 0"); a("L_k2:")
        a(f"v_mov_b32 v{EX}, 0x3f80"); a(f"v_mov_b32 v{EX+1}, 0x3f80")
    dt = hT+4
    a(f"v_lshlrev_b32 v{hT+5}, 16, v{PR+6}")
    a(f"v_mul_f32 v{hT+6}, {f2(hi_):#x}, v{hT+5}")
    a(f"v_fma_f32 v{hT+7}, v{hT+5}, s{sT}, -v{hT+6}")
    a(f"v_fmac_f32 v{hT+7}, {f2(lo_):#x}, v{hT+5}")
    a(f"v_exp_f32 v{hT+6}, v{hT+6}")
    a(f"v_mul_f32 v{hT+7}, {f2(0.6931471805599453):#x}, v{hT+7}")
    a(f"v_fmac_f32 v{hT+6}, v{hT+6}, v{hT+7}")
    a(f"v_cvt_pk_bf16_f32 v{dt}, v{hT+6}, v{hT+6}")
    a(f"v_lshlrev_b32 v{dt}, 16, v{dt}")
    def unpack(dst, src, m):
        if m == 0: a(f"v_lshlrev_b32 v{dst}, 16, v{src}")
        else: a(f"v_and_b32 v{dst}, 0xffff0000, v{src}")
    fill = []
    def cmul(d, x, y):
        if opt.get("nopk", 0):
            for m in range(2):
                a(f"v_mul_f32 v{d[m]}, v{x[m]}, v{y[m]}"); a(f"v_mul_f32 v{d[m]+1}, v{x[m]}, v{y[m]+1}")
            for m in range(2):
                a(f"v_fma_f32 v{d[m]}, -v{x[m]+1}, v{y[m]+1}, v{d[m]}"); a(f"v_fmac_f32 v{d[m]+1}, v{x[m]+1}, v{y[m]}")
            return
        for m in range(2): a(f"v_pk_mul_f32 {v(d[m],2)}, {v(x[m],2)}, {v(y[m],2)} op_sel:[0,0] op_sel_hi:[0,1]")
        for m in range(2): a(f"v_pk_fma_f32 {v(d[m],2)}, {v(x[m],2)}, {v(y[m],2)}, {v(d[m],2)} op_sel:[1,1,0] op_sel_hi:[1,0,1] neg_lo:[0,1,0]")
    for m in range(2):
        for i in range(2): unpack(AR[m]+i, PR+i, m)
    for m in range(2):
        for i in range(2): a(f"v_mul_f32 v{AR[m]+i}, v{dt}, v{AR[m]+i}")
        a(f"v_mul_f32 v{AR[m]}, {f2(L2E):#x}, v{AR[m]}")
        a(f"v_mul_f32 v{AR[m]+1}, {f2(0.15915494309189535):#x}, v{AR[m]+1}")
    def cpow(d, p):
        for m in range(2):
            if p != 1:
                a(f"v_mul_f32 v{E[m]}, {f2(float(p)):#x}, v{AR[m]}"); a(f"v_mul_f32 v{E[m]+1}, {f2(float(p)):#x}, v{AR[m]+1}")
                a(f"v_exp_f32 v{E[m]}, v{E[m]}"); a(f"v_fract_f32 v{E[m]+1}, v{E[m]+1}")
            else:
                a(f"v_exp_f32 v{E[m]}, v{AR[m]}"); a(f"v_fract_f32 v{E[m]+1}, v{AR[m]+1}")
        for m in range(2):
            a(f"v_cos_f32 v{d[m]}, v{E[m]+1}"); a(f"v_sin_f32 v{d[m]+1}, v{E[m]+1}")
        for m in range(2):
            a(f"v_pk_mul_f32 {v(d[m],2)}, {v(d[m],2)}, {v(E[m],2)} op_sel_hi:[1,0]")
    er = [1]; pend = [(EX, 0)]
    def flush():
        if len(pend) == 1:
            e, r_ = pend[0]; a(f"ds_write_b64 v{vSw}, {v(e,2)} offset:{528*r_}")
        elif len(pend) == 2:
            (e0, r0), (e1, r1) = pend
            b = min(r0, r1)//4
            if max(r0, r1) - 4*b > 3:
                a(f"ds_write_b64 v{vSw}, {v(e0,2)} offset:{528*r0}"); a(f"ds_write_b64 v{vSw}, {v(e1,2)} offset:{528*r1}")
            else:
                a(f"ds_write2_b64 v{vSw+b}, {v(e0,2)}, {v(e1,2)} offset0:{66*(r0-4*b)} offset1:{66*(r1-4*b)}")
        pend.clear()
    def row(x, rows, neg):
        e = EX + 2*(er[0] % 4); er[0] += 1
        for m in range(2): a(f"v_cvt_pk_bf16_f32 v{e+m}, v{x[m]}, {'-' if neg else ''}v{x[m]+1}")
        if fill: a(fill.pop(0))
        for r_ in rows:
            if pend and pend[0][1]//4 != r_//4: flush()
            pend.append((e, r_))
            if len(pend) == 2: flush()
        if fill: a(fill.pop(0))
    def frags(dst):
        flush()
        for q in range(8): a(f"ds_read_b128 {v(dst+4*q,4)}, v{vSr} offset:{64*q}")
    cpow(Z8, 8)
    row(Z8, [1], False)
    cur = Z8
    for j in range(2, 32):
        nxt = Cu[j & 1]
        cmul(nxt, cur, Z8); cur = nxt
        row(cur, [j % 16], False)
        if j == 15: frags(LF[0])
    frags(LF[1])
    cmul(ZB, cur, Z8)
    cpow(Z1, 1)
    a(f"s_waitcnt vmcnt({1 if WQPF >= 0 else 0})")
    for m in range(2):
        for i in range(2): unpack(TB[m]+i, PR+2+i, m); unpack(TC[m]+i, PR+4+i, m)
    for m in range(2): a(f"v_pk_mul_f32 {v(TB[m],2)}, {v(TB[m],2)}, {v(dt,2)} op_sel_hi:[1,0]")
    cmul(Wc[0], TC, TB)
    row(Wc[0], [0], True)
    cur = Wc[0]
    for h_ in range(1, 8):
        nxt = Cu[h_ & 1]; cmul(nxt, cur, Z1); cur = nxt
        row(cur, [h_], True)
    cmul(Z2, Z1, Z1)
    cmul(Wc[1], Wc[0], ZB); row(Wc[1], [8], True)
    cur = Wc[1]
    for i, rows in enumerate(([9], [10, 12], [13], [14])):
        nxt = Cu[i & 1]; cmul(nxt, cur, Z2); cur = nxt
        row(cur, rows, True)
    frags(HF[0])
    def hm(hb):
        return [f"v_mfma_f32_16x16x32_bf16 {v(DK[2*hb+lb],4)}, {v(HF[hb]+4*q,4)}, {v(LF[lb]+4*q,4)}, {'0' if q==0 else v(DK[2*hb+lb],4)}" for q in range(8) for lb in range(2)]
    g_ = [1]
    def nextG():
        cmul(Wc[(g_[0]+1) & 1], Wc[g_[0] & 1], ZB); g_[0] += 1
        return Wc[g_[0] & 1]
    cmul(Z4, Z2, Z2)
    for base in (0, 4):
        G = nextG()
        row(G, [base], True)
        cmul(Cu[0], G, Z4); row(Cu[0], [base+1], True)
        cmul(Cu[1], Cu[0], Z4); row(Cu[1], [base+2], True)
        if base == 0:
            a("s_waitcnt lgkmcnt(1)"); fill += hm(0)
    for r_ in (8, 10, 12, 14):
        G = nextG(); row(G, [r_], True)
        cmul(Cu[0], G, Z8); row(Cu[0], [r_+1], True)
    assert not fill
    frags(HF[1])
    a(f"v_lshlrev_b32 v{hT+5}, 16, v{PR+7}")
    a("s_mov_b64 exec, 1"); a(f"v_add_f32 v{DK[0]}, v{DK[0]}, v{hT+5}"); a("s_mov_b64 exec, -1")
    for lb in range(2):
        D = DK[lb]
        a(f"v_cvt_pk_bf16_f32 v{D}, v{D}, v{D+1}"); a(f"v_cvt_pk_bf16_f32 v{D+1}, v{D+2}, v{D+3}")
        a(f"v_perm_b32 v{D+2}, v{D+1}, v{D}, v{SEL}"); a(f"v_perm_b32 v{D+3}, v{D+1}, v{D}, v{SEL+1}")
    m1 = hm(1)
    for q in range(8):
        a(f"s_waitcnt lgkmcnt({7-q})"); a(m1[2*q]); a(m1[2*q+1])
    a(f"s_mov_b32 s{sT}, {sel(0,0):#x}"); a(f"s_mov_b32 s{sT2}, {sel(3,3):#x}"); a(f"s_mov_b32 s{sT3}, {sel(2,2):#x}")
    for lb in range(2):
        D = DK[2+lb]; X = HF[0] + 8*lb
        a(f"v_cvt_pk_bf16_f32 v{D}, v{D}, v{D+1}"); a(f"v_cvt_pk_bf16_f32 v{D+1}, v{D+2}, v{D+3}")
        for i in range(3): a(f"v_perm_b32 v{X+i}, v{D+1}, v{D}, v{SEL+2+i}")
        a(f"v_perm_b32 v{X+3}, v{D+1}, v{D}, s{sT}")
        a(f"v_perm_b32 v{X+4}, v{D+1}, v{D}, s{sT2}"); a(f"v_perm_b32 v{X+5}, v{D+1}, v{D}, v{SEL+5}")
        a(f"v_perm_b32 v{X+6}, v{D+1}, v{D}, s{sT3}"); a(f"v_perm_b32 v{X+7}, v{D+1}, v{D}, s{sT3}")
    tagfix()
    HC = Regs(H.p)
    YA = HC(64, 4); UF = [HC(16, 4) for _ in range(2)]; KF = [HC(16, 4) for _ in range(2)]
    UW = HC(32, 4);  G = HC(18, 2)
    while HC.p <= DK[1]+3: HC()
    vGo = HC(); vUw = HC(); vYr = HC(2); vYo = HC()
    sLo = sC; sHi = sCh
    srd(a, sX, pU, 2048*1280)
    a(f"v_mul_u32_u24 v{vGo}, 10240, v{vL}")
    a(f"v_lshrrev_b32 v{hT}, 5, v{vL}"); a(f"v_mul_u32_u24 v{hT}, 576, v{hT}"); a(f"v_and_b32 v{hT+1}, 31, v{vL}")
    a(f"s_mul_i32 s{sT}, s{sH}, 1152"); a(f"s_add_u32 s{sT}, s{sT}, {L_U+64}")
    a(f"v_lshl_add_u32 v{hT}, v{hT+1}, 4, v{hT}"); a(f"v_add_u32 v{vUw}, s{sT}, v{hT}")
    a(f"s_lshl_b32 s{sT}, s{sH}, 8"); a(f"v_lshl_add_u32 v{hT}, v{vL}, 2, s{sT}")
    a(f"v_add_u32 v{vYr}, {L_U+2368}, v{hT}"); a(f"v_add_u32 v{vYr+1}, {L_KR}, v{hT}")
    a(f"v_mul_u32_u24 v{vYo}, 5120, v{vL}")
    a(f"s_mov_b32 s{sLo}, 0x05040100"); a(f"s_mov_b32 s{sHi}, 0x07060302")
    assert vGo > DK[1]+3 and vGo > HF[0]+15
    for i in range(2): a(f"v_mov_b32 v{hT+i}, 0")
    if opt.get("k2"):
        a("s_nop 7"); a("s_nop 7")
        a(f"s_cmp_eq_u32 s{sC}, 1"); a("s_cbranch_scc1 L_k2d")
        stamp("h")
        a(f"s_mov_b32 s{sC}, 1"); a("s_branch L_k2"); a("L_k2d:")
    stamp("h")
    h_sig(4, L_CNT)
    hl_wait(13, 2)
    a(f"s_setprio {opt.get('ktprio', 3)}")
    for lb in range(2): a(f"ds_write_b64 v{vKb}, {v(DK[lb]+2,2)} offset:{128*(1-lb)}")
    a(f"ds_write_b64 v{vKz}, {v(hT,2)} offset:2048")
    for lb in range(2): a(f"ds_write_b128 v{vKc}, {v(HF[0]+8*lb,4)} offset:{256+128*(1-lb)}")
    a("s_mov_b32 exec_lo, 0")
    for lb in range(2): a(f"ds_write_b128 v{vKc}, {v(HF[0]+8*lb+4,4)} offset:{128*(1-lb)}")
    a("s_mov_b32 exec_lo, -1")
    stamp("h")
    def gather(part):
        a(f"s_mul_i32 s{sT}, s{sH}, {512*1280}"); a(f"s_lshl_b32 s{sT2}, s{sCg}, 3"); a(f"s_add_u32 s{sT}, s{sT}, s{sT2}")
        if part: a(f"s_add_u32 s{sT}, s{sT}, 5120")
        for i in range(4*part, 4*part+4):
            a(f"buffer_load_dwordx2 {v(G+2+2*i,2)}, v{vGo}, s[{sX}:{sX+3}], s{sT} offen offset:{1280*(i%4)}")
        if part: return
        a(f"s_sub_u32 s{sT}, s{sT}, 1280")
        a(f"s_cmp_eq_u32 s{sH}, 0"); a(f"s_cselect_b32 s{sT}, 0x10000000, s{sT}")
        a(f"v_mov_b32 v{hT}, s{sT}")
        a("s_mov_b64 exec, 1")
        a(f"buffer_load_dwordx2 {v(G,2)}, v{hT}, s[{sX}:{sX+3}], 0 offen")
        a("s_mov_b64 exec, -1")
    def zero_c2(halo):
        a(f"s_mul_i32 s{sT}, s{sH}, {UP}"); a(f"s_add_u32 s{sT}, s{sT}, {L_U}")
        a(f"v_add_u32 v{hT+4}, s{sT}, v{hDma}")
        for i in range(4): a(f"v_mov_b32 v{hT+i}, 0")
        a("s_mov_b64 exec, 15")
        a(f"ds_write_b128 v{hT+4}, {v(hT,4)}")
        if halo:
            a("s_mov_b64 exec, 3")
            a(f"ds_write_b128 v{hT+4}, {v(hT,4)} offset:4608")
        a("s_mov_b64 exec, -1")
    def uwrite():
        for d in range(2): a(f"v_mov_b32_dpp v{G+d}, v{G+16+d} wave_shr:1 row_mask:0xf bank_mask:0xf")
        for c in range(4):
            for odd in range(2):
                B = UW + 8*c + 4*odd
                for q in range(4):
                    r0 = G + 2*(2*q+1-odd) + (c >> 1)
                    a(f"v_perm_b32 v{B+q}, v{r0+2}, v{r0}, s{sHi if c & 1 else sLo}")
                a(f"ds_write_b128 v{vUw}, {v(B,4)} offset:{UP*c+4576*odd}")
        a(f"s_cmp_eq_u32 s{sH}, 3"); a("s_mov_b32 exec_lo, 0xc0000000"); a("s_cselect_b32 exec_hi, 0, exec_lo")
        for c in range(4):
            for odd in range(2): a(f"ds_write_b128 v{vUw}, {v(UW+8*c+4*odd,4)} offset:{UP*c+4576*odd+64}")
        a("s_mov_b64 exec, -1")
    def ufrag(dst, R_, k): return [f"ds_read2_b32 {v(dst+2*i,2)}, v{vU+R_} offset0:{8*k+2*i} offset1:{8*k+2*i+1}" for i in range(2)]
    def kfrag(dst, D, k): return [f"ds_read_b128 {v(dst,4)}, v{vKf} offset:{1536-512*D+16*k}"]
    def cmm(R_, D, k, b, z):
        N = R_+D
        return f"v_mfma_f32_32x32x16_bf16 {v(YA+16*N,16)}, {v(UF[b]+4*R_,4)}, {v(KF[b]+4*D,4)}, {'0' if z else v(YA+16*N,16)}"
    GA = opt.get("ga", 2)
    pairsA = [(R_, N-R_) for N in range(GA) for R_ in range(N+1)]
    pairsB = sorted([(R_, N-R_) for N in range(GA, 4) for R_ in range(N+1)])
    jobs = []
    for k in range(16):
        hu = set(); hk = set()
        for R_, D in pairsA:
            rd = []
            if R_ not in hu: rd += ufrag(UF[k&1]+4*R_, R_, k); hu.add(R_)
            if D not in hk: rd += kfrag(KF[k&1]+4*D, D, k); hk.add(D)
            jobs.append((rd, cmm(R_, D, k, k & 1, k == 0 and R_ == 0)))
    sched = opt.get("sched", {0: [0]*8, 1: [0,0,0,16,0,0,0,0], 2: [0,0,0,16,16,16,0,0]}[GA])
    assert sum(sched) == len(jobs)
    lastA = max([c for c in range(8) if sched[c]], default=0)
    def combine(N):
        for i in range(8):
            a(f"v_add_f32_dpp v{YA+16*N+i}, v{YA+16*N+8+i}, v{YA+16*N+i} row_ror:8 row_mask:0xf bank_mask:0xc")
        if N:
            for i in range(8):
                a(f"v_add_f32_dpp v{YA+16*N+i}, v{YA+16*N-8+i}, v{YA+16*N+i} row_ror:8 row_mask:0xf bank_mask:0x3")
        for i in range(4): a(f"v_cvt_pk_bf16_f32 v{YA+16*N+i}, v{YA+16*N+2*i}, v{YA+16*N+2*i+1}")
    def yread(T, tail, idx):
        p = 18 if tail else 36
        for i in range(2): a(f"ds_read2st64_b32 {v(T+2*i,2)}, v{vYr+tail} offset0:{2*p*i+int(4*idx)} offset1:{2*p*i+p+int(4*idx)}")
    def yout(T, N):
        a(f"s_mul_i32 s{sT}, s{sH}, {128*2560}"); a(f"s_lshl_b32 s{sT2}, s{sCg}, 3"); a(f"s_add_u32 s{sT}, s{sT}, s{sT2}")
        a(f"s_add_u32 s{sT}, s{sT}, {512*2560*N+1280}")
        for r_ in range(2):
            for i in range(2): a(f"v_perm_b32 v{T+4+2*r_+i}, v{T+2*i+1}, v{T+2*i}, s{sHi if r_ else sLo}")
            a(f"buffer_store_dwordx2 {v(T+4+2*r_,2)}, v{vYo}, s[{sA}:{sA+3}], s{sT} offen offset:{2560*r_}")
    def seg_dma(c):
        if 1 <= c <= 6: ring_dma(sH, hDma)
        if 1 <= c <= 3: wo_step()
        if c == 4:
            a(f"s_lshr_b32 s{sT}, s2, 3"); a(f"s_lshl_b32 s{sT}, s{sT}, 2"); a(f"s_add_u32 s{sT}, s{sT}, s{sH}"); a(f"s_mul_i32 s{sT}, s{sT}, 2560")
            a(f"s_add_u32 s{sT}, s{sT}, {320*1280}")
            a(f"v_lshlrev_b32 v{hT}, 7, v{vL}")
            a("s_mov_b64 exec, 0xfffff")
            a(f"buffer_load_dword v{hT}, v{hT}, s[{sWQ}:{sWQ+3}], s{sT} offen")
            a("s_mov_b64 exec, -1")
        if c == opt.get("pseg", 5):
            a(f"s_lshl_b32 s{sT}, s{sG}, 3"); a(f"s_add_u32 s{sT}, s{sT}, s{sS}"); a(f"s_lshl_b32 s{sT}, s{sT}, 2"); a(f"s_add_u32 s{sT}, s{sT}, s{sH}")
            a(f"s_mul_i32 s{sT}, s{sT}, 2560"); a(f"s_add_u32 s{sT}, s{sT}, {WS_O}")
            for i in range(4): a(f"v_mov_b32 v{hT+i}, -1")
            a(f"s_add_u32 s{sT2}, s{sT}, {WS_OB}")
            for i in range(3):
                if i == 2: a("s_mov_b32 exec_hi, 0")
                for r_ in (sT, sT2): a(f"buffer_store_dwordx4 {v(hT,4)}, v{hDma}, s[{sWS}:{sWS+3}], s{r_} offen offset:{1024*i} sc1")
            a("s_mov_b32 exec_hi, -1")
        if c == opt.get("fseg", 7.5):
            Lw = lab("f8")
            a(f"s_cmp_lg_u32 s{sH}, 0"); a(f"s_cbranch_scc1 {Lw}")
            publish(hT, WS_FO, sH)
            a(f"{Lw}:")
        if c == 7:
            Lw = lab("w7")
            a(f"s_cmp_eq_u32 s{sH}, 3"); a(f"s_cbranch_scc1 {Lw}")
            wo_set(1, 0); wo_step()
            a(f"{Lw}:")
        if c == 8:
            Lw = lab("w8")
            wo_set(1, 3); wo_step()
            a(f"s_cmp_lg_u32 s{sH}, 3"); a(f"s_cbranch_scc1 {Lw}")
            wo_step()
            a(f"{Lw}:")
    GS = opt.get("gs", [0, 2])
    def useg(c, tail):
        for half in range(2):
            ph = c - GS[half]
            if ph not in (0, 1): continue
            Lx = lab("ux")
            a(f"s_cmp_ge_u32 s{sH}, 2"); a(f"s_cbranch_scc{1-half} {Lx}")
            if not tail: gather(ph)
            else:
                a(f"s_waitcnt vmcnt({5-ph}) lgkmcnt(0)")
                a("s_barrier"); a(f"s_branch L_seg{c+1}")
            a(f"{Lx}:")
    def useg_early(c):
        for half in range(2):
            if c != (GS[0]+2, 7)[half]: continue
            Lx = lab("uw"); Ly = lab("uy")
            n = (5 if c <= 3 else 1 if c == 4 else 0)
            a(f"s_cmp_ge_u32 s{sH}, 2"); a(f"s_cbranch_scc{1-half} {Lx}")
            if not half: a(f"s_waitcnt vmcnt({n+6})")
            a(f"s_setprio {opt.get('uprio', 3)}")
            uwrite()
            a("s_setprio 0")
            a(f"{Lx}:")
    srd(a, sA, pOut, 2048*2560)
    pre_b1()
    stamp("h")
    useg(0, False)
    a("s_setprio 0")
    useg(0, True)
    a("s_waitcnt vmcnt(0) lgkmcnt(0)")
    a("s_barrier")
    jn = 0
    for c in range(1, 8):
        a(f"L_seg{c}:")
        seg_dma(c)
        if c == 1: zero_c2(True)
        useg(c, False)
        useg_early(c)
        if GA and c == lastA + 1:
            assert c - GS[1] > 1 and c < 7
            for N in range(GA): yread(UF[0]+8*N, 0, N)
            for N in range(GA):
                a(f"s_waitcnt lgkmcnt({2*(GA-1-N)})"); yout(UF[0]+8*N, N)
        for _ in range(sched[c]):
            rd, mm_ = jobs[jn]; jn += 1
            for x in rd: a(x)
            if rd: a("s_waitcnt lgkmcnt(0)")
            a(mm_)
        if GA and c == lastA:
            a("s_nop 15")
            a(f"s_setprio {opt.get('uprio', 3)}")
            for N in range(GA):
                combine(N)
                a(f"ds_write_b128 v{vY}, {v(YA+16*N,4)} offset:{1024*N}")
            a("s_setprio 0")
        useg(c, True)
        a("s_waitcnt vmcnt(0) lgkmcnt(0)")
        if c == 7: seg_dma(7.5)
        a("s_barrier")
    a("L_seg8:")
    stamp("h")
    assert GA == 2
    bsteps = []; SPLIT = opt.get("split", 1)
    for k in range(16):
        order = [(0,3),(0,2),(1,2),(1,1),(2,1),(2,0)] if k < 15 else [(0,2),(1,1),(2,0),(0,3),(1,2),(2,1)]
        if SPLIT == 2: order.remove((0,3))
        bsteps.append([(R_, R_, D, D, k) for R_, D in order])
    if SPLIT == 1:
        for k in range(0, 16, 4): bsteps.append([(i, 3, i, 0, k+i) for i in range(4)])
    else:
        for k in range(0, 16, 2): bsteps.append([(i, 3*(i&1), i, 3-3*(i&1), k+i//2) for i in range(4)])
    YO = {1: (0, 2304), 2: (768, 2304+768)}[SPLIT]
    YSTEP = opt.get("ystep", {1: 19, 2: 18}[SPLIT])
    def breads(n):
        r = []; seen = set()
        for us, R_, ks_, D, k in bsteps[n]:
            if ("k", ks_) not in seen: r += [(("k", n, ks_), x) for x in kfrag(KF[n&1]+4*ks_, D, k)]
            if ("u", us) not in seen: r += [(("u", n, us), x) for x in ufrag(UF[n&1]+4*us, R_, k)]
            seen |= {("k", ks_), ("u", us)}
        return r
    DS = Q("lgkmcnt", 15)
    for t_, x in breads(0): a(x); DS.add(t_)
    seg_dma(8)
    a(f"s_setprio {opt.get('bprio', 1)}")
    def lines(fn):
        keep = a.lines; a.lines = []; fn(); got = a.lines; a.lines = keep; return got
    first = set()
    for n, st in enumerate(bsteps):
        nx = breads(n+1) if n+1 < len(bsteps) else []
        per = -(-len(nx)//(len(st)-1)) if n < 15 else 3
        fill_ = lines(lambda: combine(2)) if n == 16 else []
        if opt.get("bprof") and n % 8 == 0: stamp("h")
        if n == opt.get("bdrop", 99): a("s_setprio 0")
        for i, (us, R_, ks_, D, k) in enumerate(st):
            DS.wait(("k", n, ks_), ("u", n, us))
            N = R_+D
            a(f"v_mfma_f32_32x32x16_bf16 {v(YA+16*N,16)}, {v(UF[n&1]+4*us,4)}, {v(KF[n&1]+4*ks_,4)}, {v(YA+16*N,16) if N in first else '0'}"); first.add(N)
            for t_, x in nx[per*i:per*i+per]: a(x); DS.add(t_)
            for x in fill_[5*i:5*i+5]: a(x)
        if n == 16:
            if SPLIT == 1: a(f"ds_write_b128 v{vY+1}, {v(YA+32,4)} offset:{YO[0]}")
            else: a(f"ds_write_b128 v{vY}, {v(YA+32,4)}")
            h_sig(1); DS.add("s", 2)
        if n == YSTEP:
            hl_wait(1, 0, L_C2)
            if SPLIT == 1: yread(UW, 1, 0)
            else: yread(UW, 0, 0)
            a("s_waitcnt lgkmcnt(0)"); DS.q = []
            yout(UW, 2)
        if n == opt.get("wosig", 6):
            a("s_waitcnt vmcnt(0)"); h_sig(0); DS.add("s")
    stamp("h")
    a(f"s_setprio {opt.get('yprio', 1)}")
    combine(3)
    a(f"ds_write_b128 v{vY+1}, {v(YA+48,4)} offset:2304")
    h_sig(2)
    hl_wait(2, 0, L_C2)
    yread(UF[0]+8, 1, 2.25)
    a("s_waitcnt lgkmcnt(0)")
    yout(UF[0]+8, 3)
    if prof:
        stamp("h"); a("s_waitcnt vmcnt(0)"); stamp("h")
    a("s_branch L_h_end")
    a("L_h_tr:")
    if WQPF == 3: wq_pf()
    a("s_waitcnt lgkmcnt(0)")
    if WQPF in (1, 2): wq_pf()
    tagfix()
    a(f"s_cmp_eq_u32 s{sS}, 2"); a("s_cbranch_scc1 L_h_now")
    HW = Regs(H.p); wP = HW(5)
    wpattern(wP, vL, hT, True)
    srd(a, sX, pWQ, 640*1280)
    a(f"s_mul_i32 s{sT3}, s{sS}, 160")
    a(f"s_add_u32 s{sC}, s{sH}, 16"); a(f"s_mul_i32 s{sC}, s{sC}, 40960"); a(f"s_add_u32 s{sC}, s{sC}, s{sT3}")
    a(f"s_mul_i32 s{sCh}, s{sH}, {4*40960}"); a(f"s_add_u32 s{sCh}, s{sCh}, s{sT3}")
    a(f"s_lshl_b32 s{sT5}, s{sH}, 2"); a(f"s_add_u32 s{sT5}, s{sT5}, {L_CNT}")
    early = opt.get("kvt", -1) >= 0
    a("s_waitcnt vmcnt(0)"); h_sig(0, L_CNT)
    hl_wait(8, 1, f"s{sT5}", 1)
    a(f"s_mul_i32 m0, s{sH}, 5120")
    wkstep_dma(wP, sX, sC)
    if early: hl_wait(8, 1, f"s{sT5}", 2)
    a(f"s_mul_i32 s{sT}, s{sH}, 20480"); a(f"s_add_u32 m0, s{sT}, {L_X}")
    for i in range(4):
        wkstep_dma(wP, sX, sCh)
        a(f"s_add_u32 s{sCh}, s{sCh}, 40960")
        if i >= 1:
            a("s_waitcnt vmcnt(10)"); h_sig(CW[i-1], L_CNT)
    a("s_waitcnt vmcnt(5)"); h_sig(CW[3], L_CNT)
    a("s_waitcnt vmcnt(0)"); h_sig(CW[4], L_CNT)
    a("L_h_now:")
    h_sig(4, L_CNT)
    pre_b1()
    a("s_waitcnt vmcnt(0)")
    a("s_barrier")
    for c in range(1, 8):
        seg_dma(c)
        if c == 1:
            zero_c2(False)
        a("s_waitcnt vmcnt(0) lgkmcnt(0)")
        if c == 7: seg_dma(7.5)
        a("s_barrier")
    seg_dma(8)
    a("s_waitcnt vmcnt(0)"); h_sig(0)
    tag_advance()
    a("L_h_end:")
    prof_store("h", hT)
    a("L_end:")
    a("s_endpgm")
    nv = max(hi_a, HK.hi, HC.hi)
    return a, nv

HDR = open("cdna_kernels/" + NAME + ".s.ref").read().split("; @launch")[0] if os.path.exists("cdna_kernels/" + NAME + ".s.ref") else ""
def build(path, prof=False, opt=None, verbose=False):
    a, nv = gen(prof, opt)
    lines = hz.fix(a.lines, verbose)
    body = "\n".join(lines) + "\n"
    k = NAME + "_kernel"
    nv = 256 if prof else max(nv, 129)
    txt = HDR + f"; @launch grid=(256,1,1) block=(512,1,1) lds={LDS_TOTAL}\n" + '.amdgcn_target "amdgcn-amd-amdhsa--gfx950"\n'
    txt += kernel_header(k) + body + "L_code_end:\n" + kernel_desc(k, nv)
    txt = txt.replace("CODE_BYTES", f"(L_code_end-{k}-64)&0xfffffffc")
    open(path, "w").write(txt)
    return nv
if __name__ == "__main__":
    nv = build("cdna_kernels/" + NAME + ".s", False, None, "-v" in sys.argv)
    print("vgprs", nv)
    build("k_prof.s", True)
    build("k_slow.s", False, {"forceslow": 1})
    import json
    for i, o in enumerate([x for x in sys.argv[1:] if x.startswith("{")]):
        build(f"k_prof{i+1}.s", True, json.loads(o))
```

```python
import re
TRANS = ("v_exp_f32","v_log_f32","v_rcp_f32","v_rsq_f32","v_sqrt_f32","v_sin_f32","v_cos_f32")
def regs(tok, kind):
    tok = tok.strip()
    tok = tok.lstrip("-|").rstrip("|")
    if tok.startswith("neg(") or tok.startswith("abs("): tok = tok[4:-1]
    m = re.fullmatch(kind + r"(\d+)", tok)
    if m: return {int(m.group(1))}
    m = re.fullmatch(kind + r"\[(\d+):(\d+)\]", tok)
    if m: return set(range(int(m.group(1)), int(m.group(2))+1))
    if kind == "s":
        if tok == "vcc": return {106, 107}
        if tok == "vcc_lo": return {106}
        if tok == "vcc_hi": return {107}
        if tok == "m0": return {124}
        if tok == "exec": return {126, 127}
        if tok == "exec_lo": return {126}
        if tok == "exec_hi": return {127}
    return set()
class I:
    def __init__(self, text):
        self.text = text
        t = text.split(";")[0].strip()
        p = t.split(None, 1)
        self.op = p[0]
        rest = p[1] if len(p) > 1 else ""
        ops = [o.strip() for o in rest.split(",")] if rest else []
        mods = ""
        if ops:
            j = ",".join(ops)
            m = re.search(r"\s(op_sel|op_sel_hi|neg_lo|neg_hi|offset|offen|lds|sc0|sc1|nt|cbsz|abid|blgp|quad_perm|row_|dst_sel|src0_sel|src1_sel|clamp|mul:|off\b|glc|wave_|bank_mask|bound_ctrl)", " " + j)
            if m:
                mods = j[max(0, m.start()-0):]; j = j[:max(0, m.start()-0)]
            ops = [o.strip() for o in j.split(",") if o.strip()]
        self.ops = ops; self.mods = mods
        op = self.op
        self.mfma = op.startswith("v_mfma") or op.startswith("v_smfmac")
        self.valu = op.startswith("v_") and not self.mfma
        self.ds = op.startswith("ds_")
        self.vmem = op.startswith("buffer_") or op.startswith("global_") or op.startswith("flat_")
        self.salu = op.startswith("s_")
        self.trans = op.replace("_e32","").replace("_e64","") in TRANS
        self.dpp = "quad_perm" in mods or "row_" in mods or "wave_" in mods
        self.sdwa_dst = "dst_sel" in mods and "dst_sel:DWORD" not in mods
        V = lambda k: regs(ops[k], "v") if k < len(ops) else set()
        S = lambda k: regs(ops[k], "s") if k < len(ops) else set()
        allv = lambda a: set().union(*[V(k) for k in range(a, len(ops))]) if len(ops) > a else set()
        alls = lambda a: set().union(*[S(k) for k in range(a, len(ops))]) if len(ops) > a else set()
        self.vd = set(); self.vs = set(); self.sd = set(); self.ss = set(); self.C = set(); self.AB = set(); self.stdata = set()
        self.passes = 0
        if self.mfma:
            self.vd = V(0)
            if op.startswith("v_smfmac"):
                self.AB = V(1) | V(2) | V(3); self.C = V(0)
            else:
                self.AB = V(1) | V(2); self.C = V(3)
            self.vs = self.AB | self.C
            self.passes = 16 if "_2b" in op else 8 if "32x32" in op else 4
        elif self.valu:
            if op.startswith("v_permlane") and "swap" in op:
                self.vd = V(0) | V(1); self.vs = V(0) | V(1)
            elif op.startswith("v_cmp"):
                self.sd = S(0); self.vs = allv(1); self.ss = alls(1)
                if op.startswith("v_cmpx"): self.sd |= {126,127}
            elif op.startswith("v_readfirstlane") or op.startswith("v_readlane"):
                self.sd = S(0); self.vs = allv(1); self.ss = alls(1)
            elif "_co_" in op:
                self.vd = V(0); self.sd = S(1); self.vs = allv(2); self.ss = alls(2)
            else:
                self.vd = V(0); self.vs = allv(1); self.ss = alls(1)
                if op.startswith("v_fmac") or op.startswith("v_pk_fmac") or op.startswith("v_writelane") or self.dpp or self.sdwa_dst: self.vs |= V(0)
        elif self.ds:
            if op.startswith("ds_read") or "rtn" in op or "permute" in op or "swizzle" in op:
                self.vd = V(0); self.vs = allv(1)
            else:
                self.vs = allv(0)
        elif self.vmem:
            self.ss = alls(0)
            if "lds" in mods.split() or "_lds_" in op:
                self.vs = allv(0); self.ss |= {124}; self.ldsdma = True
            elif "load" in op:
                self.vd = V(0); self.vs = allv(1)
            elif op.startswith("buffer_store") or op.startswith("buffer_atomic"):
                self.vs = allv(0)
                if "x3" in op or "x4" in op: self.stdata = V(0)
                if "atomic" in op and "sc0" in mods: self.vd = V(0)
            else:
                self.vs = allv(0)
                if "x3" in op or "x4" in op: self.stdata = V(1)
        elif self.salu:
            if op.startswith("s_cmp") or op.startswith("s_cbranch") or op.startswith("s_bitcmp") or op in ("s_waitcnt","s_nop","s_barrier","s_branch","s_endpgm","s_setprio","s_sleep"):
                self.ss = alls(0)
            else:
                self.sd = S(0); self.ss = alls(1)
                if "saveexec" in op: self.sd |= {126,127}
    def states(self):
        if self.op == "s_nop": return int(self.ops[0], 0) + 1
        return 1
def need(p, c):
    n = 0
    if p.valu:
        if c.mfma and (p.vd & c.vs): n = max(n, 2)
        if c.mfma and (p.sd & {126,127}): n = max(n, 4)
        if p.trans and c.valu and not c.trans and (p.vd & c.vs): n = max(n, 1)
        if p.trans and (c.ds or c.vmem) and (p.vd & c.vs): n = max(n, 1)
        if c.valu and (c.op.startswith("v_readfirstlane") or c.op.startswith("v_readlane")) and (p.vd & c.vs): n = max(n, 1)
        if c.valu and c.op.startswith("v_permlane") and (p.vd & c.vs): n = max(n, 2)
        if c.valu and c.dpp and (p.vd & c.vs): n = max(n, 2)
        if c.vmem and (p.sd & c.ss): n = max(n, 5)
        if c.valu and (p.sd & c.ss): n = max(n, 2)
        if c.valu and c.op.startswith("v_cndmask") and len(c.ops) < 4 and (p.sd & {106,107}): n = max(n, 2)
        if c.valu and (c.op.startswith("v_readlane") or c.op.startswith("v_writelane")) and (p.sd & c.ss): n = max(n, 4)
        if (p.sd & {126,127}) and c.valu and (c.dpp): n = max(n, 5)
        if (p.sd & {126,127}) and c.valu and (c.op.startswith("v_read") or c.op.startswith("v_permlane")): n = max(n, 4)
        if (p.sdwa_dst or "op_sel" in p.mods and not p.op.startswith("v_pk")) and c.valu and (p.vd & (c.vs | c.vd)): n = max(n, 1)
    if p.mfma:
        big = p.passes + 4
        if c.mfma:
            if p.vd & c.AB: n = max(n, big)
            if p.vd & c.C and not (p.vd == c.C and p.passes == c.passes): n = max(n, p.passes + 2)
            if p.vd & c.vd and not (p.vd & c.C): n = max(n, 0)
        elif c.valu or c.ds or c.vmem:
            if p.vd & (c.vs | c.vd): n = max(n, big)
            if c.valu and (p.C & c.vd): n = max(n, p.passes - 1)
            if (c.ds or c.vmem) and (p.C & c.vd): n = max(n, p.passes - 1)
    if p.salu and 124 in p.sd and c.vmem and getattr(c, "ldsdma", False): n = max(n, 1)
    if p.stdata:
        if c.valu and (p.stdata & c.vd): n = max(n, 2)
        elif (p.stdata & c.vd): n = max(n, 1)
    return n
def fix(lines, verbose=True):
    out = []; hist = []
    ins = 0
    for ln in lines:
        t = ln.strip()
        if not t or t.startswith(";") or t.startswith(".") or t.endswith(":"):
            out.append(ln); continue
        c = I(t)
        dist = 0; req = 0; who = None; d2 = 0; nxt = c
        for p in reversed(hist):
            r = need(p, c) - (d2 if p.passes == 16 else dist)
            if r > req: req = r; who = p
            dist += p.states()
            d2 += p.states() + (1 if p.valu and p.trans and (nxt.valu or nxt.mfma) else 0)
            nxt = p
            if dist >= 20: break
        if req > 0:
            ins += 1
            if verbose: print(f"hz: +{req} before '{t}' due to '{who.text}'")
            k = req
            while k > 0:
                m = min(k, 16)
                out.append(f"    s_nop {m-1}"); hist.append(I(f"s_nop {m-1}")); k -= m
        out.append(ln); hist.append(c)
        if c.op in ("s_branch", "s_endpgm"): hist = []
    return out
```

```python
import sys, os
sys.path.insert(0, os.path.dirname(os.path.abspath(__file__)))
from asmlib import *
import hz
NAME = "concat_heads__grouped_kv_mqa__ssm_conv_s4__prompt"
WS_TAG=0; WS_FKV=0x1000; WS_FU=0x18000; WS_FY=0x8000; WS_FO=0x10000
WS_KV=0x20000; GRP=10496; CHUNK=21504
WS_O=0x400000; WS_OB=0x400000; WS_UT=0x300000; UTP=8448; WS_YT=0x900000; WS_PROF=0xC00000; WS_SIZE=0x1000000
L_X=21504; L_CNT=103424; L_WK=103552; L_SC=103552; SCP=8448; L_WO=2048; L_U=104448; UP=9216; L_Y=141312; L_C2=104448; L_XR=137344; L_KR=145408; KRP=4608; LDS_TOTAL=163840
sW=3; sG=4; sS=5; sTag=6; sT=7
sX=8; sWQ=12; P=16
pX,pWQ,pWK,pWV,pWO,pU,pAre,pAim,pBre,pBim,pCre,pCim,pLdt,pDs,pOut,pDbg,pWS = [16+2*i for i in range(17)]
sWS=52; sA=56
sT2=50; sT3=51; sC=60; sSlotN=61; sGo=62; sSlotD=63; sBound=64; sCh=65; sU0=66; sH=67; sT4=68; sT5=69
sPr=70
SPIN = 200000

def gen(prof=False, opt=None):
    opt = opt or {}
    a = Asm()
    uid = [0]
    def lab(p="L"):
        uid[0] += 1; return f"{p}_{uid[0]}"
    np_ = {"a": 0, "h": 0}
    phase = ["pro"]
    probe = opt.get("probe")
    SAME = opt.get("same", 0)
    def stamp(role, extra=False):
        if probe and role == "a" and not extra:
            if np_["a"] == probe[0]: a("s_memrealtime s[72:73]")
            np_["a"] += 1
        if not prof: return
        if role == "a" and opt.get("tailprof"):
            if phase[0] == "pro": return
        elif extra: return
        i = np_[role]; np_[role] += 1
        assert i < 14
        a(f"{'s_memtime' if opt.get('cyc') else 's_memrealtime'} s[{sPr+2*i}:{sPr+2*i+1}]")
    def prof_store(role, vt):
        if not prof: return
        a("s_waitcnt lgkmcnt(0)")
        a(f"s_lshl_b32 s{sT}, s2, 3"); a(f"s_add_u32 s{sT}, s{sT}, s{sW}"); a(f"s_lshl_b32 s{sT}, s{sT}, 6")
        a(f"s_add_u32 s{sT}, s{sT}, {WS_PROF}")
        a("s_mov_b64 exec, 1")
        a(f"v_mov_b32 v{vt+1}, 0")
        for i in range(np_[role]):
            a(f"v_mov_b32 v{vt}, s{sPr+2*i}")
            a(f"buffer_store_dword v{vt}, v{vt+1}, s[{sWS}:{sWS+3}], s{sT} offen offset:{4*i}")
        a("s_waitcnt vmcnt(0)")
    def poll(vP, vOff, soff, n=1, sleep=0):
        L = lab("poll"); D = lab("pdone")
        a(f"s_mov_b32 s{sBound}, {SPIN}")
        if sleep:
            L0 = lab("poll0"); a(f"s_branch {L0}")
        a(f"{L}:")
        if sleep:
            a(f"s_sleep {sleep}"); a(f"{L0}:")
        a(f"buffer_load_dword{'' if n==1 else 'x'+str(n)} {v(vP,n)}, v{vOff}, s[{sWS}:{sWS+3}], {soff} offen sc1")
        a(f"s_sub_u32 s{sBound}, s{sBound}, 1")
        a(f"s_cbranch_scc1 {D}")
        a("s_waitcnt vmcnt(0)")
        if n == 4:
            for i in range(4): a(f"v_xor_b32 v{vP+i}, s{sTag}, v{vP+i}")
            a(f"v_or3_b32 v{vP}, v{vP}, v{vP+1}, v{vP+2}")
            a(f"v_or_b32 v{vP}, v{vP}, v{vP+3}")
            a(f"v_cmp_ne_u32 vcc, 0, v{vP}")
        else:
            a(f"v_cmp_ne_u32 vcc, s{sTag}, v{vP}")
        a(f"s_cbranch_vccnz {L}")
        a(f"{D}:")
    def publish(vt, base, widx):
        a(f"s_lshl_b32 s{sT}, s2, 7"); a(f"s_lshl_b32 s{sT2}, s{widx}, 2"); a(f"s_add_u32 s{sT}, s{sT}, s{sT2}")
        a(f"s_add_u32 s{sT}, s{sT}, {base}")
        a(f"v_mov_b32 v{vt}, s{sTag}")
        a("s_mov_b64 exec, 1")
        a(f"buffer_store_dword v{vt}, off, s[{sWS}:{sWS+3}], s{sT} sc1")
        a("s_mov_b64 exec, -1")
    def ring_dma(wreg, vDma):
        for k in range(2):
            Lk = lab("dma")
            if k == 1:
                a(f"s_cmp_ge_u32 s{wreg}, 3"); a(f"s_cbranch_scc1 {Lk}")
            a(f"s_mul_i32 s{sT}, s{wreg}, 3072")
            if k: a(f"s_add_u32 s{sT}, s{sT}, {4*3072}")
            a(f"s_add_u32 m0, s{sT}, s{sSlotD}")
            a(f"s_add_u32 s{sT}, s{sT}, s{sGo}")
            for i in range(3):
                a(f"buffer_load_dwordx4 v{vDma}, s[{sWS}:{sWS+3}], s{sT} offen offset:{i*1024} sc1 lds")
            if k == 1: a(f"{Lk}:")
        a(f"s_add_u32 s{sGo}, s{sGo}, {CHUNK}")
        a(f"s_cmp_eq_u32 s{sGo}, {WS_KV+8*CHUNK}")
        a(f"s_cselect_b32 s{sGo}, {WS_KV}, s{sGo}")
        a(f"s_xor_b32 s{sSlotD}, s{sSlotD}, {CHUNK}")
    def wpattern(vP, vL, vt, perm):
        for p in range(5):
            a(f"v_add_u32 v{vt}, {64*p}, v{vL}")
            a(f"v_mul_u32_u24 v{vt+1}, 205, v{vt}")
            a(f"v_lshrrev_b32 v{vt+1}, 11, v{vt+1}")
            a(f"v_mul_u32_u24 v{vt+2}, 10, v{vt+1}")
            a(f"v_sub_u32 v{vt}, v{vt}, v{vt+2}")
            if perm:
                a(f"v_lshrrev_b32 v{vt+2}, 1, v{vt+1}")
                a(f"v_and_b32 v{vt+2}, 4, v{vt+2}")
                a(f"v_xor_b32 v{vt+1}, v{vt+1}, v{vt+2}")
            a(f"v_mul_u32_u24 v{vt+1}, 80, v{vt+1}")
            a(f"v_add_u32 v{vt}, v{vt}, v{vt+1}")
            if 0 < p < 4: a(f"v_subrev_u32 v{vt}, {64*p}, v{vt}")
            a(f"v_lshlrev_b32 v{vP+p}, 4, v{vt}")
    def wkstep_dma(vP, srd_, soff):
        for p in range(4):
            a(f"buffer_load_dwordx4 v{vP+p}, s[{srd_}:{srd_+3}], s{soff} offen offset:{p*1024} lds")
        a("s_add_u32 m0, m0, 4096")
        a(f"buffer_load_dwordx4 v{vP+4}, s[{srd_}:{srd_+3}], s{soff} offen lds")
        a("s_add_u32 m0, m0, 1024")

    if prof:
        a(f"{'s_memtime' if opt.get('cyc') else 's_memrealtime'} s[{sPr}:{sPr+1}]"); np_["a"] = np_["h"] = 1
    if probe: a("s_memrealtime s[70:71]"); np_["a"] = 1
    a("s_cmp_ge_u32 s2, 256")
    a("s_cbranch_scc1 L_end")
    a("s_load_dwordx16 s[16:31], s[0:1], 0")
    a("s_load_dwordx16 s[32:47], s[0:1], 64")
    a("s_load_dwordx2 s[48:49], s[0:1], 128")
    vL = 1
    a("v_lshrrev_b32 v2, 6, v0")
    a(f"v_and_b32 v{vL}, 63, v0")
    a(f"v_readfirstlane_b32 s{sW}, v2")
    if opt.get("codepf", 1):
        a("s_getpc_b64 s[50:51]")
        if opt.get("codepf", 1) == 1:
            a("s_lshr_b32 s4, s2, 3"); a("s_lshl_b32 s4, s4, 7")
            a("v_lshl_add_u32 v3, v2, 12, s4")
            a(f"v_lshl_add_u32 v3, v{vL}, 15, v3")
            a("v_min_u32 v3, CODE_BYTES, v3")
            a("s_mov_b64 exec, 3")
            a("global_load_dword v4, v3, s[50:51]")
            a("s_mov_b64 exec, -1")
        else:
            a("v_lshlrev_b32 v3, 7, v0")
            a("v_min_u32 v3, CODE_BYTES, v3")
            a("global_load_dword v4, v3, s[50:51]")
    a(f"s_and_b32 s{sG}, s2, 31")
    a(f"s_lshr_b32 s{sS}, s2, 5")
    a("v_mov_b32 v5, 0"); a("v_lshlrev_b32 v6, 2, v0"); a("v_and_b32 v6, 127, v6"); a(f"v_add_u32 v6, {L_CNT}, v6")
    a("ds_write_b32 v6, v5")
    a(f"s_cmp_ge_u32 s{sW}, 4")
    a("s_cbranch_scc1 L_helper")
    NPF = 1 if opt.get("codepf", 1) else 0

    R = Regs(5)
    vT = R(4, 4); vDma = R(); vCnt = R(); vOne = R(); vPo = R(); vPv = R()
    vX0 = R(); vX1 = R(); vP = R(5)
    a(f"v_lshrrev_b32 v{vT}, 3, v{vL}")
    a(f"v_lshrrev_b32 v{vT+1}, 4, v{vL}")
    a(f"v_xor_b32 v{vT+1}, v{vT+1}, v{vL}")
    a(f"v_and_b32 v{vT+1}, 7, v{vT+1}")
    a(f"v_mul_u32_u24 v{vT}, 80, v{vT}")
    a(f"v_add_u32 v{vT}, v{vT}, v{vT+1}")
    a(f"v_lshlrev_b32 v{vX0}, 4, v{vT}")
    a(f"v_xor_b32 v{vX1}, 64, v{vX0}")
    a(f"v_add_u32 v{vX1}, 10240, v{vX1}")
    a(f"s_lshl_b32 s{sT}, s{sG}, 2"); a(f"s_add_u32 s{sT}, s{sT}, s{sW}"); a(f"s_mul_i32 s{sT2}, s{sT}, 20480")
    a(f"s_mul_i32 s{sT3}, s{sW}, 20480"); a(f"s_add_u32 s{sT3}, s{sT3}, {L_X}")
    a(f"v_lshlrev_b32 v{vDma}, 4, v{vL}")
    sI = sCh; sXo = sU0; sWo = sH
    a(f"s_lshr_b32 s{sI}, s{sG}, 3"); a(f"s_add_u32 s{sI}, s{sI}, s{sS}")
    if not opt.get("rot", 1): a(f"s_mov_b32 s{sI}, 0")
    for _ in range(2):
        a(f"s_sub_u32 s{sC}, s{sI}, 5"); a(f"s_cselect_b32 s{sI}, s{sI}, s{sC}")
    a(f"s_mul_i32 s{sT4}, s{sS}, 160")
    a(f"s_lshl_b32 s{sXo}, s{sI}, 8"); a(f"s_add_u32 s{sXo}, s{sXo}, s{sT2}"); a(f"s_add_u32 s{sC}, s{sT2}, 1280")
    a(f"s_mul_i32 s{sSlotN}, s{sW}, 6144"); a(f"s_add_u32 s{sSlotN}, s{sSlotN}, {L_XR}")
    wpattern(vP, vL, vT, True)
    a("s_waitcnt lgkmcnt(0)")
    srd(a, sX, pX, 2048*1280)
    srd(a, sWQ, pWQ, 640*1280)
    a(f"s_cmp_ge_u32 s{sS}, 2")
    a("s_barrier")
    stamp("a")
    Lnokv = lab("nokv"); Lw1 = lab("w1")
    a(f"s_cbranch_scc1 {Lnokv}")
    def xpieces(js, soff):
        for j in js:
            a(f"buffer_load_dwordx4 v{vX0}, s[{sX}:{sX+3}], s{soff} offen offset:{128*j} lds")
            a("s_add_u32 m0, m0, 1024")
            a(f"buffer_load_dwordx4 v{vX1}, s[{sX}:{sX+3}], s{soff} offen offset:{128*j} lds")
            if j != js[-1]: a("s_add_u32 m0, m0, 896")
    NX0 = opt.get("nx0", 6)
    a(f"s_mov_b32 m0, s{sT3}")
    NXA = opt.get("nxa", 3)
    xpieces(list(range(NXA)), sT2)
    a(f"s_mov_b32 s{sSlotN}, s{sT3}")
    a(f"s_branch {Lw1}")
    a(f"{Lnokv}:")
    sXe = sC; sXr = sSlotN
    def gx(js):
        for j in js:
            a(f"s_add_u32 m0, s{sXr}, {2048*(j%3)}")
            xpieces([0], sXo)
            a(f"s_add_u32 s{sXo}, s{sXo}, 128"); a(f"s_cmp_eq_u32 s{sXo}, s{sXe}"); a(f"s_cselect_b32 s{sXo}, s{sT2}, s{sXo}")
    def gw(i):
        a(f"s_lshl_b32 s{sWo}, s{sI}, 2"); a(f"s_add_u32 s{sWo}, s{sWo}, s{sW}"); a(f"s_mul_i32 s{sWo}, s{sWo}, 40960"); a(f"s_add_u32 s{sWo}, s{sWo}, s{sT4}")
        if i == 0: a(f"s_mul_i32 m0, s{sW}, 5120")
        else: a(f"s_add_u32 m0, s{sT3}, {5120*(i-1)}")
        wkstep_dma(vP, sWQ, sWo)
        a(f"s_add_u32 s{sI}, s{sI}, 1"); a(f"s_cmp_eq_u32 s{sI}, 5"); a(f"s_cselect_b32 s{sI}, 0, s{sI}")
    gx([0, 1, 2])
    if opt.get("w0early", 0): gw(0)
    a(f"{Lw1}:")
    a(f"s_load_dword s{sTag}, s[{pWS}:{pWS+1}], {WS_TAG}")
    srd(a, sWS, pWS, WS_SIZE)
    vXr = R(2); vAB = R(2); vE = R(2); vAB2 = R(2); vE2 = R(2)
    a(f"v_and_b32 v{vT}, 15, v{vL}")
    a(f"v_lshrrev_b32 v{vT+1}, 4, v{vL}")
    a(f"v_lshrrev_b32 v{vT+2}, 1, v{vT}")
    a(f"v_xor_b32 v{vT+2}, v{vT+2}, v{vT+1}")
    a(f"v_lshlrev_b32 v{vT+2}, 4, v{vT+2}")
    a(f"v_lshlrev_b32 v{vT}, 7, v{vT}")
    a(f"v_add3_u32 v{vXr}, v{vT}, v{vT+2}, s{sSlotN}")
    a(f"v_xor_b32 v{vXr+1}, 64, v{vXr}")
    a(f"v_bfe_u32 v{vT}, v{vL}, 2, 2")
    a(f"v_lshl_add_u32 v{vT}, v{vT+1}, 3, v{vT}")
    vKM = 19; vKE = 25; assert vP == 20 and vXr == 26
    a(f"v_mul_u32_u24 v{vT+2}, 40, v{vT}")
    a(f"v_add_u32 v{vKE}, {L_WK+32}, v{vT+2}")
    a(f"v_and_b32 v{vT+3}, 3, v{vL}")
    a(f"v_lshl_add_u32 v{vT+2}, v{vT+3}, 3, v{vT+2}")
    a(f"v_add_u32 v{vKM}, {L_WK}, v{vT+2}")
    a(f"v_and_b32 v{vT+2}, 1, v{vT+1}")
    a(f"v_lshl_add_u32 v{vT}, v{vT+2}, 2, v{vT}")
    a(f"v_xor_b32 v{vT+2}, 4, v{vT}")
    a(f"v_mul_u32_u24 v{vT}, 160, v{vT}")
    a(f"v_mul_u32_u24 v{vT+2}, 160, v{vT+2}")
    a(f"v_mul_u32_u24 v{vT+3}, 40, v{vT+3}")
    a(f"v_add3_u32 v{vE2}, v{vT}, v{vT+3}, 32"); a(f"v_add3_u32 v{vE2+1}, v{vT+2}, v{vT+3}, 32")
    a(f"v_and_b32 v{vT+3}, 1, v{vL}")
    a(f"v_mul_u32_u24 v{vT+3}, 40, v{vT+3}")
    a(f"v_and_b32 v{vT+1}, 2, v{vL}")
    a(f"v_lshl_add_u32 v{vT+3}, v{vT+1}, 3, v{vT+3}")
    a(f"v_add_u32 v{vAB2}, v{vT}, v{vT+3}"); a(f"v_add_u32 v{vAB2+1}, v{vT+2}, v{vT+3}")
    for x, y in ((vAB2, vAB), (vAB2+1, vAB+1), (vE2, vE), (vE2+1, vE+1)):
        a(f"v_add_u32 v{y}, 51200, v{x}")
    vSig = 7
    a(f"v_mov_b32 v{vCnt}, {L_CNT}"); a(f"v_mov_b32 v{vOne}, 1")
    a(f"v_min_u32 v{vSig}, 1, v{vL}"); a(f"v_mul_u32_u24 v{vSig}, {LDS_TOTAL-L_CNT}, v{vSig}"); a(f"v_add_u32 v{vSig}, {L_CNT}, v{vSig}")
    a(f"s_and_b32 s{sT}, s{sG}, 28"); a(f"s_add_u32 s{sT}, s{sT}, s{sW}")
    FE = opt.get("fearly", 2)
    if FE == 3:
        a(f"v_bfe_u32 v{vT+1}, v{vL}, 3, 1"); a(f"v_lshl_add_u32 v{vT+1}, v{vT+1}, 2, s{sT}"); a(f"v_and_b32 v{vT+1}, 31, v{vT+1}")
    else: a(f"v_mov_b32 v{vT+1}, s{sT}")
    a(f"v_and_b32 v{vT+2}, 4, v{vL}"); a(f"v_lshl_add_u32 v{vT+1}, v{vT+2}, 3, v{vT+1}")
    a(f"v_lshlrev_b32 v{vT+1}, 5, v{vT+1}"); a(f"v_and_b32 v{vT+2}, 3, v{vL}"); a(f"v_add_u32 v{vT+1}, v{vT+1}, v{vT+2}")
    a(f"v_lshlrev_b32 v{vPo}, 2, v{vT+1}"); a(f"v_add_u32 v{vPo}, {WS_FKV}, v{vPo}")
    def tagfix(): a(f"s_mul_i32 s{sTag}, s{sTag}, 1664525"); a(f"s_add_u32 s{sTag}, s{sTag}, 1013904223")
    def lsig(k):
        a(f"ds_add_u32 v{vSig}, v{vOne} offset:{4*k}")
    def lwait(k, n=4):
        L = lab("ls"); D = lab("lsd")
        a(f"s_mov_b32 s{sBound}, {SPIN*4}")
        a(f"{L}:")
        a(f"ds_read_b32 v{vT}, v{vCnt} offset:{4*k}")
        a(f"s_sub_u32 s{sBound}, s{sBound}, 1"); a(f"s_cbranch_scc1 {D}")
        a("s_waitcnt lgkmcnt(0)")
        a(f"v_cmp_gt_u32 vcc, {n}, v{vT}")
        a(f"s_cbranch_vccnz {L}")
        a(f"{D}:")
    XF = R(80, 4); ACC = R(20, 4); WF = [R(20, 4), R(20, 4), R(20, 4)]
    assert R.p == 196 and ACC == 116
    RA = Regs(20)
    NB = 4
    Q1 = [RA(4, 4) for _ in range(2)]; Q2a = [RA(2) for _ in range(2)]; Q2b = [RA(2) for _ in range(2)]
    C = [RA(16, 4) for _ in range(2)]
    K1 = [RA(4, 4) for _ in range(2)]; K2 = [RA(4, 4) for _ in range(2)]
    V0 = [RA(4, 4) for _ in range(2)]; V1 = [RA(4, 4), 236]
    assert RA.p <= ACC
    S = [140+16*i for i in range(NB)]; O = [204, 220]
    vK0, vV0, vK, vV, vIdx = range(240, 245); RA.hi = 245
    vLow = 245
    a(f"v_mov_b32 v{vLow}, 0x30800000")
    a(f"v_mov_b32 v{vIdx}, 0xdddd")
    a(f"v_mov_b32 v{vK0}, v{vDma}")
    a(f"v_and_b32 v{vT+2}, 31, v{vL}"); a(f"v_min_u32 v{vT+2}, 20, v{vT+2}"); a(f"v_lshlrev_b32 v{vT+2}, 4, v{vT+2}")
    a(f"v_lshrrev_b32 v{vT+3}, 5, v{vL}"); a(f"v_mul_u32_u24 v{vT+3}, 336, v{vT+3}")
    a(f"v_add_u32 v{vV0}, v{vT+2}, v{vT+3}"); a(f"v_add_u32 v{vV0}, 5120, v{vV0}")
    a("s_mov_b32 exec_lo, 0xeef00000"); a("s_mov_b32 exec_hi, 0xeef00000")
    a(f"v_mov_b32 v{vV0}, {LDS_TOTAL}")
    a("s_mov_b64 exec, -1")
    a(f"v_mov_b32 v{vK}, v{vK0}"); a(f"v_mov_b32 v{vV}, v{vV0}")
    for i in range(196, 240): a(f"v_mov_b32 v{i}, 0")
    import struct
    cbits = struct.unpack("<I", struct.pack("<f", (20**-0.5)*1.4426950408889634))[0]
    if opt.get("qprio", 1): a("s_setprio 2")
    def xrd(k, off): return f"ds_read_b128 {v(XF+4*k,4)}, v{vXr+(k&1)} offset:{off}"
    class Q:
        def __init__(self, name, cap_): self.q = []; self.name = name; self.cap = cap_
        def add(self, tag, n=1): self.q += [tag]*n
        def wait(self, *tags):
            idx = [i for i, t in enumerate(self.q) if t in tags]
            if not idx: return
            n = len(self.q) - 1 - max(idx)
            a(f"s_waitcnt {self.name}({min(n, self.cap)})")
            self.q = self.q[len(self.q)-min(n, self.cap):]
    def xstream(mm, post, DS):
        for j in range(11):
            n = 0
            if j < 10:
                a(f"s_waitcnt vmcnt({2*(min(10, j+NX0)-j-1)})")
                a(xrd(2*j, 2048*j)); a(xrd(2*j+1, 2048*j)); DS.add(("x", j), 2)
                if j+NX0 < 10:
                    a(f"s_add_u32 m0, s{sT3}, {1920*(j+NX0)}")
                    xpieces([j+NX0], sXo)
            if j >= 1:
                DS.wait(("x", j-1), ("k", 2*j-2), ("k", 2*j-1))
                mm(2*j-2); mm(2*j-1)
                post(j)
    def qrd(addr, buf):
        hi = addr >= 51200
        off = addr - (51200 if hi else 0)
        r = []
        for t5 in range(5):
            for t in range(2):
                if t5 < 4: r.append(f"ds_read_b64_tr_b16 {v(buf+4*t5+2*t,2)}, v{(vAB if hi else vAB2)+t} offset:{off+80*(t5>>1)+8*(t5&1)}")
                else: r.append(f"ds_read_b64_tr_b16 {v(buf+16+2*t,2)}, v{(vE if hi else vE2)+t} offset:{off}")
        return r
    def cap(fn):
        keep = a.lines; a.lines = []
        fn()
        got = a.lines; a.lines = keep
        gr = [[]]
        for l in got:
            gr[-1].append(l)
            if "exec_hi, -1" in l and len(gr) > 1 and len(gr[-1]) == 1: gr[-2].append(gr[-1].pop())
            if "buffer_load" in l: gr.append([])
        if len(gr) > 1:
            t_ = gr.pop(); gr[-1] += t_
        return gr
    spins = []
    def qpipe(ks, VM, dma, hook):
        DS = Q("lgkmcnt", 15)
        for n in range(2):
            for x in qrd(ks[n][1], WF[n]): a(x)
            DS.add(("w", n), 10)
        for n, (k, _) in enumerate(ks):
            buf = WF[n % 3]
            nx = qrd(ks[n+2][1], WF[(n+2) % 3]) if n+2 < len(ks) else []
            hook(n, DS)
            DS.wait(("w", n), ("x", k//2))
            chk = n % 4 == 2 and nx
            per = [0, 0, 4, 3, 3] if chk else [2]*5
            for t5 in range(5):
                if not opt.get("noq"): a(f"v_mfma_f32_16x16x32_bf16 {v(ACC+4*t5,4)}, {v(buf+4*t5,4)}, {v(XF+4*k,4)}, {'0' if n==0 else v(ACC+4*t5,4)}")
                if chk and t5 == 2:
                    Ls = lab("spin"); Lb = lab("back")
                    DS.wait("chk")
                    a(f"v_cmp_gt_u32 vcc, 4, v{vT}"); a(f"s_cbranch_vccnz {Ls}"); a(f"{Lb}:")
                    spins.append((Ls, Lb, CW[n//4+1]))
                for x in nx[sum(per[:t5]):sum(per[:t5+1])]: a(x); DS.add(("w", n+2))
                for tag, dep, lines in dma.get(5*n+t5, []):
                    if dep is not None: DS.wait(dep)
                    for x in lines: a(x)
                    VM.add(tag)
            if n % 4 == 1 and n+3 < len(ks):
                a(f"ds_read_b32 v{vT}, v{vCnt} offset:{4*CW[n//4+1]}"); DS.add("chk")
    def pload(): a(f"buffer_load_dword v{vPv}, v{vPo}, s[{sWS}:{sWS+3}], 0 offen sc1")
    def gate():
        a(f"v_cmp_ne_u32 vcc, s{sTag}, v{vPv}")
        a(f"s_mov_b64 s[{sA}:{sA+1}], s[{sWS}:{sWS+1}]"); a(f"s_mov_b32 s{sA+3}, s{sWS+3}")
        a("s_cmp_eq_u64 vcc, 0")
        a(f"s_cselect_b32 s{sA+2}, s{sWS+2}, 0"); a(f"s_cselect_b32 s{sSlotD}, 1, 0")
    def own_dma(slot, sWS=sWS):
        a(f"s_lshr_b32 s{sGo}, s{sG}, 2"); a(f"s_mul_i32 s{sGo}, s{sGo}, {CHUNK}"); a(f"s_add_u32 s{sGo}, s{sGo}, {WS_KV}")
        a(f"s_lshr_b32 s{sT}, s{sW}, 1"); a(f"s_mul_i32 s{sT}, s{sT}, {GRP}"); a(f"s_and_b32 s{sT2}, s{sW}, 1")
        for mul, add, parts in ((2048, 0, [(0, None), (1024, None)]), (512, 4096, [(0, (-1, 0))]), (2688, 5120, [(0, None), (1024, None), (2048, (-1, 0xff))])):
            a(f"s_mul_i32 s{sT5}, s{sT2}, {mul}"); a(f"s_add_u32 s{sT5}, s{sT5}, s{sT}")
            a(f"s_add_u32 m0, s{sT5}, {slot+add}")
            a(f"s_add_u32 s{sT5}, s{sT5}, s{sGo}")
            if add: a(f"s_add_u32 s{sT5}, s{sT5}, {add}")
            for off, ex in parts:
                if ex: a(f"s_mov_b32 exec_hi, {ex[1]}")
                a(f"buffer_load_dwordx4 v{vDma}, s[{sWS}:{sWS+3}], s{sT5} offen offset:{off} sc1 lds")
                if ex: a("s_mov_b32 exec_hi, -1")
    vO8, vWm, vWl = 246, 247, 248
    def tail_addr():
        a(f"v_bfe_u32 v{vT}, v{vL}, 2, 2")
        a(f"v_bfe_u32 v{vT+1}, v{vL}, 4, 1")
        a(f"v_mul_u32_u24 v{vT+1}, 20, v{vT+1}"); a(f"v_add_u32 v{vT}, v{vT}, v{vT+1}")
        a(f"v_lshrrev_b32 v{vT+1}, 5, v{vL}")
        a(f"v_mul_u32_u24 v{vT+2}, 40, v{vT+1}"); a(f"v_add3_u32 v{vT+2}, v{vT+2}, v{vT}, 16")
        a(f"v_lshl_add_u32 v{vT}, v{vT+1}, 2, v{vT}")
        a(f"v_and_b32 v{vT+1}, 3, v{vL}"); a(f"v_mul_u32_u24 v{vT+1}, 40, v{vT+1}"); a(f"v_add_u32 v{vT+1}, {L_WO+51200}, v{vT+1}")
        a(f"v_mul_u32_u24 v{vT}, 160, v{vT}"); a(f"v_add_u32 v{vWm}, v{vT}, v{vT+1}")
        a(f"v_mul_u32_u24 v{vT+2}, 160, v{vT+2}"); a(f"v_add_u32 v{vWl}, v{vT+2}, v{vT+1}")
        a(f"v_lshlrev_b32 v{vO8}, 3, v{vL}")
    CW = [1, 2, 5, 6, 7]
    a(f"s_mov_b32 s{sSlotD}, 0")
    Lq = lab("qonly"); Lj = lab("join")
    a(f"s_cmp_ge_u32 s{sS}, 2")
    a(f"s_cbranch_scc1 {Lq}")
    KW = ACC + 12; NKW = (196 - KW)//8
    def kvrd(k):
        b = KW + 8*(k % NKW)
        return [f"ds_read_b64_tr_b16 {v(b+2*t,2)}, v{vKM} offset:{1280*k+160*t}" for t in range(2)] + \
               [f"ds_read_b64_tr_b16 {v(b+4+2*t,2)}, v{vKE} offset:{1280*k+160*t}" for t in range(2)]
    a(f"s_mov_b32 s{sXo}, s{sT2}")
    a(f"s_add_u32 m0, s{sT3}, {1920*NXA}")
    xpieces(list(range(NXA, NX0)), sXo)
    a(f"s_lshr_b32 s{sT}, s{sG}, 2"); a(f"s_mul_i32 s{sT}, s{sT}, {CHUNK}")
    a(f"s_bfe_u32 s{sT2}, s{sG}, 0x10001"); a(f"s_mul_i32 s{sT2}, s{sT2}, {GRP}")
    a(f"s_add_u32 s{sT}, s{sT}, s{sT2}"); a(f"s_add_u32 s{sGo}, s{sT}, {WS_KV}")
    a(f"s_and_b32 s{sT}, s{sG}, 1"); a(f"s_lshl_b32 s{sT}, s{sT}, 1"); a(f"s_lshr_b32 s{sT2}, s{sW}, 1"); a(f"s_add_u32 s{sC}, s{sT}, s{sT2}")
    a(f"s_and_b32 s{sT5}, s{sW}, 1")
    tail_addr()
    lwait(0)
    tagfix()
    stamp("a")
    NPRE = opt.get("npre", 4)
    for k in range(NPRE):
        for x in kvrd(k): a(x)
    def wsig():
        a(f"s_lshl_b32 s{sH}, s{sW}, 2"); a(f"v_add_u32 v{vT}, s{sH}, v{vCnt}")
        a("s_mov_b64 exec, 1"); a(f"ds_add_u32 v{vT}, v{vOne} offset:32"); a("s_mov_b64 exec, -1")
    def kvproj(isK):
        D1 = ACC; D2 = ACC+4
        DS = Q("lgkmcnt", 15)
        for k in range(NPRE): DS.add(("k", k), 4)
        def mm(k):
            b = KW + 8*(k % NKW)
            nx = kvrd(k+NPRE) if k+NPRE < 20 else []
            for D, o in ((D1, 0), (D2, 4)):
                A_, B_ = v(b+o,4), v(XF+4*k,4)
                if not isK: A_, B_ = B_, A_
                a(f"v_mfma_f32_16x16x32_bf16 {v(D,4)}, {A_}, {B_}, {'0' if k==0 else v(D,4)}")
                for x in nx[o//2:o//2+2]: a(x); DS.add(("k", k+NPRE))
        def post(j):
            if j == opt.get("kvt", -1): wsig(); DS.add("sig")
        xstream(mm, post, DS)
    LV = lab("isv"); LKd = lab("kvdone")
    a(f"s_cmp_eq_u32 s{sS}, 1"); a(f"s_cbranch_scc1 {LV}")
    def pack_swap():
        D1 = ACC; D2 = ACC+4
        a(f"v_cvt_pk_bf16_f32 v{ACC+8}, v{D1}, v{D1+1}"); a(f"v_cvt_pk_bf16_f32 v{ACC+9}, v{D1+2}, v{D1+3}")
        a(f"v_cvt_pk_bf16_f32 v{ACC+10}, v{D2}, v{D2+1}"); a(f"v_cvt_pk_bf16_f32 v{ACC+11}, v{D2+2}, v{D2+3}")
        a(f"v_permlane16_swap_b32 v{ACC+8}, v{ACC+10}")
        a(f"v_permlane16_swap_b32 v{ACC+9}, v{ACC+11}")
    a(f"v_and_b32 v{vT+2}, 15, v{vL}"); a(f"v_lshlrev_b32 v{vT+2}, 4, v{vT+2}")
    a(f"v_and_b32 v{vT+3}, 32, v{vL}"); a(f"v_lshl_add_u32 v{vT+3}, v{vT+3}, 4, v{vT+2}")
    a(f"s_lshl_b32 s{sT5}, s{sT5}, 8"); a(f"s_add_u32 s{sGo}, s{sGo}, s{sT5}")
    a(f"s_lshl_b32 s{sT}, s{sC}, 10"); a(f"s_add_u32 s{sT}, s{sT}, s{sGo}")
    a(f"s_lshr_b32 s{sT2}, s{sC}, 1"); a(f"s_lshl_b32 s{sT2}, s{sT2}, 9"); a(f"s_add_u32 s{sT2}, s{sT2}, s{sGo}")
    a(f"s_and_b32 s{sT5}, s{sC}, 1"); a(f"s_lshl_b32 s{sT5}, s{sT5}, 3"); a(f"s_add_u32 s{sT2}, s{sT2}, s{sT5}"); a(f"s_add_u32 s{sT2}, s{sT2}, 4096")
    kvproj(True)
    for i in range(8): a(f"v_mul_f32 v{ACC+i}, {cbits:#x}, v{ACC+i}")
    pack_swap()
    a("s_mov_b32 exec_lo, 0xffff"); a("s_mov_b32 exec_hi, 0xffff")
    a(f"buffer_store_dwordx4 {v(ACC+8,4)}, v{vT+3}, s[{sWS}:{sWS+3}], s{sT} offen sc1")
    a("s_mov_b32 exec_lo, 0xffff0000"); a("s_mov_b32 exec_hi, 0")
    a(f"buffer_store_dwordx2 {v(ACC+8,2)}, v{vT+2}, s[{sWS}:{sWS+3}], s{sT2} offen sc1")
    a(f"s_branch {LKd}")
    a(f"{LV}:")
    a(f"v_and_b32 v{vT+2}, 31, v{vL}"); a(f"v_lshlrev_b32 v{vT+2}, 4, v{vT+2}")
    a(f"v_lshrrev_b32 v{vT+3}, 5, v{vL}"); a(f"v_mul_u32_u24 v{vT+3}, 336, v{vT+3}"); a(f"v_add_u32 v{vT+3}, v{vT+3}, v{vT+2}")
    a(f"s_mul_i32 s{sT5}, s{sT5}, 672"); a(f"s_mul_i32 s{sT}, s{sC}, 1344"); a(f"s_add_u32 s{sT}, s{sT}, s{sT5}")
    a(f"s_add_u32 s{sT}, s{sT}, s{sGo}"); a(f"s_add_u32 s{sT}, s{sT}, 5120")
    kvproj(False)
    pack_swap()
    a("s_mov_b32 exec_lo, 0x100000"); a("s_mov_b32 exec_hi, 0x100000")
    for i in range(4): a(f"v_mov_b32 v{ACC+8+i}, 0x3f803f80")
    a("s_mov_b32 exec_lo, 0x1fffff"); a("s_mov_b32 exec_hi, 0x1fffff")
    a(f"buffer_store_dwordx4 {v(ACC+8,4)}, v{vT+3}, s[{sWS}:{sWS+3}], s{sT} offen sc1")
    a(f"{LKd}:")
    a("s_mov_b64 exec, -1")
    stamp("a")
    wsig()
    a("s_waitcnt vmcnt(0)")
    publish(vT, WS_FKV, sW)
    stamp("a")
    KVS = opt.get("kvs", 12)
    def kvslots(dma):
        for i_, gr in enumerate(cap(lambda: own_dma(0, sA))): dma.setdefault(5*KVS+3+2*i_, []).append(("kv", None, gr))
    def kvdone(DS):
        Lz = lab("z")
        DS.wait(("w", 19))
        a("s_waitcnt vmcnt(0)")
        a(f"s_cmp_eq_u32 s{sSlotD}, 0"); a(f"s_cbranch_scc1 {Lz}"); lsig(4); a(f"{Lz}:")
    def kvhook(n, DS):
        if n == 4: lsig(12); DS.add("sig")
        if n == 8: pload()
        if n == 12:
            stamp("a")
            lwait(12)
        if n == KVS: a("s_waitcnt vmcnt(0)"); gate()
        if n == 19: kvdone(DS)
    lwait(CW[0])
    dma = {}; kvslots(dma)
    qpipe([(16+w_, 5120*w_) if i == 0 else (4*w_+i-1, L_X + 5120*(4*w_+i-1)) for i in range(5) for w_ in range(4)], Q("vmcnt", 63), dma, kvhook)
    a(f"s_branch {Lj}")
    a(f"{Lq}:")
    if probe or prof and not opt.get("tailprof"): np_["a"] -= 4
    def xget(js):
        for j in js:
            for t in range(2): a(xrd(2*j+t, 2048*(j%3)))
    VM = Q("vmcnt", 63)
    VM.add("x012", 6); VM.add("W0", 5)
    if not opt.get("w0early", 0): gw(0)
    gw(1); VM.add("W1", 5)
    tail_addr()
    VM.wait("x012"); xget([0, 1, 2]); a("s_waitcnt lgkmcnt(0)")
    stamp("a")
    tagfix()
    gx([3, 4, 5]); VM.add("x345", 6)
    VM.wait("W0"); lsig(CW[0])
    dma = {}
    pos = [0]; DP = opt.get("dp", 2)
    def put(tag, fn, start=0, dep=None):
        pos[0] = max(pos[0], start)
        for gr in cap(fn):
            dma.setdefault(pos[0], []).append((tag, dep, gr)); pos[0] += DP
    XG2 = opt.get("xg2", 5)
    put("W2", lambda: gw(2)); put("x678", lambda: gx([6, 7, 8]), 8, ("x", 5)); put("W3", lambda: gw(3))
    put("x9", lambda: gx([9]), 5*XG2+3, ("x", 6)); put("W4", lambda: gw(4)); put("pl", pload, 5*opt.get("plstep", 8))
    kvslots(dma)
    def qhook(n, DS):
        def get(js):
            xget(js)
            for j in js: DS.add(("x", j), 2)
        later = {t for sl, l in dma.items() if sl >= 5*n for t, _, _ in l}
        assert not (n == XG2 and "x678" in later) and not (n == 13 and "x9" in later) and not (n % 4 == 1 and f"W{n//4+1}" in later) and not (n == KVS and "pl" in later) and not (n == 19 and later)
        if n == 1: VM.wait("x345"); get([3, 4, 5])
        if n == XG2: VM.wait("x678"); get([6, 7, 8])
        if n == 13: VM.wait("x9"); get([9])
        if n % 4 == 1 and n < 16:
            VM.wait(f"W{n//4+1}"); lsig(CW[n//4+1]); DS.add("sig")
        if n in (4, 12, 16): stamp("a")
        if n == KVS: VM.wait("pl"); gate()
        if n == 15: DS.wait(("x", 9)); lsig(13); DS.add("sig")
        if n == 19: kvdone(DS)
    lwait(CW[0])
    qpipe([(4*i+w_, 5120*w_ if i == 0 else L_X + 20480*w_ + 5120*(i-1)) for i in range(5) for w_ in range(4)], VM, dma, qhook)
    a(f"{Lj}:")
    stamp("a")
    Lp4 = lab("p4")
    a(f"s_cmp_eq_u32 s{sSlotD}, 1"); a(f"s_cbranch_scc1 {Lp4}")
    poll(vPv, vPo, "0")
    own_dma(0)
    a("s_waitcnt vmcnt(0)")
    lsig(4)
    a(f"{Lp4}:")
    stamp("a")
    a("s_setprio 0")
    lwait(4, 8)
    a("s_setprio 2")
    a(f"ds_read_b128 {v(K1[0],4)}, v{vK}"); a(f"ds_read_b128 {v(K2[0],4)}, v{vK} offset:4096")
    a(f"ds_read_b128 {v(V0[0],4)}, v{vV}"); a(f"ds_read_b128 {v(V1[0],4)}, v{vV} offset:672")
    for j in range(2):
        for i in range(4): a(f"v_cvt_pk_bf16_f32 v{Q1[j]+i}, v{ACC+8*j+2*i}, v{ACC+8*j+2*i+1}")
    B2 = opt.get("b2", 1)
    for i in range(2):
        a(f"v_cvt_pk_bf16_f32 v{Q2a[0]+i}, v{ACC+16+2*i}, v{ACC+17+2*i}")
        if B2: continue
        a(f"v_mov_b32 v{Q2a[1]+i}, 0"); a(f"v_mov_b32 v{Q2b[0]+i}, 0")
        a(f"v_mov_b32 v{Q2b[1]+i}, v{Q2a[0]+i}")
    for i in range(0 if B2 else 2):
        a(f"v_permlane32_swap_b32 v{Q2a[0]+i}, v{Q2a[1]+i}")
        a(f"v_permlane32_swap_b32 v{Q2b[0]+i}, v{Q2b[1]+i}")
    a(f"s_lshl_b32 s{sT}, s{sG}, 7"); a(f"s_add_u32 s{sT}, s{sT}, {WS_FO}")
    a(f"v_and_b32 v{vPo}, 7, v{vL}"); a(f"v_lshlrev_b32 v{vPo}, 12, v{vPo}"); a(f"v_add_u32 v{vPo}, s{sT}, v{vPo}")
    phase[0] = "tail"
    stamp("a")
    TPC = 8
    def rdK1(T):
        Tl = T % TPC
        return f"ds_read_b128 {v(K1[T%2],4)}, v{vK} offset:{(Tl//4)*GRP + (Tl%4)*1024}"
    def rdK2(T):
        Tl = T % TPC
        return f"ds_read_b128 {v(K2[(T//4)%2],4)}, v{vK} offset:{(Tl//4)*GRP+4096}"
    def rdV(T, sidx):
        Tl = T % TPC
        buf = (V0 if sidx == 0 else V1)[T%2]
        return f"ds_read_b128 {v(buf,4)}, v{vV} offset:{(Tl//4)*GRP+(Tl%4)*1344+sidx*672}"
    def qkA(n, cz=False):
        T, j = divmod(n, 2); t4 = T % 4
        q = Q2a[j] if t4 < 2 else Q2b[j]
        return f"v_mfma_f32_32x32x8_bf16 {v(S[n%NB],16)}, {v(K2[(T//4)%2]+2*(t4&1),2)}, {v(q,2)}, " + ("0" if cz else v(C[j],16))
    def qk2(T, c="0"):
        t4 = T % 4
        return f"v_mfma_f32_32x32x4_2b_bf16 {v(S[2*T%NB],32)}, {v(K2[(T//4)%2]+2*(t4&1),2)}, {v(Q2a[0],2)}, {c} cbsz:1 abid:{t4>>1}"
    def qkB(n):
        T, j = divmod(n, 2)
        return f"v_mfma_f32_32x32x16_bf16 {v(S[n%NB],16)}, {v(K1[T%2],4)}, {v(Q1[j],4)}, {v(S[n%NB],16)}"
    def pv(n, sidx):
        T, j = divmod(n, 2)
        buf = (V0 if sidx == 0 else V1)[T%2]
        return f"v_smfmac_f32_32x32x32_bf16 {v(O[j],16)}, {v(buf,4)}, {v(S[n%NB]+8*sidx,8)}, v{vIdx}"
    def rowmax(Sj, dst, init=None):
        if init is None:
            a(f"v_max3_f32 v{dst}, v{Sj}, v{Sj+1}, v{Sj+2}")
            for i in range(3, 15, 2): a(f"v_max3_f32 v{dst}, v{dst}, v{Sj+i}, v{Sj+i+1}")
            a(f"v_max_f32 v{dst}, v{dst}, v{Sj+15}")
        else:
            for i in range(0, 16, 2): a(f"v_max3_f32 v{dst}, v{dst}, v{Sj+i}, v{Sj+i+1}")
    def setC(j, m, t2):
        a(f"v_mov_b32 v{t2}, v{m}")
        a(f"v_permlane32_swap_b32 v{m}, v{t2}")
        a(f"v_max_f32 v{m}, v{m}, v{t2}")
        for i in range(16): a(f"v_sub_f32 v{C[j]+i}, 0, v{m}")
    vPr = 250
    a("s_waitcnt lgkmcnt(2)")
    M0 = opt.get("m0", 0)
    if M0:
        for j in range(2):
            a(qkA(j, True)); a(qkB(j))
        for j in range(2):
            rowmax(S[j], vT)
            setC(j, vT, vT+1)
            if j == 0:
                for i in range(16): a(f"v_add_f32 v{S[0]+i}, v{S[0]+i}, v{C[0]+i}")
    elif B2:
        a(qk2(0)); a(qkB(0))
    else:
        a(qkA(0, True)); a(qkB(0))
    a(f"s_mov_b32 s{sC}, 0")
    a(f"s_mov_b32 s{sSlotN}, {CHUNK}")
    a("s_waitcnt lgkmcnt(0)")
    if not M0: a("s_nop 9")
    if prof: a("s_memtime s[8:9]"); a("s_memrealtime s[10:11]")
    a(".p2align 6")
    a("L_loop:")
    UNR = opt.get("unr", 2)
    def shift(x, u):
        pre, off = x.rsplit("offset:", 1)
        return f"{pre}offset:{int(off) + (CHUNK if UNR == 2 and u & 1 else 0)}"
    for nn_ in range(16*UNR):
        u, n = divmod(nn_, 16)
        T, j = divmod(n, 2)
        us = u + (T+1)//8
        ins = {i: [] for i in range(17)}
        if B2:
            assert not M0
            PB = opt.get("pb", [1, 5, 8, 0, 4, 8, 13])
            if j == 0:
                ins[PB[0]].append(pv(n-1, 1)); ins[PB[1]].append(qkB(n+1))
                if n == 14: ins[PB[2]].append("s_waitcnt lgkmcnt(2)")
                ins[PB[2]].append(qk2(T+1))
                ins[0] += [shift(rdK1(T+1), us), shift(rdV(T+1,0), us)]
                if T == 2: ins[0].append(shift(rdK2(4), u))
                ins[12].append("s_waitcnt lgkmcnt(0)")
            else:
                ins[PB[3]].append(pv(n-1, 0)); ins[PB[4]].append(qkB(n+1)); ins[PB[5]].append(pv(n-1, 1)); ins[PB[6]].append(pv(n, 0))
                ins[0].append(shift(rdV(T+1,1), us))
        else:
            POS = opt.get("pos", [0,4,8,12])
            ins[POS[0]].append(qkA(n+1, not M0))
            ins[POS[1]].append(qkB(n+1))
            ins[POS[2]].append(pv(n-1, 1))
            ins[POS[3]].append(pv(n, 0))
            if j == 0:
                ins[0] += [shift(rdK1(T+1), us), shift(rdV(T+1,0), us)]
                if (T+1) % 4 == 0: ins[0].append(shift(rdK2(T+1), us))
                ins[12].append("s_waitcnt lgkmcnt(0)")
            else:
                ins[0].append(shift(rdV(T+1,1), us))
        if n == 13:
            ins[12] += ["s_waitcnt lgkmcnt(0)"] + (["s_memrealtime s[98:99]"] if prof else []) + ["s_barrier"] + (["s_memrealtime s[100:101]"] if prof else [])
            if UNR == 1: ins[13] += [f"v_add_u32 v{vK}, s{sSlotN}, v{vK0}", f"v_add_u32 v{vV}, s{sSlotN}, v{vV0}"]
            if B2: ins[13].append(shift(rdK2(8), u+1))
        if n == opt.get("pln", 12) and opt.get("ne", 0): ins[6].append(f"buffer_load_dword v{vPv}, v{vPo}, s[{sWS}:{sWS+3}], 0 offen sc1")
        if n == 14 and UNR == 1:
            ins[8] += [f"s_xor_b32 s{sSlotN}, s{sSlotN}, {CHUNK}"]
        if n == 15:
            if prof: ins[4] += [f"s_add_u32 m0, s{sC}, {u}", f"v_writelane_b32 v{vPr}, s98, m0", f"v_writelane_b32 v{vPr+1}, s100, m0"]
            if u == UNR-1: ins[9] += [f"s_add_u32 s{sC}, s{sC}, {UNR}", f"s_cmp_lt_u32 s{sC}, 8"]
        for i in range(16):
            for x in ins[i]:
                if x: a(x)
            a(f"v_exp_f32 v{S[n%NB]+i}, v{S[n%NB]+i}")
    a("s_cbranch_scc1 L_loop")
    a(pv(15, 1))
    if prof:
        a("s_memtime s[12:13]"); a("s_memrealtime s[14:15]"); a("s_waitcnt lgkmcnt(0)")
        a("s_sub_u32 s12, s12, s8"); a("s_sub_u32 s14, s14, s10")
        a(f"v_writelane_b32 v{vPr}, s12, 8"); a(f"v_writelane_b32 v{vPr}, s14, 9")
    stamp("a")
    a("L_slow_ret:")
    RO = Regs(20)
    vSt = RO(); vRd = RO(3); vOut = RO(3); RO.p = 36
    OF = RO(80, 4); AC = RO(20, 4); NWB = 5
    WB = [RO(20, 4) for _ in range(NWB)]
    PK = 236; sOwn = sCh
    assert RO.p <= PK and WB[2]+20 <= S[3]+8 and Q2b[1]+2 <= OF; RO.hi = 249
    steps = []
    for p in (2, 3, 0, 1):
        steps += [("m", 2*p, 0), ("m", 2*p, 1), ("m", 2*p+1, 0), ("m", 2*p+1, 1), ("l", 2*p, 0)]
    def wrd(n):
        kind, sp, j = steps[n]; buf = WB[n % NWB]; r = []
        sub = 51200 if sp >= 4 else 0
        for t5 in range(5):
            for t in range(2):
                if kind == "m": r.append(f"ds_read_b64_tr_b16 {v(buf+4*t5+2*t,2)}, v{vWm} offset:{(80*sp+40*j+8*t)*160+8*t5-sub}")
                else: r.append(f"ds_read_b64_tr_b16 {v(buf+4*t5+2*t,2)}, v{vWl} offset:{80*(sp+t)*160+8*t5-sub}")
        return r
    def sload(sl, D=sWS):
        p, q = divmod(sl, 2)
        a(f"s_add_u32 s{sT3}, s{sGo}, {10240*sl}")
        for j in range(2):
            a(f"buffer_load_dwordx4 {v(OF+20*p+8*q+4*j,4)}, v{vDma}, s[{D}:{D+3}], s{sT3} offen offset:{1024*j} sc1")
        a(f"buffer_load_dwordx2 {v(OF+20*p+16+2*q,2)}, v{vO8}, s[{D}:{D+3}], s{sT3} offen offset:2048 sc1")
    def oload(p): sload(2*p); sload(2*p+1)
    def lines(fn):
        keep = a.lines; a.lines = []; fn(); got = a.lines; a.lines = keep; return got
    def weave(main, *sides):
        slots = [[] for _ in main]
        for sd in sides:
            for i, g_ in enumerate(sd): slots[i*len(main)//len(sd)] += g_
        for m_, sl in zip(main, slots):
            a(m_)
            for x in sl: a(x)
    a(f"s_lshl_b32 s{sGo}, s{sG}, 5"); a(f"s_add_u32 s{sGo}, s{sGo}, s{sW}"); a(f"s_mul_i32 s{sGo}, s{sGo}, 2560")
    a(f"s_add_u32 s{sGo}, s{sGo}, {WS_O}")
    a(f"s_mul_i32 s{sOwn}, s{sS}, 10240"); a(f"s_add_u32 s{sOwn}, s{sOwn}, s{sGo}")
    NE = opt.get("ne", 0)
    a("s_waitcnt vmcnt(0) lgkmcnt(0)")
    if NE:
        a(f"v_cmp_ne_u32 vcc, s{sTag}, v{vPv}")
        a(f"s_mov_b64 s[{sA}:{sA+1}], s[{sWS}:{sWS+1}]"); a(f"s_mov_b32 s{sA+3}, s{sWS+3}")
        a(f"s_and_b32 s{sT}, vcc_lo, {(1 << NE)-1}")
        a(f"s_cselect_b32 s{sA+2}, 0, s{sWS+2}")
    pload()
    stamp("a", True)
    eg = cap(lambda: [sload(i, sA) for i in range(NE)]) if NE else [[], []]
    WGE = opt.get("wge", 0)
    wg = [[x] for n in range(3) for x in wrd(n)] if WGE else [[]]*30
    def guard():
        for j in range(2):
            a(f"v_add_f32 v{vT+j}, |v{O[j]}|, |v{O[j]+12}|")
            for i in range(1, 12): a(f"v_add_f32 v{vT+j}, |v{O[j]+i}|, v{vT+j}")
    ne1 = (len(eg)+1)//2
    weave(lines(guard), eg[:ne1], wg[:12])
    a(f"v_add_f32 v{vT}, v{vT}, v{vT+1}")
    thr = 0x71800000 if not opt.get("forceslow") else 0
    a(f"v_min_f32 v{vT+1}, v{O[0]+12}, v{O[1]+12}")
    a(f"v_cmp_ngt_f32 vcc, {thr:#x}, v{vT}")
    a("s_cbranch_vccnz L_slow")
    a(f"v_cmp_ngt_f32 vcc, v{vT+1}, v{vLow}")
    a("s_cbranch_vccnz L_slow")
    a("L_guard_ok:")
    stamp("a", True)
    for j in range(2):
        a(f"v_rcp_f32 v{vT+j}, v{O[j]+12}")
    ASC = opt.get("asc", "")
    def norm(j):
        for i in range(12): a(f"v_mul_f32 v{O[j]+i}, v{O[j]+i}, v{vT+j}")
        for i in range(6): a(f"v_cvt_pk_bf16_f32 v{O[j]+i}, v{O[j]+2*i}, v{O[j]+2*i+1}")
        for i in range(4): a(f"v_min_u32 v{PK+4*j+i}, -2, v{O[j]+i}")
    for j in range(2):
        if j == 0: weave(lines(lambda: norm(0)), eg[ne1:], wg[12:21])
        else: weave(lines(lambda: norm(1)), wg[21:])
        a(f"buffer_store_dwordx4 {v(PK+4*j,4)}, v{vDma}, s[{sWS}:{sWS+3}], s{sOwn} offen offset:{1024*j} {ASC}")
    for i in range(2): a(f"v_permlane32_swap_b32 v{O[0]+4+i}, v{O[1]+4+i}")
    for i in range(2): a(f"v_min_u32 v{PK+8+i}, -2, v{O[0]+4+i}")
    a(f"buffer_store_dwordx2 {v(PK+8,2)}, v{vO8}, s[{sWS}:{sWS+3}], s{sOwn} offen offset:2048 {ASC}")
    def bstore():
        Lb = lab("bst")
        a(f"s_bitcmp1_b32 s{sSlotN}, 4"); a(f"s_cbranch_scc1 {Lb}")
        a(f"s_bitset1_b32 s{sSlotN}, 4")
        a(f"s_add_u32 s{sT3}, s{sOwn}, {0 if SAME else WS_OB}")
        for j in range(2): a(f"buffer_store_dwordx4 {v(PK+4*j,4)}, v{vDma}, s[{sWS}:{sWS+3}], s{sT3} offen offset:{1024*j} sc1")
        a(f"buffer_store_dwordx2 {v(PK+8,2)}, v{vO8}, s[{sWS}:{sWS+3}], s{sT3} offen offset:2048 sc1")
        a(f"{Lb}:")
    a(f"s_mov_b32 s{sSlotN}, 0")
    BE = opt.get("bearly", 1) and not SAME
    if BE: bstore()
    stamp("a", True)
    a(f"v_mov_b32 v{vCnt}, {L_C2}")
    def wpre():
        for n in range(3 if WGE else 0, 4):
            a("s_waitcnt lgkmcnt(4)")
            for x in wrd(n): a(x)
    if NE: wpre()
    stamp("a", True)
    a(f"s_waitcnt vmcnt({6 if BE else 3})")
    stamp("a")
    Lf = lab("fl"); Le = lab("el")
    a(f"v_cmp_ne_u32 vcc, s{sTag}, v{vPv}"); a(f"s_cbranch_vccz {Lf}")
    poll(vPv, vPo, "0", 1, sleep=opt.get("fsleep", 2))
    a(f"{Lf}:")
    if NE:
        a(f"s_cmp_lg_u32 s{sA+2}, 0"); a(f"s_cbranch_scc1 {Le}")
        for i in range(NE): sload(i)
        a("s_waitcnt vmcnt(0)")
        a(f"{Le}:")
    stamp("a")
    def ocheck(p):
        b = OF+20*p
        a(f"v_max3_u32 v{vT}, v{b}, v{b+1}, v{b+2}"); a(f"v_max3_u32 v{vT+1}, v{b+3}, v{b+4}, v{b+5}")
        for i in range(7): a(f"v_max3_u32 v{vT+(i&1)}, v{vT+(i&1)}, v{b+6+2*i}, v{b+7+2*i}")
        a(f"v_max_u32 v{vT}, v{vT}, v{vT+1}")
        a(f"v_cmp_eq_u32 vcc, -1, v{vT}")
    lg = cap(lambda: [sload(i) for i in range(NE, 8)])
    NL0 = opt.get("nl0", 3 if NE else 24)
    if NE:
        for g_ in lg[:NL0]:
            for x in g_: a(x)
    else:
        weave(lines(wpre), lg[:NL0])
        a(f"s_waitcnt vmcnt({NL0-6})")
    lg = lg[NL0:]
    def stage_addr():
        srd(a, sA, pOut, 2048*2560)
        a(f"s_mul_i32 s{sT}, s{sW}, 2816"); a(f"s_add_u32 s{sT}, s{sT}, {L_WO+51200}")
        a(f"v_and_b32 v{vT}, 15, v{vL}"); a(f"v_mul_u32_u24 v{vT}, 176, v{vT}")
        a(f"v_lshrrev_b32 v{vT+1}, 4, v{vL}"); a(f"v_mul_u32_u24 v{vT+1}, 40, v{vT+1}"); a(f"v_add3_u32 v{vSt}, v{vT}, v{vT+1}, s{sT}")
        for m in range(3):
            a(f"v_add_u32 v{vT}, {64*m}, v{vL}"); a(f"v_mul_u32_u24 v{vT+1}, 205, v{vT}"); a(f"v_lshrrev_b32 v{vT+1}, 11, v{vT+1}")
            a(f"v_add_u32 v{vT+2}, v{vT}, v{vT+1}"); a(f"v_lshl_add_u32 v{vRd+m}, v{vT+2}, 4, s{sT}")
            a(f"v_mul_u32_u24 v{vT+1}, 150, v{vT+1}"); a(f"v_add_lshl_u32 v{vOut+m}, v{vT}, v{vT+1}, 4")
    sa = lines(stage_addr)
    a(f"s_mov_b32 s{sC}, 0")
    for n in range(20):
        p, r_ = divmod(n, 5)
        if r_ == 0:
            Lr = lab("rnd"); Lg = lab("go")
            if p:
                a(f"s_bitcmp1_b32 s{sSlotN}, {p}"); a(f"s_cbranch_scc1 {Lg}")
            LZ = opt.get("lazy", 0)
            if 0 < p <= LZ:
                a(f"s_bitcmp1_b32 s{sSlotN}, 5"); a(f"s_cbranch_scc1 {Lr}")
                a(f"s_waitcnt vmcnt({6*(3-p)})")
            if p <= LZ:
                ocheck(p); a(f"s_cbranch_vccz {Lg}")
                if p: a(f"s_bitset1_b32 s{sSlotN}, 5")
            a(f"{Lr}:")
            La = lab("ab")
            a(f"s_add_u32 s{sC}, s{sC}, 1"); a(f"s_cmp_lt_u32 s{sC}, {opt.get('arounds', 12)}"); a(f"s_cbranch_scc1 {La}")
            bstore()
            if not SAME: a(f"s_xor_b32 s{sGo}, s{sGo}, {WS_O ^ (WS_O+WS_OB):#x}")
            a(f"{La}:")
            if opt.get("rsleep", 0): a(f"s_sleep {opt['rsleep']}")
            a("s_waitcnt vmcnt(0)")
            for q in range(p, 4 if p else 1):
                Lo = lab("ok"); Ln = lab("nx")
                if q > p:
                    a(f"s_bitcmp1_b32 s{sSlotN}, {q}"); a(f"s_cbranch_scc1 {Ln}")
                ocheck(q); a(f"s_cbranch_vccz {Lo}")
                oload(q); a(f"s_branch {Ln}")
                a(f"{Lo}:"); a(f"s_bitset1_b32 s{sSlotN}, {q}")
                a(f"{Ln}:")
            a(f"s_bitcmp1_b32 s{sSlotN}, {p}"); a(f"s_cbranch_scc1 {Lg}")
            a(f"s_cmp_lt_u32 s{sC}, {SPIN//4}"); a(f"s_cbranch_scc1 {Lr}")
            a("s_waitcnt vmcnt(0)")
            a(f"{Lg}:")
            if p == (SAME or 3): bstore()
            if p in (0, 1, 3): stamp("a", True)
        if n == opt.get("odrop", 5): a("s_setprio 0")
        if n == opt.get("oup", 99): a("s_setprio 2")
        nn = n + NWB - 1
        nx = []
        if nn < 20:
            if nn == 10:
                lwait(0)
                a(f"v_subrev_u32 v{vWm}, 51200, v{vWm}"); a(f"v_subrev_u32 v{vWl}, 51200, v{vWl}")
            nx = wrd(nn)
        out_allowed = min(10, 10*(min(19, nn-1) - n))
        a(f"s_waitcnt lgkmcnt({out_allowed})")
        if n == 10: lsig((L_C2-L_CNT)//4 + 3)
        for t5 in range(5):
            a(f"v_mfma_f32_16x16x32_bf16 {v(AC+4*t5,4)}, {v(WB[n%NWB]+4*t5,4)}, {v(OF+4*n,4)}, {'0' if n==0 else v(AC+4*t5,4)}")
            for x in nx[2*t5:2*t5+2]: a(x)
            sl = 5*n+t5
            if sl < 25:
                LD = opt.get("ld", 2)
                if sl % LD == 0 and lg:
                    for x in lg.pop(0): a(x)
            if n >= 16:
                for x in sa[2*(sl-80):2*(sl-80)+2]: a(x)
        assert n < 4 or not lg
    assert len(sa) <= 40
    a(f"s_lshl_b32 s{sT}, s{sG}, 2"); a(f"s_add_u32 s{sT}, s{sT}, s{sW}"); a(f"s_mul_i32 s{sT}, s{sT}, {16*2560}")
    a(f"s_add_u32 s{sT}, s{sT}, s{sT4}")
    lwait(3)
    for i in range(10): a(f"v_cvt_pk_bf16_f32 v{OF+i}, v{AC+2*i}, v{AC+2*i+1}")
    for i in range(5): a(f"ds_write_b64 v{vSt}, {v(OF+2*i,2)} offset:{8*i}")
    for m in range(3): a(f"ds_read_b128 {v(OF+12+4*m,4)}, v{vRd+m}")
    for m in range(3):
        a(f"s_waitcnt lgkmcnt({2-m})")
        if m == 2: a("s_mov_b32 exec_hi, 0")
        if opt.get("osn"):
            Lc = lab("oc"); Ld = lab("od")
            a(f"s_cmp_ge_u32 s{sS}, 3"); a(f"s_cbranch_scc1 {Lc}")
            a(f"buffer_store_dwordx4 {v(OF+12+4*m,4)}, v{vOut+m}, s[{sA}:{sA+3}], s{sT} offen sc1")
            a(f"s_branch {Ld}"); a(f"{Lc}:")
        a(f"buffer_store_dwordx4 {v(OF+12+4*m,4)}, v{vOut+m}, s[{sA}:{sA+3}], s{sT} offen {opt.get('osc','')}")
        if opt.get("osn"): a(f"{Ld}:")
    if prof:
        stamp("a"); a("s_waitcnt vmcnt(0)"); stamp("a")
        prof_store("a", vT)
        a("s_mov_b64 exec, -1")
        a(f"v_lshlrev_b32 v{vT}, 2, v{vL}")
        a("s_mov_b64 exec, 0xff")
        a(f"s_add_u32 s{sT}, s{sT}, {0x40000}")
        a(f"buffer_store_dword v{vPr}, v{vT}, s[{sWS}:{sWS+3}], s{sT} offen")
        a(f"buffer_store_dword v{vPr+1}, v{vT}, s[{sWS}:{sWS+3}], s{sT} offen offset:32")
        a("s_mov_b64 exec, 0x300")
        a(f"s_add_u32 s{sT}, s{sT}, {0x40000}")
        a(f"buffer_store_dword v{vPr}, v{vT}, s[{sWS}:{sWS+3}], s{sT} offen")
    if probe:
        if probe[0] == 99: a("s_waitcnt vmcnt(0)"); a("s_memrealtime s[72:73]")
        if probe[0] == 0: a("s_mov_b32 s72, s70")
        a(f"s_cmp_lt_u32 s2, {probe[2]}"); a("s_cbranch_scc1 L_pe"); a(f"s_cmp_gt_u32 s2, {probe[3]}"); a("s_cbranch_scc1 L_pe")
        a("s_waitcnt lgkmcnt(0)")
        a("s_sub_u32 s72, s72, s70"); a(f"s_mul_i32 s72, s72, {probe[1]}"); a("s_add_u32 s72, s72, 4000"); a("s_min_u32 s72, s72, 30000")
        a("L_pl:"); a("s_memrealtime s[74:75]"); a("s_waitcnt lgkmcnt(0)"); a("s_sub_u32 s74, s74, s70"); a("s_cmp_lt_u32 s74, s72"); a("s_cbranch_scc1 L_pl")
        a("L_pe:")
    a("s_endpgm")
    for Ls, Lb, k in spins:
        a(f"{Ls}:"); lwait(k); a(f"s_branch {Lb}")
    a("L_slow:")
    a(f"s_cmp_lg_u32 s{sC}, 8"); a("s_cbranch_scc1 L_guard_ok")
    a("s_waitcnt vmcnt(0) lgkmcnt(0)")
    M = [vK, vV]
    for j in range(2):
        a(f"v_mov_b32 v{M[j]}, 0xff800000")
        for i in range(16): a(f"v_mov_b32 v{C[j]+i}, 0"); a(f"v_mov_b32 v{O[j]+i}, 0")
    a(f"s_mov_b32 s{sSlotN}, 0")
    a("L_slow_pass:")
    a(f"s_mov_b32 s{sC}, 0")
    a("L_slow_it:")
    a(f"s_lshr_b32 s{sT}, s{sC}, 2"); a(f"s_mul_i32 s{sT}, s{sT}, {CHUNK}")
    a(f"s_bfe_u32 s{sT2}, s{sC}, 0x10001"); a(f"s_mul_i32 s{sT2}, s{sT2}, {GRP}")
    a(f"s_add_u32 s{sT}, s{sT}, s{sT2}"); a(f"s_add_u32 s{sT}, s{sT}, {WS_KV}")
    a(f"s_and_b32 s{sT2}, s{sC}, 1")
    a(f"s_lshl_b32 s{sT3}, s{sT2}, 10"); a(f"s_add_u32 s{sT3}, s{sT3}, s{sT}")
    for q in range(2): a(f"buffer_load_dwordx4 {v(K1[q],4)}, v{vK0}, s[{sWS}:{sWS+3}], s{sT3} offen offset:{2048*q} sc1")
    a(f"s_lshl_b32 s{sT3}, s{sT2}, 3"); a(f"s_add_u32 s{sT3}, s{sT3}, s{sT}"); a(f"s_add_u32 s{sT3}, s{sT3}, 4096")
    a(f"buffer_load_dwordx2 {v(K2[0],2)}, v{vK0}, s[{sWS}:{sWS+3}], s{sT3} offen sc1")
    a(f"s_mul_i32 s{sT3}, s{sT2}, 1344"); a(f"s_add_u32 s{sT3}, s{sT3}, s{sT}")
    for q in range(2):
        a(f"buffer_load_dwordx4 {v(V0[q],4)}, v{vV0}, s[{sWS}:{sWS+3}], s{sT3} offen offset:{2688*q} sc1")
        a(f"buffer_load_dwordx4 {v(V1[q],4)}, v{vV0}, s[{sWS}:{sWS+3}], s{sT3} offen offset:{2688*q+672} sc1")
    a("s_waitcnt vmcnt(0)")
    assert C[1] == C[0]+16
    for q in range(2 if B2 else 0):
        a(f"v_mfma_f32_32x32x4_2b_bf16 {v(S[2*q],32)}, {v(K2[0],2)}, {v(Q2a[0],2)}, {v(C[0],32)} cbsz:1 abid:{q}")
    for q in range(2):
        for j in range(2):
            Sx = S[2*q+j]
            if not B2: a(f"v_mfma_f32_32x32x8_bf16 {v(Sx,16)}, {v(K2[0],2)}, {v((Q2a if q==0 else Q2b)[j],2)}, {v(C[j],16)}")
            a(f"v_mfma_f32_32x32x16_bf16 {v(Sx,16)}, {v(K1[q],4)}, {v(Q1[j],4)}, {v(Sx,16)}")
    a("s_nop 15")
    a(f"s_cmp_eq_u32 s{sSlotN}, 1"); a("s_cbranch_scc1 L_slow_p2")
    for q in range(2):
        for j in range(2): rowmax(S[2*q+j], M[j], True)
    a("s_branch L_slow_nx")
    a("L_slow_p2:")
    for i in range(64): a(f"v_exp_f32 v{S[0]+i}, v{S[0]+i}")
    a("s_nop 1")
    for q in range(2):
        for j in range(2):
            for sidx in range(2):
                a(f"v_smfmac_f32_32x32x32_bf16 {v(O[j],16)}, {v((V0 if sidx==0 else V1)[q],4)}, {v(S[2*q+j]+8*sidx,8)}, v{vIdx}")
    a("s_nop 15")
    a("L_slow_nx:")
    a(f"s_add_u32 s{sC}, s{sC}, 1"); a(f"s_cmp_lt_u32 s{sC}, 32"); a("s_cbranch_scc1 L_slow_it")
    a(f"s_cmp_eq_u32 s{sSlotN}, 1"); a("s_cbranch_scc1 L_slow_ret")
    for j in range(2): setC(j, M[j], vT)
    a(f"s_mov_b32 s{sSlotN}, 1")
    a("s_branch L_slow_pass")
    assert S[1] == S[0]+16 and S[3] == S[0]+48
    hi_a = max(R.hi, RA.hi, RO.hi, KW+8*NKW)

    a("L_helper:")
    H = Regs(5)
    hT = H(8, 4); hDma = H(); hP = H(5); PR = H(8, 2)
    sCg = sU0
    a(f"s_sub_u32 s{sH}, s{sW}, 4")
    if opt.get("al", 1):
        a(f"s_and_b32 s{sCh}, s2, 7"); a(f"s_lshl_b32 s{sT}, s{sCh}, 3")
        a(f"s_mov_b32 s{sT2}, 0x40301800"); a(f"s_mov_b32 s{sT3}, 0x90806850")
        a(f"s_lshr_b64 s[{sT2}:{sT3}], s[{sT2}:{sT3}], s{sT}"); a(f"s_and_b32 s{sCg}, s{sT2}, 0xff")
        a(f"s_lshr_b32 s{sT3}, s2, 3"); a(f"s_add_u32 s{sCg}, s{sCg}, s{sT3}"); a(f"s_sub_u32 s{sCg}, s{sCg}, 16")
        a(f"s_bitcmp1_b32 0x66, s{sCh}"); a(f"s_cselect_b32 s{sT}, 8, 16")
    else:
        a(f"s_and_b32 s{sT}, s2, 7"); a(f"s_mul_i32 s{sT}, s{sT}, 20"); a(f"s_lshr_b32 s{sT3}, s2, 3")
        a(f"s_add_u32 s{sCg}, s{sT}, s{sT3}"); a(f"s_sub_u32 s{sCg}, s{sCg}, 12"); a(f"s_mov_b32 s{sT}, 12")
    a(f"s_cmp_lt_u32 s{sT3}, s{sT}"); a(f"s_cselect_b32 s{sCg}, -1, s{sCg}")
    a(f"s_lshl_b32 s{sCh}, s{sCg}, 2"); a(f"s_add_u32 s{sCh}, s{sCh}, s{sH}")
    a(f"s_lshl_b32 s{sT}, s{sCh}, 8")
    a(f"v_lshlrev_b32 v{hT+2}, 2, v{vL}"); a(f"v_add_u32 v{hT}, s{sT}, v{hT+2}")
    a(f"s_lshl_b32 s{sT}, s{sCh}, 1"); a(f"v_mov_b32 v{hT+1}, s{sT}")
    a(f"s_mul_i32 s{sT}, s{sT3}, 200"); a(f"s_mul_i32 s{sT2}, s{sH}, 50"); a(f"s_add_u32 s{sT}, s{sT}, s{sT2}")
    a(f"v_add_u32 v2, s{sT}, v{vL}"); a(f"v_lshlrev_b32 v2, 7, v2")
    a(f"v_lshlrev_b32 v{hDma}, 4, v{vL}")
    a(f"s_cmp_lt_i32 s{sCg}, 0")
    a("s_waitcnt lgkmcnt(0)")
    stamp("h")
    a("s_cbranch_scc1 L_h_pre_tr")
    a(f"global_load_ushort v{PR+6}, v{hT+1}, s[{pLdt}:{pLdt+1}]")
    for i, p in enumerate((pAre, pAim, pBre, pBim, pCre, pCim)):
        a(f"global_load_dword v{PR+i}, v{hT}, s[{p}:{p+1}]")
    a(f"global_load_ushort v{PR+7}, v{hT+1}, s[{pDs}:{pDs+1}]")
    a("s_branch L_h_go")
    a("L_h_pre_tr:")
    a(f"s_cmp_ge_u32 s{sS}, 2"); a("s_cbranch_scc1 L_h_go")
    a(f"s_mul_i32 s{sT}, s{sH}, 7168")
    a(f"s_add_u32 m0, s{sT}, {L_WK}")
    a(f"s_cmp_eq_u32 s{sS}, 0")
    a(f"s_cselect_b32 s{sA}, s{pWK}, s{pWV}")
    a(f"s_cselect_b32 s{sA+1}, s{pWK+1}, s{pWV+1}")
    a(f"s_and_b32 s{sA+1}, s{sA+1}, 0xffff"); a(f"s_mov_b32 s{sA+2}, 25600"); a(f"s_mov_b32 s{sA+3}, 0x20000")
    for i in range(4): a(f"buffer_load_dwordx4 v{hDma}, s[{sA}:{sA+3}], s{sT} offen offset:{1024*i} lds")
    a("s_add_u32 m0, m0, 4096"); a(f"s_add_u32 s{sT}, s{sT}, 4096")
    for i in range(3): a(f"buffer_load_dwordx4 v{hDma}, s[{sA}:{sA+3}], s{sT} offen offset:{1024*i} lds")
    a("L_h_go:")
    WQPF = opt.get("wqpf", -1)
    def wq_pf():
        a("s_mov_b32 exec_hi, 0x3ffff")
        a(f"global_load_dword v3, v2, s[{pWQ}:{pWQ+1}]")
        a("s_mov_b32 exec_hi, -1")
    if WQPF == 0: wq_pf()
    a("s_barrier")
    a(f"s_load_dword s{sTag}, s[{pWS}:{pWS+1}], {WS_TAG}")
    srd(a, sWS, pWS, WS_SIZE)
    srd(a, sWQ, pWO, 640*1280)
    wpattern(hP, vL, hT, False)
    a(f"s_lshr_b32 s{sGo}, s{sG}, 2"); a(f"s_add_u32 s{sGo}, s{sGo}, 1"); a(f"s_and_b32 s{sGo}, s{sGo}, 7")
    a(f"s_mul_i32 s{sGo}, s{sGo}, {CHUNK}"); a(f"s_add_u32 s{sGo}, s{sGo}, {WS_KV}")
    a(f"s_mov_b32 s{sSlotD}, {CHUNK}")
    sWoL = sSlotN; sWoG = sT4
    def wo_set(mul, add):
        a(f"s_mul_i32 s{sT}, s{sH}, {mul}")
        if add: a(f"s_add_u32 s{sT}, s{sT}, {add}")
        a(f"s_mul_i32 s{sWoL}, s{sT}, 5120"); a(f"s_add_u32 s{sWoL}, s{sWoL}, {L_WO}")
        a(f"s_mul_i32 s{sWoG}, s{sT}, 40960"); a(f"s_mul_i32 s{sT}, s{sS}, 160"); a(f"s_add_u32 s{sWoG}, s{sWoG}, s{sT}")
        a(f"s_add_u32 s{sWoG}, s{sWoG}, {10*40960}")
    wo_set(3, 8)
    def wo_step():
        a(f"s_mov_b32 m0, s{sWoL}")
        a(f"s_add_u32 s{sWoL}, s{sWoL}, 5120")
        a(f"s_sub_u32 s{sT}, s{sWoG}, {20*40960}"); a(f"s_cselect_b32 s{sWoG}, s{sWoG}, s{sT}")
        wkstep_dma(hP, sWQ, sWoG)
        a(f"s_add_u32 s{sWoG}, s{sWoG}, 40960")
    def h_sig(k, base=L_C2):
        a(f"v_mov_b32 v{hT+4}, {base}"); a(f"v_mov_b32 v{hT+5}, 1")
        a("s_mov_b64 exec, 1"); a(f"ds_add_u32 v{hT+4}, v{hT+5} offset:{4*k}"); a("s_mov_b64 exec, -1")
    def hl_wait(k, sleep=2, base=L_CNT, n=4):
        L = lab("tw"); D = lab("twd")
        a(f"v_mov_b32 v{hT+4}, {base}")
        a(f"s_mov_b32 s{sBound}, {SPIN*4}")
        a(f"{L}:")
        if sleep: a(f"s_sleep {sleep}")
        a(f"ds_read_b32 v{hT+5}, v{hT+4} offset:{4*k}")
        a(f"s_sub_u32 s{sBound}, s{sBound}, 1"); a(f"s_cbranch_scc1 {D}")
        a("s_waitcnt lgkmcnt(0)")
        a(f"v_cmp_gt_u32 vcc, {n}, v{hT+5}")
        a(f"s_cbranch_vccnz {L}")
        a(f"{D}:")
    def kv_flags(late):
        Lnp = lab("nopoll")
        a(f"s_cmp_lg_u32 s{sH}, 3"); a(f"s_cbranch_scc1 {Lnp}")
        if late: hl_wait(4, 8, L_CNT, 8)
        a(f"v_lshlrev_b32 v{hT+4}, 7, v{vL}")
        a(f"s_mov_b32 s{sT5}, {WS_FKV}")
        poll(hT, hT+4, f"s{sT5}", 4, sleep=opt.get("psleep", 8))
        if FE != 3: h_sig(3, L_CNT)
        a(f"{Lnp}:")
    def pre_b1(flags=True):
        if FE == 3:
            hl_wait(4, 2, L_CNT, 8)
            ring_dma(sH, hDma)
            kv_flags(False)
            return
        if flags: kv_flags(True)
        hl_wait(4, 4 if flags else 2, L_CNT, 8)
        hl_wait(3, 2, L_CNT, 1)
        ring_dma(sH, hDma)
    def tag_advance():
        Lnt = lab("notag")
        a(f"s_add_u32 s{sT}, s2, s{sH}"); a(f"s_cmp_lg_u32 s{sT}, 0"); a(f"s_cbranch_scc1 {Lnt}")
        a(f"v_lshlrev_b32 v{hT+4}, 7, v{vL}")
        for i in range(4):
            a(f"s_mov_b32 s{sT5}, {WS_FO+8192*i}")
            poll(hT, hT+4, f"s{sT5}", 1, sleep=4)
        a(f"v_mov_b32 v{hT}, s{sTag}")
        a("s_mov_b64 exec, 1")
        a(f"buffer_store_dword v{hT}, off, s[{sWS}:{sWS+3}], 0 offset:{WS_TAG} sc1")
        a("s_mov_b64 exec, -1")
        a(f"{Lnt}:")
    a(f"s_cmp_lt_i32 s{sCg}, 0"); a("s_cbranch_scc1 L_h_tr")
    vSw = H(4); vSr = H(); vKb = H(); vKc = H(); vKf = H(); vU = H(4); vY = H(2)
    SEL = H(6)
    a(f"s_mul_i32 s{sT}, s{sH}, {SCP}"); a(f"s_add_u32 s{sT}, s{sT}, {L_SC}")
    a(f"v_lshlrev_b32 v{vSw}, 3, v{vL}"); a(f"v_add_u32 v{vSw}, s{sT}, v{vSw}")
    for i in range(1, 4): a(f"v_add_u32 v{vSw+i}, {2112*i}, v{vSw}")
    a(f"v_and_b32 v{hT+4}, 15, v{vL}")
    a(f"v_lshrrev_b32 v{hT+5}, 4, v{vL}")
    a(f"v_mul_u32_u24 v{hT+6}, 528, v{hT+4}"); a(f"v_lshl_add_u32 v{hT+6}, v{hT+5}, 4, v{hT+6}"); a(f"v_add_u32 v{vSr}, s{sT}, v{hT+6}")
    a(f"s_mul_i32 s{sT2}, s{sH}, {KRP}"); a(f"s_add_u32 s{sT2}, s{sT2}, {L_KR}")
    a(f"v_lshlrev_b32 v{hT+6}, 4, v{hT+4}")
    a(f"v_and_b32 v{hT+7}, 1, v{hT+5}"); a(f"v_lshl_add_u32 v{hT+7}, v{hT+7}, 3, v{hT+6}")
    a(f"v_and_b32 v{vKb}, 32, v{vL}"); a(f"v_lshl_add_u32 v{hT+7}, v{vKb}, 4, v{hT+7}")
    a(f"s_add_u32 s{sT3}, s{sT2}, {4088-256}")
    a(f"v_sub_u32 v{vKb}, s{sT3}, v{hT+7}")
    a(f"v_lshlrev_b32 v{hT+7}, 9, v{hT+5}")
    a(f"v_add_u32 v{hT+7}, v{hT+7}, v{hT+6}")
    a("s_mov_b32 exec_lo, 0"); a("s_mov_b32 exec_hi, 0xffff0000")
    a(f"v_add_u32 v{hT+7}, 512, v{hT+7}")
    a("s_mov_b64 exec, -1")
    a(f"s_add_u32 s{sT3}, s{sT2}, {4080-1024-256-512}")
    a(f"v_sub_u32 v{vKc}, s{sT3}, v{hT+7}")
    a(f"v_and_b32 v{hT}, 7, v{vL}"); a(f"v_bfe_u32 v{hT+1}, v{vL}, 4, 1"); a(f"v_lshl_add_u32 v{hT}, v{hT+1}, 3, v{hT}")
    a(f"v_bfe_u32 v{hT+2}, v{vL}, 3, 1")
    a(f"v_lshrrev_b32 v{hT+3}, 5, v{vL}")
    a(f"v_lshlrev_b32 v{hT+7}, 5, v{hT}"); a(f"v_lshl_add_u32 v{hT+7}, v{hT+2}, 9, v{hT+7}")
    a(f"s_add_u32 s{sT3}, s{sT2}, {4064-3072}")
    a(f"v_sub_u32 v{vKf}, s{sT3}, v{hT+7}"); a(f"v_lshl_add_u32 v{vKf}, v{hT+3}, 4, v{vKf}")
    a(f"v_lshl_add_u32 v{hT+7}, v{hT+3}, 4, v{hT+7}")
    a(f"v_add_u32 v{vY+1}, s{sT2}, v{hT+7}")
    a(f"s_mul_i32 s{sT3}, s{sH}, {UP}"); a(f"s_add_u32 s{sT3}, s{sT3}, {L_U+2368}"); a(f"v_add_u32 v{vY}, s{sT3}, v{hT+7}")
    a(f"v_and_b32 v{hT+7}, 2, v{vL}"); a(f"v_lshl_add_u32 v{hT+7}, v{hT+2}, 2, v{hT+7}")
    a(f"v_bfe_u32 v{hT}, v{vL}, 2, 1"); a(f"v_add_u32 v{hT}, v{hT}, v{hT+3}"); a(f"v_lshl_add_u32 v{hT+7}, v{hT}, 3, v{hT+7}")
    a(f"v_mul_u32_u24 v{hT+1}, 576, v{hT+1}"); a(f"v_lshl_add_u32 v{hT+7}, v{hT+7}, 1, v{hT+1}")
    a(f"v_and_b32 v{hT+6}, 1, v{vL}"); a(f"v_mul_u32_u24 v{vU}, 4576, v{hT+6}")
    a(f"s_mul_i32 s{sT3}, s{sH}, {UP}"); a(f"s_add_u32 s{sT3}, s{sT3}, {L_U+4640-28}")
    a(f"v_sub_u32 v{vU}, s{sT3}, v{vU}"); a(f"v_add_u32 v{vU}, v{vU}, v{hT+7}")
    for i in range(1, 4): a(f"v_add_u32 v{vU+i}, {1152*i}, v{vU}")
    def sel(lo, hi): return (2*lo) | (2*lo+1) << 8 | (2*hi) << 16 | (2*hi+1) << 24
    a(f"v_mov_b32 v{SEL}, {sel(3,2):#x}"); a(f"v_mov_b32 v{SEL+1}, {sel(1,0):#x}")
    a(f"v_mov_b32 v{SEL+2}, {sel(2,2):#x}"); a(f"v_mov_b32 v{SEL+3}, {sel(1,1):#x}"); a(f"v_mov_b32 v{SEL+4}, {sel(1,0):#x}")
    a("s_mov_b32 exec_lo, 0")
    a(f"v_mov_b32 v{SEL}, {sel(2,1):#x}"); a(f"v_mov_b32 v{SEL+1}, {sel(0,0):#x}")
    a(f"v_mov_b32 v{SEL+2}, {sel(1,1):#x}"); a(f"v_mov_b32 v{SEL+4}, {sel(0,0):#x}")
    a(f"v_mul_u32_u24 v{SEL+3}, 0x101, v{hT+6}"); a(f"v_lshlrev_b32 v{SEL+3}, 17, v{SEL+3}"); a(f"v_add_u32 v{SEL+3}, {sel(1,0):#x}, v{SEL+3}")
    a(f"v_add_u32 v{SEL+5}, 0x04040404, v{SEL+3}")
    a("s_mov_b32 exec_lo, -1")
    for i in range(4): a(f"v_mov_b32 v{hT+i}, 0")
    vKz = H()
    a(f"v_lshlrev_b32 v{vKz}, 3, v{vL}"); a(f"v_add_u32 v{vKz}, s{sT2}, v{vKz}")
    for r_ in (vKb, vKc, vKf, vKz):
        a(f"v_subrev_u32 v{r_}, s{sT2}, v{r_}")
        a(f"v_bfe_u32 v{hT+4}, v{r_}, 4, 1"); a(f"v_mul_u32_u24 v{hT+4}, 2304, v{hT+4}")
        a(f"v_lshrrev_b32 v{hT+5}, 5, v{r_}"); a(f"v_lshl_add_u32 v{hT+4}, v{hT+5}, 4, v{hT+4}")
        a(f"v_and_b32 v{r_}, 15, v{r_}"); a(f"v_add3_u32 v{r_}, v{r_}, v{hT+4}, s{sT2}")
    HK = Regs(H.p)
    Z1 = [HK(2) for _ in range(2)]; Z8 = [HK(2) for _ in range(2)]
    ZB = [HK(2) for _ in range(2)]; Wc = [[HK(2) for _ in range(2)] for _ in range(2)]; Cu = [[HK(2) for _ in range(2)] for _ in range(2)]
    E = [HK(2) for _ in range(2)]; AR = [HK(2) for _ in range(2)]; TB = [HK(2) for _ in range(2)]; TC = [HK(2) for _ in range(2)]
    Z2 = TC; Z4 = TB
    LF = [HK(32, 4) for _ in range(2)]; HF = [HK(32, 4) for _ in range(2)]; DK = [HK(4, 4) for _ in range(4)]; EX = HK(8, 4)
    L2E = 1.4426950408889634
    f2 = lambda x: struct.unpack("<I", struct.pack("<f", x))[0]
    hi_ = struct.unpack("<f", struct.pack("<f", L2E))[0]; lo_ = L2E - hi_
    a(f"v_mov_b32 v{EX}, 0x3f80"); a(f"v_mov_b32 v{EX+1}, 0x3f80")
    a(f"s_mov_b32 s{sT}, {f2(hi_):#x}")
    if opt.get("kprio", 0): a(f"s_setprio {opt['kprio']}")
    if WQPF == 1:
        a("s_waitcnt lgkmcnt(0)"); wq_pf()
    if WQPF == 3: wq_pf()
    a(f"s_waitcnt vmcnt({6 if WQPF in (0, 1, 3) else 5})")
    if WQPF == 2: wq_pf()
    stamp("h")
    if opt.get("k2"):
        a(f"s_mov_b32 s{sC}, 0"); a("L_k2:")
        a(f"v_mov_b32 v{EX}, 0x3f80"); a(f"v_mov_b32 v{EX+1}, 0x3f80")
    dt = hT+4
    a(f"v_lshlrev_b32 v{hT+5}, 16, v{PR+6}")
    a(f"v_mul_f32 v{hT+6}, {f2(hi_):#x}, v{hT+5}")
    a(f"v_fma_f32 v{hT+7}, v{hT+5}, s{sT}, -v{hT+6}")
    a(f"v_fmac_f32 v{hT+7}, {f2(lo_):#x}, v{hT+5}")
    a(f"v_exp_f32 v{hT+6}, v{hT+6}")
    a(f"v_mul_f32 v{hT+7}, {f2(0.6931471805599453):#x}, v{hT+7}")
    a(f"v_fmac_f32 v{hT+6}, v{hT+6}, v{hT+7}")
    a(f"v_cvt_pk_bf16_f32 v{dt}, v{hT+6}, v{hT+6}")
    a(f"v_lshlrev_b32 v{dt}, 16, v{dt}")
    def unpack(dst, src, m):
        if m == 0: a(f"v_lshlrev_b32 v{dst}, 16, v{src}")
        else: a(f"v_and_b32 v{dst}, 0xffff0000, v{src}")
    fill = []
    def cmul(d, x, y):
        if opt.get("nopk", 0):
            for m in range(2):
                a(f"v_mul_f32 v{d[m]}, v{x[m]}, v{y[m]}"); a(f"v_mul_f32 v{d[m]+1}, v{x[m]}, v{y[m]+1}")
            for m in range(2):
                a(f"v_fma_f32 v{d[m]}, -v{x[m]+1}, v{y[m]+1}, v{d[m]}"); a(f"v_fmac_f32 v{d[m]+1}, v{x[m]+1}, v{y[m]}")
            return
        for m in range(2): a(f"v_pk_mul_f32 {v(d[m],2)}, {v(x[m],2)}, {v(y[m],2)} op_sel:[0,0] op_sel_hi:[0,1]")
        for m in range(2): a(f"v_pk_fma_f32 {v(d[m],2)}, {v(x[m],2)}, {v(y[m],2)}, {v(d[m],2)} op_sel:[1,1,0] op_sel_hi:[1,0,1] neg_lo:[0,1,0]")
    for m in range(2):
        for i in range(2): unpack(AR[m]+i, PR+i, m)
    for m in range(2):
        for i in range(2): a(f"v_mul_f32 v{AR[m]+i}, v{dt}, v{AR[m]+i}")
        a(f"v_mul_f32 v{AR[m]}, {f2(L2E):#x}, v{AR[m]}")
        a(f"v_mul_f32 v{AR[m]+1}, {f2(0.15915494309189535):#x}, v{AR[m]+1}")
    def cpow(d, p):
        for m in range(2):
            if p != 1:
                a(f"v_mul_f32 v{E[m]}, {f2(float(p)):#x}, v{AR[m]}"); a(f"v_mul_f32 v{E[m]+1}, {f2(float(p)):#x}, v{AR[m]+1}")
                a(f"v_exp_f32 v{E[m]}, v{E[m]}"); a(f"v_fract_f32 v{E[m]+1}, v{E[m]+1}")
            else:
                a(f"v_exp_f32 v{E[m]}, v{AR[m]}"); a(f"v_fract_f32 v{E[m]+1}, v{AR[m]+1}")
        for m in range(2):
            a(f"v_cos_f32 v{d[m]}, v{E[m]+1}"); a(f"v_sin_f32 v{d[m]+1}, v{E[m]+1}")
        for m in range(2):
            a(f"v_pk_mul_f32 {v(d[m],2)}, {v(d[m],2)}, {v(E[m],2)} op_sel_hi:[1,0]")
    er = [1]; pend = [(EX, 0)]
    def flush():
        if len(pend) == 1:
            e, r_ = pend[0]; a(f"ds_write_b64 v{vSw}, {v(e,2)} offset:{528*r_}")
        elif len(pend) == 2:
            (e0, r0), (e1, r1) = pend
            b = min(r0, r1)//4
            if max(r0, r1) - 4*b > 3:
                a(f"ds_write_b64 v{vSw}, {v(e0,2)} offset:{528*r0}"); a(f"ds_write_b64 v{vSw}, {v(e1,2)} offset:{528*r1}")
            else:
                a(f"ds_write2_b64 v{vSw+b}, {v(e0,2)}, {v(e1,2)} offset0:{66*(r0-4*b)} offset1:{66*(r1-4*b)}")
        pend.clear()
    def row(x, rows, neg):
        e = EX + 2*(er[0] % 4); er[0] += 1
        for m in range(2): a(f"v_cvt_pk_bf16_f32 v{e+m}, v{x[m]}, {'-' if neg else ''}v{x[m]+1}")
        if fill: a(fill.pop(0))
        for r_ in rows:
            if pend and pend[0][1]//4 != r_//4: flush()
            pend.append((e, r_))
            if len(pend) == 2: flush()
        if fill: a(fill.pop(0))
    def frags(dst):
        flush()
        for q in range(8): a(f"ds_read_b128 {v(dst+4*q,4)}, v{vSr} offset:{64*q}")
    cpow(Z8, 8)
    row(Z8, [1], False)
    cur = Z8
    for j in range(2, 32):
        nxt = Cu[j & 1]
        cmul(nxt, cur, Z8); cur = nxt
        row(cur, [j % 16], False)
        if j == 15: frags(LF[0])
    frags(LF[1])
    cmul(ZB, cur, Z8)
    cpow(Z1, 1)
    a(f"s_waitcnt vmcnt({1 if WQPF >= 0 else 0})")
    for m in range(2):
        for i in range(2): unpack(TB[m]+i, PR+2+i, m); unpack(TC[m]+i, PR+4+i, m)
    for m in range(2): a(f"v_pk_mul_f32 {v(TB[m],2)}, {v(TB[m],2)}, {v(dt,2)} op_sel_hi:[1,0]")
    cmul(Wc[0], TC, TB)
    row(Wc[0], [0], True)
    cur = Wc[0]
    for h_ in range(1, 8):
        nxt = Cu[h_ & 1]; cmul(nxt, cur, Z1); cur = nxt
        row(cur, [h_], True)
    cmul(Z2, Z1, Z1)
    cmul(Wc[1], Wc[0], ZB); row(Wc[1], [8], True)
    cur = Wc[1]
    for i, rows in enumerate(([9], [10, 12], [13], [14])):
        nxt = Cu[i & 1]; cmul(nxt, cur, Z2); cur = nxt
        row(cur, rows, True)
    frags(HF[0])
    def hm(hb):
        return [f"v_mfma_f32_16x16x32_bf16 {v(DK[2*hb+lb],4)}, {v(HF[hb]+4*q,4)}, {v(LF[lb]+4*q,4)}, {'0' if q==0 else v(DK[2*hb+lb],4)}" for q in range(8) for lb in range(2)]
    g_ = [1]
    def nextG():
        cmul(Wc[(g_[0]+1) & 1], Wc[g_[0] & 1], ZB); g_[0] += 1
        return Wc[g_[0] & 1]
    cmul(Z4, Z2, Z2)
    for base in (0, 4):
        G = nextG()
        row(G, [base], True)
        cmul(Cu[0], G, Z4); row(Cu[0], [base+1], True)
        cmul(Cu[1], Cu[0], Z4); row(Cu[1], [base+2], True)
        if base == 0:
            a("s_waitcnt lgkmcnt(1)"); fill += hm(0)
    for r_ in (8, 10, 12, 14):
        G = nextG(); row(G, [r_], True)
        cmul(Cu[0], G, Z8); row(Cu[0], [r_+1], True)
    assert not fill
    frags(HF[1])
    a(f"v_lshlrev_b32 v{hT+5}, 16, v{PR+7}")
    a("s_mov_b64 exec, 1"); a(f"v_add_f32 v{DK[0]}, v{DK[0]}, v{hT+5}"); a("s_mov_b64 exec, -1")
    for lb in range(2):
        D = DK[lb]
        a(f"v_cvt_pk_bf16_f32 v{D}, v{D}, v{D+1}"); a(f"v_cvt_pk_bf16_f32 v{D+1}, v{D+2}, v{D+3}")
        a(f"v_perm_b32 v{D+2}, v{D+1}, v{D}, v{SEL}"); a(f"v_perm_b32 v{D+3}, v{D+1}, v{D}, v{SEL+1}")
    m1 = hm(1)
    for q in range(8):
        a(f"s_waitcnt lgkmcnt({7-q})"); a(m1[2*q]); a(m1[2*q+1])
    a(f"s_mov_b32 s{sT}, {sel(0,0):#x}"); a(f"s_mov_b32 s{sT2}, {sel(3,3):#x}"); a(f"s_mov_b32 s{sT3}, {sel(2,2):#x}")
    for lb in range(2):
        D = DK[2+lb]; X = HF[0] + 8*lb
        a(f"v_cvt_pk_bf16_f32 v{D}, v{D}, v{D+1}"); a(f"v_cvt_pk_bf16_f32 v{D+1}, v{D+2}, v{D+3}")
        for i in range(3): a(f"v_perm_b32 v{X+i}, v{D+1}, v{D}, v{SEL+2+i}")
        a(f"v_perm_b32 v{X+3}, v{D+1}, v{D}, s{sT}")
        a(f"v_perm_b32 v{X+4}, v{D+1}, v{D}, s{sT2}"); a(f"v_perm_b32 v{X+5}, v{D+1}, v{D}, v{SEL+5}")
        a(f"v_perm_b32 v{X+6}, v{D+1}, v{D}, s{sT3}"); a(f"v_perm_b32 v{X+7}, v{D+1}, v{D}, s{sT3}")
    tagfix()
    HC = Regs(H.p)
    YA = HC(64, 4); UF = [HC(16, 4) for _ in range(2)]; KF = [HC(16, 4) for _ in range(2)]
    UW = HC(32, 4);  G = HC(18, 4)
    while HC.p <= DK[1]+3: HC()
    vGo = HC(); vUw = HC(); vYr = HC(2); vYo = HC(); vHa = HC()
    sLo = sC; sHi = sCh
    srd(a, sX, pU, 2048*1280)
    a(f"v_mul_u32_u24 v{vGo}, 10240, v{vL}")
    a(f"v_lshrrev_b32 v{hT}, 5, v{vL}"); a(f"v_mul_u32_u24 v{hT}, 576, v{hT}"); a(f"v_and_b32 v{hT+1}, 31, v{vL}")
    a(f"s_mul_i32 s{sT}, s{sH}, 1152"); a(f"s_add_u32 s{sT}, s{sT}, {L_U+64}")
    a(f"v_lshl_add_u32 v{hT}, v{hT+1}, 4, v{hT}"); a(f"v_add_u32 v{vUw}, s{sT}, v{hT}")
    a(f"v_and_b32 v{hT}, 3, v{vL}"); a(f"v_mul_u32_u24 v{hT}, {UP}, v{hT}"); a(f"v_bfe_u32 v{hT+1}, v{vL}, 2, 1"); a(f"v_mul_u32_u24 v{hT+1}, 4576, v{hT+1}")
    a(f"v_add3_u32 v{vHa}, v{hT}, v{hT+1}, s{sT}"); a(f"v_and_b32 v{hT}, 8, v{vL}"); a(f"v_mul_u32_u24 v{hT}, 72, v{hT}")
    a(f"v_and_b32 v{hT+1}, 16, v{vL}"); a(f"v_add3_u32 v{vHa}, v{vHa}, v{hT}, v{hT+1}")
    a(f"s_lshl_b32 s{sT}, s{sH}, 8"); a(f"v_lshl_add_u32 v{hT}, v{vL}, 2, s{sT}")
    a(f"v_add_u32 v{vYr}, {L_U+2368}, v{hT}"); a(f"v_add_u32 v{vYr+1}, {L_KR}, v{hT}")
    a(f"v_mul_u32_u24 v{vYo}, 5120, v{vL}")
    if opt.get("ytest") == 2:
        a(f"v_and_b32 v{hT}, 1, v{vL}"); a(f"v_lshlrev_b32 v{hT}, 8, v{hT}"); a(f"v_sub_u32 v{vYo}, v{vYo}, v{hT}")
    a(f"s_mov_b32 s{sLo}, 0x05040100"); a(f"s_mov_b32 s{sHi}, 0x07060302")
    assert vGo > DK[1]+3 and vGo > HF[0]+15
    if opt.get("k2"):
        a("s_nop 7"); a("s_nop 7")
        a(f"s_cmp_eq_u32 s{sC}, 1"); a("s_cbranch_scc1 L_k2d")
        stamp("h")
        a(f"s_mov_b32 s{sC}, 1"); a("s_branch L_k2"); a("L_k2d:")
    stamp("h")
    h_sig(4, L_CNT)
    if FE == 1: kv_flags(False)
    for i in range(2): a(f"v_mov_b32 v{hT+i}, 0")
    hl_wait(13, 2)
    a(f"s_setprio {opt.get('ktprio', 3)}")
    for lb in range(2): a(f"ds_write_b64 v{vKb}, {v(DK[lb]+2,2)} offset:{128*(1-lb)}")
    a(f"ds_write_b64 v{vKz}, {v(hT,2)} offset:2048")
    for lb in range(2): a(f"ds_write_b128 v{vKc}, {v(HF[0]+8*lb,4)} offset:{256+128*(1-lb)}")
    a("s_mov_b32 exec_lo, 0")
    for lb in range(2): a(f"ds_write_b128 v{vKc}, {v(HF[0]+8*lb+4,4)} offset:{128*(1-lb)}")
    a("s_mov_b32 exec_lo, -1")
    stamp("h")
    def gather(part):
        a(f"s_mul_i32 s{sT}, s{sH}, {512*1280}"); a(f"s_lshl_b32 s{sT2}, s{sCg}, 3"); a(f"s_add_u32 s{sT}, s{sT}, s{sT2}")
        if part: a(f"s_add_u32 s{sT}, s{sT}, 5120")
        for i in range(4*part, 4*part+4):
            a(f"buffer_load_dwordx2 {v(G+2+2*i,2)}, v{vGo}, s[{sX}:{sX+3}], s{sT} offen offset:{1280*(i%4)}")
        if part: return
        a(f"s_sub_u32 s{sT}, s{sT}, 1280")
        a(f"s_cmp_eq_u32 s{sH}, 0"); a(f"s_cselect_b32 s{sT}, 0x10000000, s{sT}")
        a(f"v_mov_b32 v{hT}, s{sT}")
        a("s_mov_b64 exec, 1")
        a(f"buffer_load_dwordx2 {v(G,2)}, v{hT}, s[{sX}:{sX+3}], 0 offen")
        a("s_mov_b64 exec, -1")
    def zero_c2(halo):
        a(f"s_mul_i32 s{sT}, s{sH}, {UP}"); a(f"s_add_u32 s{sT}, s{sT}, {L_U}")
        a(f"v_add_u32 v{hT+4}, s{sT}, v{hDma}")
        for i in range(4): a(f"v_mov_b32 v{hT+i}, 0")
        a("s_mov_b64 exec, 15")
        a(f"ds_write_b128 v{hT+4}, {v(hT,4)}")
        if halo:
            a("s_mov_b64 exec, 3")
            a(f"ds_write_b128 v{hT+4}, {v(hT,4)} offset:4608")
        a("s_mov_b64 exec, -1")
    def uwrite():
        for d in range(2): a(f"v_mov_b32_dpp v{G+d}, v{G+16+d} wave_shr:1 row_mask:0xf bank_mask:0xf")
        for c in range(4):
            for odd in range(2):
                B = UW + 8*c + 4*odd
                for q in range(4):
                    r0 = G + 2*(2*q+1-odd) + (c >> 1)
                    a(f"v_perm_b32 v{B+q}, v{r0+2}, v{r0}, s{sHi if c & 1 else sLo}")
                a(f"ds_write_b128 v{vUw}, {v(B,4)} offset:{UP*c+4576*odd}")
        if opt.get("halo", 1):
            a(f"s_cmp_eq_u32 s{sH}, 3"); a("s_cselect_b32 exec_lo, 0x00ff00ff, -1"); a("s_mov_b32 exec_hi, 0")
            a(f"ds_read_b128 {v(G,4)}, v{vHa} offset:480"); a("s_waitcnt lgkmcnt(0)")
            a(f"ds_write_b128 v{vHa}, {v(G,4)} offset:544")
            a("s_mov_b64 exec, -1")
            return
        a(f"s_cmp_eq_u32 s{sH}, 3"); a("s_mov_b32 exec_lo, 0xc0000000"); a("s_cselect_b32 exec_hi, 0, exec_lo")
        for c in range(4):
            for odd in range(2): a(f"ds_write_b128 v{vUw}, {v(UW+8*c+4*odd,4)} offset:{UP*c+4576*odd+64}")
        a("s_mov_b64 exec, -1")
    def ufrag(dst, R_, k): return [f"ds_read2_b32 {v(dst+2*i,2)}, v{vU+R_} offset0:{8*k+2*i} offset1:{8*k+2*i+1}" for i in range(2)]
    def kfrag(dst, D, k): return [f"ds_read_b128 {v(dst,4)}, v{vKf} offset:{1536-512*D+16*k}"]
    def cmm(R_, D, k, b, z):
        N = R_+D
        return f"v_mfma_f32_32x32x16_bf16 {v(YA+16*N,16)}, {v(UF[b]+4*R_,4)}, {v(KF[b]+4*D,4)}, {'0' if z else v(YA+16*N,16)}"
    GA = opt.get("ga", 2)
    pairsA = [(R_, N-R_) for N in range(GA) for R_ in range(N+1)]
    pairsB = sorted([(R_, N-R_) for N in range(GA, 4) for R_ in range(N+1)])
    jobs = []
    for k in range(16):
        hu = set(); hk = set()
        for R_, D in pairsA:
            rd = []
            if R_ not in hu: rd += ufrag(UF[k&1]+4*R_, R_, k); hu.add(R_)
            if D not in hk: rd += kfrag(KF[k&1]+4*D, D, k); hk.add(D)
            jobs.append((rd, cmm(R_, D, k, k & 1, k == 0 and R_ == 0)))
    sched = opt.get("sched", {0: [0]*8, 1: [0,0,0,16,0,0,0,0], 2: [0,0,0,16,16,16,0,0]}[GA])
    assert sum(sched) == len(jobs)
    lastA = max([c for c in range(8) if sched[c]], default=0)
    def combine(N):
        for i in range(8):
            a(f"v_add_f32_dpp v{YA+16*N+i}, v{YA+16*N+8+i}, v{YA+16*N+i} row_ror:8 row_mask:0xf bank_mask:0xc")
        if N:
            for i in range(8):
                a(f"v_add_f32_dpp v{YA+16*N+i}, v{YA+16*N-8+i}, v{YA+16*N+i} row_ror:8 row_mask:0xf bank_mask:0x3")
        for i in range(4): a(f"v_cvt_pk_bf16_f32 v{YA+16*N+i}, v{YA+16*N+2*i}, v{YA+16*N+2*i+1}")
    def yread(T, tail, idx):
        p = 18 if tail else 36
        for i in range(2): a(f"ds_read2st64_b32 {v(T+2*i,2)}, v{vYr+tail} offset0:{2*p*i+int(4*idx)} offset1:{2*p*i+p+int(4*idx)}")
    def yout(T, N):
        a(f"s_mul_i32 s{sT}, s{sH}, {128*2560}"); a(f"s_lshl_b32 s{sT2}, s{sCg}, 3"); a(f"s_add_u32 s{sT}, s{sT}, s{sT2}")
        a(f"s_add_u32 s{sT}, s{sT}, {512*2560*N+1280}")
        if opt.get("ytest") == 1:
            a(f"s_sub_u32 s{sT}, s{sT}, s{sT2}"); a(f"s_and_b32 s{sT2}, s2, 7"); a(f"s_lshl_b32 s{sT2}, s{sT2}, 7"); a(f"s_add_u32 s{sT}, s{sT}, s{sT2}")
            a(f"s_and_b32 s{sT2}, s2, 0x78"); a(f"s_add_u32 s{sT}, s{sT}, s{sT2}")
        if opt.get("ytest") == 3:
            a(f"s_sub_u32 s{sT}, s{sT}, s{sT2}"); a(f"s_and_b32 s{sT2}, s2, 7"); a(f"s_lshl_b32 s{sT2}, s{sT2}, 7"); a(f"s_add_u32 s{sT}, s{sT}, s{sT2}")
            a(f"s_and_b32 s{sT2}, s2, 0x78"); a(f"s_add_u32 s{sT}, s{sT}, s{sT2}"); a(f"s_add_u32 s{sT}, s{sT}, 64")
        for r_ in range(2):
            for i in range(2): a(f"v_perm_b32 v{T+4+2*r_+i}, v{T+2*i+1}, v{T+2*i}, s{sHi if r_ else sLo}")
            a(f"buffer_store_dwordx2 {v(T+4+2*r_,2)}, v{vYo}, s[{sA}:{sA+3}], s{sT} offen offset:{2560*r_} {opt.get('ysc','') if N >= opt.get('ywt', 0) else 'sc1'}")
    def seg_dma(c):
        if 1 <= c <= 6: ring_dma(sH, hDma)
        if 1 <= c <= 3: wo_step()
        if c == 4:
            a(f"s_lshr_b32 s{sT}, s2, 3"); a(f"s_lshl_b32 s{sT}, s{sT}, 2"); a(f"s_add_u32 s{sT}, s{sT}, s{sH}"); a(f"s_mul_i32 s{sT}, s{sT}, 2560")
            a(f"s_add_u32 s{sT}, s{sT}, {320*1280}")
            a(f"v_lshlrev_b32 v{hT}, 7, v{vL}")
            a("s_mov_b64 exec, 0xfffff")
            a(f"buffer_load_dword v{hT}, v{hT}, s[{sWQ}:{sWQ+3}], s{sT} offen")
            a("s_mov_b64 exec, -1")
        if c == opt.get("pseg", 5):
            a(f"s_lshl_b32 s{sT}, s{sG}, 3"); a(f"s_add_u32 s{sT}, s{sT}, s{sS}"); a(f"s_lshl_b32 s{sT}, s{sT}, 2"); a(f"s_add_u32 s{sT}, s{sT}, s{sH}")
            a(f"s_mul_i32 s{sT}, s{sT}, 2560"); a(f"s_add_u32 s{sT}, s{sT}, {WS_O}")
            for i in range(4): a(f"v_mov_b32 v{hT+i}, -1")
            a(f"s_add_u32 s{sT2}, s{sT}, {WS_OB}")
            for i in range(3):
                if i == 2: a("s_mov_b32 exec_hi, 0")
                for r_ in ((sT,) if SAME else (sT, sT2)): a(f"buffer_store_dwordx4 {v(hT,4)}, v{hDma}, s[{sWS}:{sWS+3}], s{r_} offen offset:{1024*i} sc1")
            a("s_mov_b32 exec_hi, -1")
        if c == opt.get("fseg", 7.5):
            Lw = lab("f8")
            a(f"s_cmp_lg_u32 s{sH}, 0"); a(f"s_cbranch_scc1 {Lw}")
            publish(hT, WS_FO, sH)
            a(f"{Lw}:")
        if c == 7:
            Lw = lab("w7")
            a(f"s_cmp_eq_u32 s{sH}, 3"); a(f"s_cbranch_scc1 {Lw}")
            wo_set(1, 0); wo_step()
            a(f"{Lw}:")
        if c == 8:
            Lw = lab("w8")
            wo_set(1, 3); wo_step()
            a(f"s_cmp_lg_u32 s{sH}, 3"); a(f"s_cbranch_scc1 {Lw}")
            wo_step()
            a(f"{Lw}:")
    GS = opt.get("gs", [0, 3])
    def useg(c, tail):
        for half in range(2):
            ph = c - GS[half]
            if ph not in (0, 1): continue
            Lx = lab("ux")
            a(f"s_cmp_ge_u32 s{sH}, 2"); a(f"s_cbranch_scc{1-half} {Lx}")
            if not tail: gather(ph)
            else:
                a(f"s_waitcnt vmcnt({5-ph}) lgkmcnt(0)")
                a("s_barrier"); a(f"s_branch L_seg{c+1}")
            a(f"{Lx}:")
    def useg_early(c):
        for half in range(2):
            if c != (GS[0]+2, 7)[half]: continue
            Lx = lab("uw"); Ly = lab("uy")
            n = (5 if c <= 3 else 1 if c == 4 else 0)
            a(f"s_cmp_ge_u32 s{sH}, 2"); a(f"s_cbranch_scc{1-half} {Lx}")
            if not half: a(f"s_waitcnt vmcnt({n+6})")
            a(f"s_setprio {opt.get('uprio', 3)}")
            uwrite()
            a("s_setprio 0")
            a(f"{Lx}:")
    srd(a, sA, pOut, 2048*2560)
    if FE == 2: kv_flags(False)
    pre_b1(not FE)
    stamp("h")
    useg(0, False)
    a("s_setprio 0")
    useg(0, True)
    a("s_waitcnt vmcnt(0) lgkmcnt(0)")
    a("s_barrier")
    jn = 0
    for c in range(1, 8):
        a(f"L_seg{c}:")
        seg_dma(c)
        if c == 1: zero_c2(True)
        useg(c, False)
        useg_early(c)
        if GA and c == lastA + 1:
            assert c - GS[1] > 1 and c < 7
            for N in range(GA): yread(UF[0]+8*N, 0, N)
            for N in range(GA):
                a(f"s_waitcnt lgkmcnt({2*(GA-1-N)})"); yout(UF[0]+8*N, N)
        for _ in range(sched[c]):
            rd, mm_ = jobs[jn]; jn += 1
            for x in rd: a(x)
            if rd: a("s_waitcnt lgkmcnt(0)")
            a(mm_)
        if GA and c == lastA:
            a("s_nop 15")
            a(f"s_setprio {opt.get('uprio', 3)}")
            for N in range(GA):
                combine(N)
                a(f"ds_write_b128 v{vY}, {v(YA+16*N,4)} offset:{1024*N}")
            a("s_setprio 0")
        useg(c, True)
        RLX = opt.get("rlx", 3)
        assert opt.get("pseg", 5) < 7 and opt.get("pseg", 5) - GS[1] > 1
        a(f"s_waitcnt vmcnt({(4 if GA and c == lastA + 1 and RLX & 2 else 0) + (6 if c == opt.get('pseg', 5) and RLX & 1 else 0)}) lgkmcnt(0)")
        if c == 7: seg_dma(7.5)
        a("s_barrier")
    a("L_seg8:")
    stamp("h")
    assert GA == 2
    bsteps = []; SPLIT = opt.get("split", 1)
    for k in range(16):
        order = [(0,3),(0,2),(1,2),(1,1),(2,1),(2,0)] if k < 15 else [(0,2),(1,1),(2,0),(0,3),(1,2),(2,1)]
        if SPLIT == 2: order.remove((0,3))
        bsteps.append([(R_, R_, D, D, k) for R_, D in order])
    if SPLIT == 1:
        for k in range(0, 16, 4): bsteps.append([(i, 3, i, 0, k+i) for i in range(4)])
    else:
        for k in range(0, 16, 2): bsteps.append([(i, 3*(i&1), i, 3-3*(i&1), k+i//2) for i in range(4)])
    YO = {1: (0, 2304), 2: (768, 2304+768)}[SPLIT]
    YSTEP = opt.get("ystep", {1: 19, 2: 18}[SPLIT])
    def breads(n):
        r = []; seen = set()
        for us, R_, ks_, D, k in bsteps[n]:
            if ("k", ks_) not in seen: r += [(("k", n, ks_), x) for x in kfrag(KF[n&1]+4*ks_, D, k)]
            if ("u", us) not in seen: r += [(("u", n, us), x) for x in ufrag(UF[n&1]+4*us, R_, k)]
            seen |= {("k", ks_), ("u", us)}
        return r
    DS = Q("lgkmcnt", 15)
    for t_, x in breads(0): a(x); DS.add(t_)
    seg_dma(8)
    a(f"s_setprio {opt.get('bprio', 1)}")
    def lines(fn):
        keep = a.lines; a.lines = []; fn(); got = a.lines; a.lines = keep; return got
    first = set()
    for n, st in enumerate(bsteps):
        nx = breads(n+1) if n+1 < len(bsteps) else []
        per = -(-len(nx)//(len(st)-1)) if n < 15 else 3
        fill_ = lines(lambda: combine(2)) if n == 16 else []
        if opt.get("bprof") and n % 8 == 0: stamp("h")
        if n == opt.get("bdrop", 99): a("s_setprio 0")
        for i, (us, R_, ks_, D, k) in enumerate(st):
            DS.wait(("k", n, ks_), ("u", n, us))
            N = R_+D
            a(f"v_mfma_f32_32x32x16_bf16 {v(YA+16*N,16)}, {v(UF[n&1]+4*us,4)}, {v(KF[n&1]+4*ks_,4)}, {v(YA+16*N,16) if N in first else '0'}"); first.add(N)
            for t_, x in nx[per*i:per*i+per]: a(x); DS.add(t_)
            for x in fill_[5*i:5*i+5]: a(x)
        if n == 16:
            if SPLIT == 1: a(f"ds_write_b128 v{vY+1}, {v(YA+32,4)} offset:{YO[0]}")
            else: a(f"ds_write_b128 v{vY}, {v(YA+32,4)}")
            h_sig(1); DS.add("s", 2)
        if n == YSTEP:
            hl_wait(1, 0, L_C2)
            if SPLIT == 1: yread(UW, 1, 0)
            else: yread(UW, 0, 0)
            a("s_waitcnt lgkmcnt(0)"); DS.q = []
            yout(UW, 2)
        if n == opt.get("wosig", 6):
            a("s_waitcnt vmcnt(0)"); h_sig(0); DS.add("s")
    stamp("h")
    a(f"s_setprio {opt.get('yprio', 1)}")
    combine(3)
    a(f"ds_write_b128 v{vY+1}, {v(YA+48,4)} offset:2304")
    h_sig(2)
    hl_wait(2, 0, L_C2)
    yread(UF[0]+8, 1, 2.25)
    a("s_waitcnt lgkmcnt(0)")
    yout(UF[0]+8, 3)
    if prof:
        stamp("h"); a("s_waitcnt vmcnt(0)"); stamp("h")
    a("s_branch L_h_end")
    a("L_h_tr:")
    if WQPF == 3: wq_pf()
    a("s_waitcnt lgkmcnt(0)")
    if WQPF in (1, 2): wq_pf()
    tagfix()
    a(f"s_cmp_ge_u32 s{sS}, 2"); a("s_cbranch_scc1 L_h_now")
    HW = Regs(H.p); wP = HW(5)
    wpattern(wP, vL, hT, True)
    srd(a, sX, pWQ, 640*1280)
    a(f"s_mul_i32 s{sT3}, s{sS}, 160")
    a(f"s_add_u32 s{sC}, s{sH}, 16"); a(f"s_mul_i32 s{sC}, s{sC}, 40960"); a(f"s_add_u32 s{sC}, s{sC}, s{sT3}")
    a(f"s_mul_i32 s{sCh}, s{sH}, {4*40960}"); a(f"s_add_u32 s{sCh}, s{sCh}, s{sT3}")
    a(f"s_lshl_b32 s{sT5}, s{sH}, 2"); a(f"s_add_u32 s{sT5}, s{sT5}, {L_CNT}")
    early = opt.get("kvt", -1) >= 0
    a("s_waitcnt vmcnt(0)"); h_sig(0, L_CNT)
    hl_wait(8, 1, f"s{sT5}", 1)
    a(f"s_mul_i32 m0, s{sH}, 5120")
    wkstep_dma(wP, sX, sC)
    if early: hl_wait(8, 1, f"s{sT5}", 2)
    a(f"s_mul_i32 s{sT}, s{sH}, 20480"); a(f"s_add_u32 m0, s{sT}, {L_X}")
    for i in range(4):
        wkstep_dma(wP, sX, sCh)
        a(f"s_add_u32 s{sCh}, s{sCh}, 40960")
        if i >= 1:
            a("s_waitcnt vmcnt(10)"); h_sig(CW[i-1], L_CNT)
    a("s_waitcnt vmcnt(5)"); h_sig(CW[3], L_CNT)
    a("s_waitcnt vmcnt(0)"); h_sig(CW[4], L_CNT)
    a("L_h_now:")
    h_sig(4, L_CNT)
    pre_b1()
    a("s_waitcnt vmcnt(0)")
    a("s_barrier")
    for c in range(1, 8):
        seg_dma(c)
        if c == 1:
            zero_c2(False)
        if c == opt.get("upf", 1):
            srd(a, sX, pU, 2048*1280)
            a(f"s_and_b32 s{sT}, s2, 7"); a(f"s_lshl_b32 s{sT}, s{sT}, 3")
            a(f"s_mov_b32 s{sT2}, 0x08050200"); a(f"s_mov_b32 s{sT3}, 0x120f0c0a")
            a(f"s_lshr_b64 s[{sT2}:{sT3}], s[{sT2}:{sT3}], s{sT}"); a(f"s_and_b32 s{sT2}, s{sT2}, 0xff"); a(f"s_lshl_b32 s{sT2}, s{sT2}, 6")
            a(f"s_lshr_b32 s{sT}, s2, 3"); a(f"s_lshl_b32 s{sT}, s{sT}, 2"); a(f"s_add_u32 s{sT}, s{sT}, s{sH}"); a(f"s_add_u32 s{sT}, s{sT}, 32")
            a(f"s_mul_i32 s{sT}, s{sT}, {32*1280}"); a(f"s_add_u32 s{sT}, s{sT}, s{sT2}")
            a(f"v_lshrrev_b32 v{hT+6}, 1, v{vL}"); a(f"v_mul_u32_u24 v{hT+6}, 10, v{hT+6}"); a(f"v_and_b32 v{hT+7}, 1, v{vL}")
            a(f"v_add_lshl_u32 v{hT+6}, v{hT+6}, v{hT+7}, 7")
            a(f"buffer_load_dword v{hT+7}, v{hT+6}, s[{sX}:{sX+3}], s{sT} offen")
        if "s" in opt.get("wb", "") and c == 7:
            Lw = lab("wb")
            a(f"s_lshr_b32 s{sT}, s2, 3"); a(f"s_lshl_b32 s{sT}, s{sT}, 2"); a(f"s_add_u32 s{sT}, s{sT}, s{sH}")
            a(f"s_cmp_lg_u32 s{sT}, {4*opt.get('wbs', 0)+3}"); a(f"s_cbranch_scc1 {Lw}")
            a("buffer_wbl2 sc1")
            a(f"{Lw}:")
        a(f"s_waitcnt vmcnt({6 if c == opt.get('pseg', 5) and RLX & 1 else 1 if c == opt.get('upf', 1) else 0}) lgkmcnt(0)")
        if c == 7: seg_dma(7.5)
        a("s_barrier")
    seg_dma(8)
    a("s_waitcnt vmcnt(0)"); h_sig(0)
    tag_advance()
    WBM = opt.get("wb", "")
    if WBM:
        a(f"s_lshr_b32 s{sT}, s2, 3"); a(f"s_lshl_b32 s{sT}, s{sT}, 2"); a(f"s_add_u32 s{sT}, s{sT}, s{sH}")
        a(f"s_cmp_lg_u32 s{sT}, {4*opt.get('wbw', 8)+1}"); a("s_cbranch_scc1 L_h_end")
        if "a" in WBM: a("buffer_wbl2 sc1"); a("s_waitcnt vmcnt(0)")
        if "b" in WBM:
            hl_wait(3, 4, L_C2)
            a("buffer_wbl2 sc1"); a("s_waitcnt vmcnt(0)")
    a("L_h_end:")
    prof_store("h", hT)
    a("L_end:")
    a("s_endpgm")
    nv = max(hi_a, HK.hi, HC.hi)
    return a, nv

HDR = open("cdna_kernels/" + NAME + ".s.ref").read().split("; @launch")[0] if os.path.exists("cdna_kernels/" + NAME + ".s.ref") else ""
def build(path, prof=False, opt=None, verbose=False):
    a, nv = gen(prof, opt)
    lines = hz.fix(a.lines, verbose)
    body = "\n".join(lines) + "\n"
    k = NAME + "_kernel"
    nv = 256 if prof else max(nv, 129)
    txt = HDR + f"; @launch grid=(256,1,1) block=(512,1,1) lds={LDS_TOTAL}\n" + '.amdgcn_target "amdgcn-amd-amdhsa--gfx950"\n'
    txt += kernel_header(k) + body + "L_code_end:\n" + kernel_desc(k, nv)
    txt = txt.replace("CODE_BYTES", f"(L_code_end-{k}-64)&0xfffffffc")
    open(path, "w").write(txt)
    return nv
if __name__ == "__main__":
    nv = build("cdna_kernels/" + NAME + ".s", False, None, "-v" in sys.argv)
    print("vgprs", nv)
    build("k_prof.s", True)
    build("k_slow.s", False, {"forceslow": 1})
    import json
    for i, o in enumerate([x for x in sys.argv[1:] if x.startswith("{")]):
        if "-r" in sys.argv: build(f"k_r{i+1}.s", False, json.loads(o))
        else: build(f"k_prof{i+1}.s", True, json.loads(o))
```

```python
import sys, os
sys.path.insert(0, os.path.dirname(os.path.abspath(__file__)))
from asmlib import *
import hz
NAME = "concat_heads__grouped_kv_mqa__ssm_conv_s4__prompt"
WS_TAG=0; WS_FKV=0x1000; WS_FU=0x18000; WS_FY=0x8000; WS_FO=0x10000
WS_KV=0x20000; GRP=10496; CHUNK=21504
WS_O=0x400000; WS_OB=0x400000; WS_UT=0x300000; UTP=8448; WS_YT=0x900000; WS_PROF=0xC00000; WS_SIZE=0x1000000
L_X=21504; L_CNT=103424; L_WK=103552; L_SC=103552; SCP=8448; L_WO=2048; L_U=104448; UP=9216; L_Y=141312; L_C2=104448; L_XR=137344; L_KR=145408; KRP=4608; LDS_TOTAL=163840
sW=3; sG=4; sS=5; sTag=6; sT=7
sX=8; sWQ=12; P=16
pX,pWQ,pWK,pWV,pWO,pU,pAre,pAim,pBre,pBim,pCre,pCim,pLdt,pDs,pOut,pDbg,pWS = [16+2*i for i in range(17)]
sWS=52; sA=56
sT2=50; sT3=51; sC=60; sSlotN=61; sGo=62; sSlotD=63; sBound=64; sCh=65; sU0=66; sH=67; sT4=68; sT5=69
sPr=70
SPIN = 200000

def gen(prof=False, opt=None):
    opt = opt or {}
    a = Asm()
    uid = [0]
    def lab(p="L"):
        uid[0] += 1; return f"{p}_{uid[0]}"
    np_ = {"a": 0, "h": 0}
    phase = ["pro"]
    probe = opt.get("probe")
    SAME = opt.get("same", 0)
    def stamp(role, extra=False):
        if probe and role == "a" and not extra:
            if np_["a"] == probe[0]: a("s_memrealtime s[72:73]")
            np_["a"] += 1
        if not prof: return
        if role == "a" and opt.get("tailprof"):
            if phase[0] == "pro": return
        elif extra: return
        i = np_[role]; np_[role] += 1
        assert i < 14
        a(f"{'s_memtime' if opt.get('cyc') else 's_memrealtime'} s[{sPr+2*i}:{sPr+2*i+1}]")
    def prof_store(role, vt):
        if not prof: return
        a("s_waitcnt lgkmcnt(0)")
        a(f"s_lshl_b32 s{sT}, s2, 3"); a(f"s_add_u32 s{sT}, s{sT}, s{sW}"); a(f"s_lshl_b32 s{sT}, s{sT}, 6")
        a(f"s_add_u32 s{sT}, s{sT}, {WS_PROF}")
        a("s_mov_b64 exec, 1")
        a(f"v_mov_b32 v{vt+1}, 0")
        for i in range(np_[role]):
            a(f"v_mov_b32 v{vt}, s{sPr+2*i}")
            a(f"buffer_store_dword v{vt}, v{vt+1}, s[{sWS}:{sWS+3}], s{sT} offen offset:{4*i}")
        a("s_waitcnt vmcnt(0)")
    def poll(vP, vOff, soff, n=1, sleep=0):
        L = lab("poll"); D = lab("pdone")
        a(f"s_mov_b32 s{sBound}, {SPIN}")
        if sleep:
            L0 = lab("poll0"); a(f"s_branch {L0}")
        a(f"{L}:")
        if sleep:
            a(f"s_sleep {sleep}"); a(f"{L0}:")
        a(f"buffer_load_dword{'' if n==1 else 'x'+str(n)} {v(vP,n)}, v{vOff}, s[{sWS}:{sWS+3}], {soff} offen sc1")
        a(f"s_sub_u32 s{sBound}, s{sBound}, 1")
        a(f"s_cbranch_scc1 {D}")
        a("s_waitcnt vmcnt(0)")
        if n == 4:
            for i in range(4): a(f"v_xor_b32 v{vP+i}, s{sTag}, v{vP+i}")
            a(f"v_or3_b32 v{vP}, v{vP}, v{vP+1}, v{vP+2}")
            a(f"v_or_b32 v{vP}, v{vP}, v{vP+3}")
            a(f"v_cmp_ne_u32 vcc, 0, v{vP}")
        else:
            a(f"v_cmp_ne_u32 vcc, s{sTag}, v{vP}")
        a(f"s_cbranch_vccnz {L}")
        a(f"{D}:")
    def publish(vt, base, widx):
        a(f"s_lshl_b32 s{sT}, s2, 7"); a(f"s_lshl_b32 s{sT2}, s{widx}, 2"); a(f"s_add_u32 s{sT}, s{sT}, s{sT2}")
        a(f"s_add_u32 s{sT}, s{sT}, {base}")
        a(f"v_mov_b32 v{vt}, s{sTag}")
        a("s_mov_b64 exec, 1")
        a(f"buffer_store_dword v{vt}, off, s[{sWS}:{sWS+3}], s{sT} sc1")
        a("s_mov_b64 exec, -1")
    def ring_dma(wreg, vDma):
        for k in range(2):
            Lk = lab("dma")
            if k == 1:
                a(f"s_cmp_ge_u32 s{wreg}, 3"); a(f"s_cbranch_scc1 {Lk}")
            a(f"s_mul_i32 s{sT}, s{wreg}, 3072")
            if k: a(f"s_add_u32 s{sT}, s{sT}, {4*3072}")
            a(f"s_add_u32 m0, s{sT}, s{sSlotD}")
            a(f"s_add_u32 s{sT}, s{sT}, s{sGo}")
            for i in range(3):
                a(f"buffer_load_dwordx4 v{vDma}, s[{sWS}:{sWS+3}], s{sT} offen offset:{i*1024} sc1 lds")
            if k == 1: a(f"{Lk}:")
        a(f"s_add_u32 s{sGo}, s{sGo}, {CHUNK}")
        a(f"s_cmp_eq_u32 s{sGo}, {WS_KV+8*CHUNK}")
        a(f"s_cselect_b32 s{sGo}, {WS_KV}, s{sGo}")
        a(f"s_xor_b32 s{sSlotD}, s{sSlotD}, {CHUNK}")
    def wpattern(vP, vL, vt, perm):
        for p in range(5):
            a(f"v_add_u32 v{vt}, {64*p}, v{vL}")
            a(f"v_mul_u32_u24 v{vt+1}, 205, v{vt}")
            a(f"v_lshrrev_b32 v{vt+1}, 11, v{vt+1}")
            a(f"v_mul_u32_u24 v{vt+2}, 10, v{vt+1}")
            a(f"v_sub_u32 v{vt}, v{vt}, v{vt+2}")
            if perm:
                a(f"v_lshrrev_b32 v{vt+2}, 1, v{vt+1}")
                a(f"v_and_b32 v{vt+2}, 4, v{vt+2}")
                a(f"v_xor_b32 v{vt+1}, v{vt+1}, v{vt+2}")
            a(f"v_mul_u32_u24 v{vt+1}, 80, v{vt+1}")
            a(f"v_add_u32 v{vt}, v{vt}, v{vt+1}")
            if 0 < p < 4: a(f"v_subrev_u32 v{vt}, {64*p}, v{vt}")
            a(f"v_lshlrev_b32 v{vP+p}, 4, v{vt}")
    def wkstep_dma(vP, srd_, soff):
        for p in range(4):
            a(f"buffer_load_dwordx4 v{vP+p}, s[{srd_}:{srd_+3}], s{soff} offen offset:{p*1024} lds")
        a("s_add_u32 m0, m0, 4096")
        a(f"buffer_load_dwordx4 v{vP+4}, s[{srd_}:{srd_+3}], s{soff} offen lds")
        a("s_add_u32 m0, m0, 1024")

    if prof:
        a(f"{'s_memtime' if opt.get('cyc') else 's_memrealtime'} s[{sPr}:{sPr+1}]"); np_["a"] = np_["h"] = 1
    if probe: a("s_memrealtime s[70:71]"); np_["a"] = 1
    a("s_cmp_ge_u32 s2, 256")
    a("s_cbranch_scc1 L_end")
    a("s_load_dwordx16 s[16:31], s[0:1], 0")
    a("s_load_dwordx16 s[32:47], s[0:1], 64")
    a("s_load_dwordx2 s[48:49], s[0:1], 128")
    vL = 1
    a("v_lshrrev_b32 v2, 6, v0")
    a(f"v_and_b32 v{vL}, 63, v0")
    a(f"v_readfirstlane_b32 s{sW}, v2")
    if opt.get("codepf", 1):
        a("s_getpc_b64 s[50:51]")
        if opt.get("codepf", 1) == 1:
            a("s_lshr_b32 s4, s2, 3"); a("s_lshl_b32 s4, s4, 7")
            a("v_lshl_add_u32 v3, v2, 12, s4")
            a(f"v_lshl_add_u32 v3, v{vL}, 15, v3")
            a("v_min_u32 v3, CODE_BYTES, v3")
            a("s_mov_b64 exec, 3")
            a("global_load_dword v4, v3, s[50:51]")
            a("s_mov_b64 exec, -1")
        else:
            a("v_lshlrev_b32 v3, 7, v0")
            a("v_min_u32 v3, CODE_BYTES, v3")
            a("global_load_dword v4, v3, s[50:51]")
    a(f"s_and_b32 s{sG}, s2, 31")
    a(f"s_lshr_b32 s{sS}, s2, 5")
    a("v_mov_b32 v5, 0"); a("v_lshlrev_b32 v6, 2, v0"); a("v_and_b32 v6, 127, v6"); a(f"v_add_u32 v6, {L_CNT}, v6")
    a("ds_write_b32 v6, v5")
    FAST = opt.get("fast", 5)
    a(f"s_cmp_ge_u32 s{sW}, 4")
    if FAST & 1:
        a("s_cbranch_scc0 L_att"); a.lines.append("@@HPRE"); a("L_att:")
    else: a("s_cbranch_scc1 L_helper")
    NPF = 1 if opt.get("codepf", 1) else 0

    R = Regs(5)
    vT = R(4, 4); vDma = R(); vCnt = R(); vOne = R(); vPo = R(); vPv = R()
    vX0 = R(); vX1 = R(); vP = R(5)
    a(f"v_lshrrev_b32 v{vT}, 3, v{vL}")
    a(f"v_lshrrev_b32 v{vT+1}, 4, v{vL}")
    a(f"v_xor_b32 v{vT+1}, v{vT+1}, v{vL}")
    a(f"v_and_b32 v{vT+1}, 7, v{vT+1}")
    a(f"v_mul_u32_u24 v{vT}, 80, v{vT}")
    a(f"v_add_u32 v{vT}, v{vT}, v{vT+1}")
    a(f"v_lshlrev_b32 v{vX0}, 4, v{vT}")
    a(f"v_xor_b32 v{vX1}, 64, v{vX0}")
    a(f"v_add_u32 v{vX1}, 10240, v{vX1}")
    a(f"s_lshl_b32 s{sT}, s{sG}, 2"); a(f"s_add_u32 s{sT}, s{sT}, s{sW}"); a(f"s_mul_i32 s{sT2}, s{sT}, 20480")
    a(f"s_mul_i32 s{sT3}, s{sW}, 20480"); a(f"s_add_u32 s{sT3}, s{sT3}, {L_X}")
    a(f"v_lshlrev_b32 v{vDma}, 4, v{vL}")
    sI = sCh; sXo = sU0; sWo = sH
    a(f"s_lshr_b32 s{sI}, s{sG}, 3"); a(f"s_add_u32 s{sI}, s{sI}, s{sS}")
    if not opt.get("rot", 1): a(f"s_mov_b32 s{sI}, 0")
    for _ in range(2):
        a(f"s_sub_u32 s{sC}, s{sI}, 5"); a(f"s_cselect_b32 s{sI}, s{sI}, s{sC}")
    a(f"s_mul_i32 s{sT4}, s{sS}, 160")
    a(f"s_lshl_b32 s{sXo}, s{sI}, 8"); a(f"s_add_u32 s{sXo}, s{sXo}, s{sT2}"); a(f"s_add_u32 s{sC}, s{sT2}, 1280")
    a(f"s_mul_i32 s{sSlotN}, s{sW}, 6144"); a(f"s_add_u32 s{sSlotN}, s{sSlotN}, {L_XR}")
    if not FAST & 10: wpattern(vP, vL, vT, True)
    a("s_waitcnt lgkmcnt(0)")
    srd(a, sX, pX, 2048*1280)
    if not FAST & 10: srd(a, sWQ, pWQ, 640*1280)
    a(f"s_cmp_ge_u32 s{sS}, 2")
    if not FAST & 2: a("s_barrier")
    stamp("a")
    Lnokv = lab("nokv"); Lw1 = lab("w1")
    a(f"s_cbranch_scc1 {Lnokv}")
    def xpieces(js, soff):
        for j in js:
            a(f"buffer_load_dwordx4 v{vX0}, s[{sX}:{sX+3}], s{soff} offen offset:{128*j} lds")
            a("s_add_u32 m0, m0, 1024")
            a(f"buffer_load_dwordx4 v{vX1}, s[{sX}:{sX+3}], s{soff} offen offset:{128*j} lds")
            if j != js[-1]: a("s_add_u32 m0, m0, 896")
    NX0 = opt.get("nx0", 6)
    a(f"s_mov_b32 m0, s{sT3}")
    NXA = opt.get("nxa", 3)
    xpieces(list(range(NXA)), sT2)
    a(f"s_mov_b32 s{sSlotN}, s{sT3}")
    a(f"s_branch {Lw1}")
    a(f"{Lnokv}:")
    sXe = sC; sXr = sSlotN
    def gx(js):
        for j in js:
            a(f"s_add_u32 m0, s{sXr}, {2048*(j%3)}")
            xpieces([0], sXo)
            a(f"s_add_u32 s{sXo}, s{sXo}, 128"); a(f"s_cmp_eq_u32 s{sXo}, s{sXe}"); a(f"s_cselect_b32 s{sXo}, s{sT2}, s{sXo}")
    def gw(i):
        a(f"s_lshl_b32 s{sWo}, s{sI}, 2"); a(f"s_add_u32 s{sWo}, s{sWo}, s{sW}"); a(f"s_mul_i32 s{sWo}, s{sWo}, 40960"); a(f"s_add_u32 s{sWo}, s{sWo}, s{sT4}")
        if i == 0: a(f"s_mul_i32 m0, s{sW}, 5120")
        else: a(f"s_add_u32 m0, s{sT3}, {5120*(i-1)}")
        wkstep_dma(vP, sWQ, sWo)
        a(f"s_add_u32 s{sI}, s{sI}, 1"); a(f"s_cmp_eq_u32 s{sI}, 5"); a(f"s_cselect_b32 s{sI}, 0, s{sI}")
    gx([0, 1, 2])
    if opt.get("w0early", 0): gw(0)
    a(f"{Lw1}:")
    if FAST & 10:
        assert not opt.get("w0early", 0)
        if FAST & 2: a("s_barrier")
        wpattern(vP, vL, vT, True); srd(a, sWQ, pWQ, 640*1280)
    a(f"s_load_dword s{sTag}, s[{pWS}:{pWS+1}], {WS_TAG}")
    srd(a, sWS, pWS, WS_SIZE)
    vXr = R(2); vAB = R(2); vE = R(2); vAB2 = R(2); vE2 = R(2)
    a(f"v_and_b32 v{vT}, 15, v{vL}")
    a(f"v_lshrrev_b32 v{vT+1}, 4, v{vL}")
    a(f"v_lshrrev_b32 v{vT+2}, 1, v{vT}")
    a(f"v_xor_b32 v{vT+2}, v{vT+2}, v{vT+1}")
    a(f"v_lshlrev_b32 v{vT+2}, 4, v{vT+2}")
    a(f"v_lshlrev_b32 v{vT}, 7, v{vT}")
    a(f"v_add3_u32 v{vXr}, v{vT}, v{vT+2}, s{sSlotN}")
    a(f"v_xor_b32 v{vXr+1}, 64, v{vXr}")
    a(f"v_bfe_u32 v{vT}, v{vL}, 2, 2")
    a(f"v_lshl_add_u32 v{vT}, v{vT+1}, 3, v{vT}")
    vKM = 19; vKE = 25; assert vP == 20 and vXr == 26
    a(f"v_mul_u32_u24 v{vT+2}, 40, v{vT}")
    a(f"v_add_u32 v{vKE}, {L_WK+32}, v{vT+2}")
    a(f"v_and_b32 v{vT+3}, 3, v{vL}")
    a(f"v_lshl_add_u32 v{vT+2}, v{vT+3}, 3, v{vT+2}")
    a(f"v_add_u32 v{vKM}, {L_WK}, v{vT+2}")
    a(f"v_and_b32 v{vT+2}, 1, v{vT+1}")
    a(f"v_lshl_add_u32 v{vT}, v{vT+2}, 2, v{vT}")
    a(f"v_xor_b32 v{vT+2}, 4, v{vT}")
    a(f"v_mul_u32_u24 v{vT}, 160, v{vT}")
    a(f"v_mul_u32_u24 v{vT+2}, 160, v{vT+2}")
    a(f"v_mul_u32_u24 v{vT+3}, 40, v{vT+3}")
    a(f"v_add3_u32 v{vE2}, v{vT}, v{vT+3}, 32"); a(f"v_add3_u32 v{vE2+1}, v{vT+2}, v{vT+3}, 32")
    a(f"v_and_b32 v{vT+3}, 1, v{vL}")
    a(f"v_mul_u32_u24 v{vT+3}, 40, v{vT+3}")
    a(f"v_and_b32 v{vT+1}, 2, v{vL}")
    a(f"v_lshl_add_u32 v{vT+3}, v{vT+1}, 3, v{vT+3}")
    a(f"v_add_u32 v{vAB2}, v{vT}, v{vT+3}"); a(f"v_add_u32 v{vAB2+1}, v{vT+2}, v{vT+3}")
    for x, y in ((vAB2, vAB), (vAB2+1, vAB+1), (vE2, vE), (vE2+1, vE+1)):
        a(f"v_add_u32 v{y}, 51200, v{x}")
    vSig = 7
    a(f"v_mov_b32 v{vCnt}, {L_CNT}"); a(f"v_mov_b32 v{vOne}, 1")
    a(f"v_min_u32 v{vSig}, 1, v{vL}"); a(f"v_mul_u32_u24 v{vSig}, {LDS_TOTAL-L_CNT}, v{vSig}"); a(f"v_add_u32 v{vSig}, {L_CNT}, v{vSig}")
    a(f"s_and_b32 s{sT}, s{sG}, 28"); a(f"s_add_u32 s{sT}, s{sT}, s{sW}")
    FE = opt.get("fearly", 2)
    if FE == 3:
        a(f"v_bfe_u32 v{vT+1}, v{vL}, 3, 1"); a(f"v_lshl_add_u32 v{vT+1}, v{vT+1}, 2, s{sT}"); a(f"v_and_b32 v{vT+1}, 31, v{vT+1}")
    else: a(f"v_mov_b32 v{vT+1}, s{sT}")
    a(f"v_and_b32 v{vT+2}, 4, v{vL}"); a(f"v_lshl_add_u32 v{vT+1}, v{vT+2}, 3, v{vT+1}")
    a(f"v_lshlrev_b32 v{vT+1}, 5, v{vT+1}"); a(f"v_and_b32 v{vT+2}, 3, v{vL}"); a(f"v_add_u32 v{vT+1}, v{vT+1}, v{vT+2}")
    a(f"v_lshlrev_b32 v{vPo}, 2, v{vT+1}"); a(f"v_add_u32 v{vPo}, {WS_FKV}, v{vPo}")
    def tagfix(): a(f"s_mul_i32 s{sTag}, s{sTag}, 1664525"); a(f"s_add_u32 s{sTag}, s{sTag}, 1013904223")
    def lsig(k):
        a(f"ds_add_u32 v{vSig}, v{vOne} offset:{4*k}")
    def lwait(k, n=4):
        L = lab("ls"); D = lab("lsd")
        a(f"s_mov_b32 s{sBound}, {SPIN*4}")
        a(f"{L}:")
        a(f"ds_read_b32 v{vT}, v{vCnt} offset:{4*k}")
        a(f"s_sub_u32 s{sBound}, s{sBound}, 1"); a(f"s_cbranch_scc1 {D}")
        a("s_waitcnt lgkmcnt(0)")
        a(f"v_cmp_gt_u32 vcc, {n}, v{vT}")
        a(f"s_cbranch_vccnz {L}")
        a(f"{D}:")
    XF = R(80, 4); ACC = R(20, 4); WF = [R(20, 4), R(20, 4), R(20, 4)]
    assert R.p == 196 and ACC == 116
    RA = Regs(20)
    NB = 4
    Q1 = [RA(4, 4) for _ in range(2)]; Q2a = [RA(2) for _ in range(2)]; Q2b = [RA(2) for _ in range(2)]
    C = [RA(16, 4) for _ in range(2)]
    K1 = [RA(4, 4) for _ in range(2)]; K2 = [RA(4, 4) for _ in range(2)]
    V0 = [RA(4, 4) for _ in range(2)]; V1 = [RA(4, 4), 236]
    assert RA.p <= ACC
    S = [140+16*i for i in range(NB)]; O = [204, 220]
    vK0, vV0, vK, vV, vIdx = range(240, 245); RA.hi = 245
    vLow = 245
    a(f"v_mov_b32 v{vLow}, 0x30800000")
    a(f"v_mov_b32 v{vIdx}, 0xdddd")
    a(f"v_mov_b32 v{vK0}, v{vDma}")
    a(f"v_and_b32 v{vT+2}, 31, v{vL}"); a(f"v_min_u32 v{vT+2}, 20, v{vT+2}"); a(f"v_lshlrev_b32 v{vT+2}, 4, v{vT+2}")
    a(f"v_lshrrev_b32 v{vT+3}, 5, v{vL}"); a(f"v_mul_u32_u24 v{vT+3}, 336, v{vT+3}")
    a(f"v_add_u32 v{vV0}, v{vT+2}, v{vT+3}"); a(f"v_add_u32 v{vV0}, 5120, v{vV0}")
    a("s_mov_b32 exec_lo, 0xeef00000"); a("s_mov_b32 exec_hi, 0xeef00000")
    a(f"v_mov_b32 v{vV0}, {LDS_TOTAL}")
    a("s_mov_b64 exec, -1")
    a(f"v_mov_b32 v{vK}, v{vK0}"); a(f"v_mov_b32 v{vV}, v{vV0}")
    for i in range(196, 240): a(f"v_mov_b32 v{i}, 0")
    import struct
    cbits = struct.unpack("<I", struct.pack("<f", (20**-0.5)*1.4426950408889634))[0]
    if opt.get("qprio", 1): a("s_setprio 2")
    def xrd(k, off): return f"ds_read_b128 {v(XF+4*k,4)}, v{vXr+(k&1)} offset:{off}"
    class Q:
        def __init__(self, name, cap_): self.q = []; self.name = name; self.cap = cap_
        def add(self, tag, n=1): self.q += [tag]*n
        def wait(self, *tags):
            idx = [i for i, t in enumerate(self.q) if t in tags]
            if not idx: return
            n = len(self.q) - 1 - max(idx)
            a(f"s_waitcnt {self.name}({min(n, self.cap)})")
            self.q = self.q[len(self.q)-min(n, self.cap):]
    def xnext(j, DS=None):
        a(f"s_waitcnt vmcnt({2*(min(10, j+NX0)-j-1)})")
        a(xrd(2*j, 2048*j)); a(xrd(2*j+1, 2048*j))
        if DS: DS.add(("x", j), 2)
        if j+NX0 < 10:
            a(f"s_add_u32 m0, s{sT3}, {1920*(j+NX0)}")
            xpieces([j+NX0], sXo)
    XL = opt.get("xl", 0)
    def xstream(mm, post, DS):
        if not XL: xnext(0, DS)
        for j in range(1, 11):
            if j-1+max(XL, 1) < 10: xnext(j-1+max(XL, 1), DS)
            DS.wait(("x", j-1), ("k", 2*j-2), ("k", 2*j-1))
            mm(2*j-2); mm(2*j-1)
            post(j)
    def qrd(addr, buf):
        hi = addr >= 51200
        off = addr - (51200 if hi else 0)
        r = []
        if addr >= 102400:
            off = addr - 102400
            return [f"ds_read_b64_tr_b16 {v(buf+4*t5+2*t,2)}, v{vP+(0 if t5 < 4 else 2)+t} offset:{off+(80*(t5>>1)+8*(t5&1) if t5 < 4 else 0)}" for t5 in range(5) for t in range(2)]
        for t5 in range(5):
            for t in range(2):
                if t5 < 4: r.append(f"ds_read_b64_tr_b16 {v(buf+4*t5+2*t,2)}, v{(vAB if hi else vAB2)+t} offset:{off+80*(t5>>1)+8*(t5&1)}")
                else: r.append(f"ds_read_b64_tr_b16 {v(buf+16+2*t,2)}, v{(vE if hi else vE2)+t} offset:{off}")
        return r
    def cap(fn):
        keep = a.lines; a.lines = []
        fn()
        got = a.lines; a.lines = keep
        gr = [[]]
        for l in got:
            gr[-1].append(l)
            if "exec_hi, -1" in l and len(gr) > 1 and len(gr[-1]) == 1: gr[-2].append(gr[-1].pop())
            if "buffer_load" in l: gr.append([])
        if len(gr) > 1:
            t_ = gr.pop(); gr[-1] += t_
        return gr
    spins = []
    def qpipe(ks, VM, dma, hook):
        DS = Q("lgkmcnt", 15)
        for n in range(2):
            for x in qrd(ks[n][1], WF[n]): a(x)
            DS.add(("w", n), 10)
        for n, (k, _) in enumerate(ks):
            buf = WF[n % 3]
            nx = qrd(ks[n+2][1], WF[(n+2) % 3]) if n+2 < len(ks) else []
            hook(n, DS)
            DS.wait(("w", n), ("x", k//2))
            chk = n % 4 == 2 and nx
            per = [0, 0, 4, 3, 3] if chk else [2]*5
            for t5 in range(5):
                if not opt.get("noq"): a(f"v_mfma_f32_16x16x32_bf16 {v(ACC+4*t5,4)}, {v(buf+4*t5,4)}, {v(XF+4*k,4)}, {'0' if n==0 else v(ACC+4*t5,4)}")
                if chk and t5 == 2:
                    Ls = lab("spin"); Lb = lab("back")
                    DS.wait("chk")
                    a(f"v_cmp_gt_u32 vcc, 4, v{vT}"); a(f"s_cbranch_vccnz {Ls}"); a(f"{Lb}:")
                    spins.append((Ls, Lb, CW[n//4+1]))
                for x in nx[sum(per[:t5]):sum(per[:t5+1])]: a(x); DS.add(("w", n+2))
                for tag, dep, lines in dma.get(5*n+t5, []):
                    if dep is not None: DS.wait(dep)
                    for x in lines: a(x)
                    VM.add(tag)
            if n % 4 == 1 and n+3 < len(ks):
                a(f"ds_read_b32 v{vT}, v{vCnt} offset:{4*CW[n//4+1]}"); DS.add("chk")
    def pload(): a(f"buffer_load_dword v{vPv}, v{vPo}, s[{sWS}:{sWS+3}], 0 offen sc1")
    def gate():
        a(f"v_cmp_ne_u32 vcc, s{sTag}, v{vPv}")
        a(f"s_mov_b64 s[{sA}:{sA+1}], s[{sWS}:{sWS+1}]"); a(f"s_mov_b32 s{sA+3}, s{sWS+3}")
        a("s_cmp_eq_u64 vcc, 0")
        a(f"s_cselect_b32 s{sA+2}, s{sWS+2}, 0"); a(f"s_cselect_b32 s{sSlotD}, 1, 0")
    def own_dma(slot, sWS=sWS):
        a(f"s_lshr_b32 s{sGo}, s{sG}, 2"); a(f"s_mul_i32 s{sGo}, s{sGo}, {CHUNK}"); a(f"s_add_u32 s{sGo}, s{sGo}, {WS_KV}")
        a(f"s_lshr_b32 s{sT}, s{sW}, 1"); a(f"s_mul_i32 s{sT}, s{sT}, {GRP}"); a(f"s_and_b32 s{sT2}, s{sW}, 1")
        for mul, add, parts in ((2048, 0, [(0, None), (1024, None)]), (512, 4096, [(0, (-1, 0))]), (2688, 5120, [(0, None), (1024, None), (2048, (-1, 0xff))])):
            a(f"s_mul_i32 s{sT5}, s{sT2}, {mul}"); a(f"s_add_u32 s{sT5}, s{sT5}, s{sT}")
            a(f"s_add_u32 m0, s{sT5}, {slot+add}")
            a(f"s_add_u32 s{sT5}, s{sT5}, s{sGo}")
            if add: a(f"s_add_u32 s{sT5}, s{sT5}, {add}")
            for off, ex in parts:
                if ex: a(f"s_mov_b32 exec_hi, {ex[1]}")
                a(f"buffer_load_dwordx4 v{vDma}, s[{sWS}:{sWS+3}], s{sT5} offen offset:{off} sc1 lds")
                if ex: a("s_mov_b32 exec_hi, -1")
    vO8, vWm, vWl = 246, 247, 248
    def tail_addr():
        a(f"v_bfe_u32 v{vT}, v{vL}, 2, 2")
        a(f"v_bfe_u32 v{vT+1}, v{vL}, 4, 1")
        a(f"v_mul_u32_u24 v{vT+1}, 20, v{vT+1}"); a(f"v_add_u32 v{vT}, v{vT}, v{vT+1}")
        a(f"v_lshrrev_b32 v{vT+1}, 5, v{vL}")
        a(f"v_mul_u32_u24 v{vT+2}, 40, v{vT+1}"); a(f"v_add3_u32 v{vT+2}, v{vT+2}, v{vT}, 16")
        a(f"v_lshl_add_u32 v{vT}, v{vT+1}, 2, v{vT}")
        a(f"v_and_b32 v{vT+1}, 3, v{vL}"); a(f"v_mul_u32_u24 v{vT+1}, 40, v{vT+1}"); a(f"v_add_u32 v{vT+1}, {L_WO+51200}, v{vT+1}")
        a(f"v_mul_u32_u24 v{vT}, 160, v{vT}"); a(f"v_add_u32 v{vWm}, v{vT}, v{vT+1}")
        a(f"v_mul_u32_u24 v{vT+2}, 160, v{vT+2}"); a(f"v_add_u32 v{vWl}, v{vT+2}, v{vT+1}")
        a(f"v_lshlrev_b32 v{vO8}, 3, v{vL}")
    CW = [1, 2, 5, 6, 7]
    a(f"s_mov_b32 s{sSlotD}, 0")
    Lq = lab("qonly"); Lj = lab("join")
    a(f"s_cmp_ge_u32 s{sS}, 2")
    a(f"s_cbranch_scc1 {Lq}")
    KW = ACC + 12; NKW = (196 - KW)//8
    def kvrd(k):
        b = KW + 8*(k % NKW)
        return [f"ds_read_b64_tr_b16 {v(b+2*t,2)}, v{vKM} offset:{1280*k+160*t}" for t in range(2)] + \
               [f"ds_read_b64_tr_b16 {v(b+4+2*t,2)}, v{vKE} offset:{1280*k+160*t}" for t in range(2)]
    a(f"s_mov_b32 s{sXo}, s{sT2}")
    a(f"s_add_u32 m0, s{sT3}, {1920*NXA}")
    xpieces(list(range(NXA, NX0)), sXo)
    a(f"s_lshr_b32 s{sT}, s{sG}, 2"); a(f"s_mul_i32 s{sT}, s{sT}, {CHUNK}")
    a(f"s_bfe_u32 s{sT2}, s{sG}, 0x10001"); a(f"s_mul_i32 s{sT2}, s{sT2}, {GRP}")
    a(f"s_add_u32 s{sT}, s{sT}, s{sT2}"); a(f"s_add_u32 s{sGo}, s{sT}, {WS_KV}")
    a(f"s_and_b32 s{sT}, s{sG}, 1"); a(f"s_lshl_b32 s{sT}, s{sT}, 1"); a(f"s_lshr_b32 s{sT2}, s{sW}, 1"); a(f"s_add_u32 s{sC}, s{sT}, s{sT2}")
    a(f"s_and_b32 s{sT5}, s{sW}, 1")
    tail_addr()
    if opt.get("xpre", 0):
        for j in range(NX0, 10):
            a(f"s_waitcnt vmcnt({2*(NX0-1)})")
            a(f"s_add_u32 m0, s{sT3}, {1920*j}")
            xpieces([j], sXo)
        NX0 = 10
    for j in range(XL): xnext(j)
    lwait(0)
    tagfix()
    stamp("a")
    NPRE = opt.get("npre", 4)
    for k in range(NPRE):
        for x in kvrd(k): a(x)
    def wsig():
        a(f"s_lshl_b32 s{sH}, s{sW}, 2"); a(f"v_add_u32 v{vT}, s{sH}, v{vCnt}")
        a("s_mov_b64 exec, 1"); a(f"ds_add_u32 v{vT}, v{vOne} offset:32"); a("s_mov_b64 exec, -1")
    def kvproj(isK):
        D1 = ACC; D2 = ACC+4
        DS = Q("lgkmcnt", 15)
        for k in range(NPRE): DS.add(("k", k), 4)
        def mm(k):
            b = KW + 8*(k % NKW)
            nx = kvrd(k+NPRE) if k+NPRE < 20 else []
            for D, o in ((D1, 0), (D2, 4)):
                A_, B_ = v(b+o,4), v(XF+4*k,4)
                if not isK: A_, B_ = B_, A_
                a(f"v_mfma_f32_16x16x32_bf16 {v(D,4)}, {A_}, {B_}, {'0' if k==0 else v(D,4)}")
                for x in nx[o//2:o//2+2]: a(x); DS.add(("k", k+NPRE))
        def post(j):
            if j == opt.get("kvt", -1): wsig(); DS.add("sig")
        xstream(mm, post, DS)
    LV = lab("isv"); LKd = lab("kvdone")
    a(f"s_cmp_eq_u32 s{sS}, 1"); a(f"s_cbranch_scc1 {LV}")
    def pack_swap():
        D1 = ACC; D2 = ACC+4
        a(f"v_cvt_pk_bf16_f32 v{ACC+8}, v{D1}, v{D1+1}"); a(f"v_cvt_pk_bf16_f32 v{ACC+9}, v{D1+2}, v{D1+3}")
        a(f"v_cvt_pk_bf16_f32 v{ACC+10}, v{D2}, v{D2+1}"); a(f"v_cvt_pk_bf16_f32 v{ACC+11}, v{D2+2}, v{D2+3}")
        a(f"v_permlane16_swap_b32 v{ACC+8}, v{ACC+10}")
        a(f"v_permlane16_swap_b32 v{ACC+9}, v{ACC+11}")
    a(f"v_and_b32 v{vT+2}, 15, v{vL}"); a(f"v_lshlrev_b32 v{vT+2}, 4, v{vT+2}")
    a(f"v_and_b32 v{vT+3}, 32, v{vL}"); a(f"v_lshl_add_u32 v{vT+3}, v{vT+3}, 4, v{vT+2}")
    a(f"s_lshl_b32 s{sT5}, s{sT5}, 8"); a(f"s_add_u32 s{sGo}, s{sGo}, s{sT5}")
    a(f"s_lshl_b32 s{sT}, s{sC}, 10"); a(f"s_add_u32 s{sT}, s{sT}, s{sGo}")
    a(f"s_lshr_b32 s{sT2}, s{sC}, 1"); a(f"s_lshl_b32 s{sT2}, s{sT2}, 9"); a(f"s_add_u32 s{sT2}, s{sT2}, s{sGo}")
    a(f"s_and_b32 s{sT5}, s{sC}, 1"); a(f"s_lshl_b32 s{sT5}, s{sT5}, 3"); a(f"s_add_u32 s{sT2}, s{sT2}, s{sT5}"); a(f"s_add_u32 s{sT2}, s{sT2}, 4096")
    kvproj(True)
    for i in range(8): a(f"v_mul_f32 v{ACC+i}, {cbits:#x}, v{ACC+i}")
    pack_swap()
    a("s_mov_b32 exec_lo, 0xffff"); a("s_mov_b32 exec_hi, 0xffff")
    a(f"buffer_store_dwordx4 {v(ACC+8,4)}, v{vT+3}, s[{sWS}:{sWS+3}], s{sT} offen sc1")
    a("s_mov_b32 exec_lo, 0xffff0000"); a("s_mov_b32 exec_hi, 0")
    a(f"buffer_store_dwordx2 {v(ACC+8,2)}, v{vT+2}, s[{sWS}:{sWS+3}], s{sT2} offen sc1")
    a(f"s_branch {LKd}")
    a(f"{LV}:")
    a(f"v_and_b32 v{vT+2}, 31, v{vL}"); a(f"v_lshlrev_b32 v{vT+2}, 4, v{vT+2}")
    a(f"v_lshrrev_b32 v{vT+3}, 5, v{vL}"); a(f"v_mul_u32_u24 v{vT+3}, 336, v{vT+3}"); a(f"v_add_u32 v{vT+3}, v{vT+3}, v{vT+2}")
    a(f"s_mul_i32 s{sT5}, s{sT5}, 672"); a(f"s_mul_i32 s{sT}, s{sC}, 1344"); a(f"s_add_u32 s{sT}, s{sT}, s{sT5}")
    a(f"s_add_u32 s{sT}, s{sT}, s{sGo}"); a(f"s_add_u32 s{sT}, s{sT}, 5120")
    kvproj(False)
    pack_swap()
    a("s_mov_b32 exec_lo, 0x100000"); a("s_mov_b32 exec_hi, 0x100000")
    for i in range(4): a(f"v_mov_b32 v{ACC+8+i}, 0x3f803f80")
    a("s_mov_b32 exec_lo, 0x1fffff"); a("s_mov_b32 exec_hi, 0x1fffff")
    a(f"buffer_store_dwordx4 {v(ACC+8,4)}, v{vT+3}, s[{sWS}:{sWS+3}], s{sT} offen sc1")
    a(f"{LKd}:")
    a("s_mov_b64 exec, -1")
    stamp("a")
    wsig()
    a("s_waitcnt vmcnt(0)")
    publish(vT, WS_FKV, sW)
    stamp("a")
    KVS = opt.get("kvs", 12)
    def kvslots(dma):
        for i_, gr in enumerate(cap(lambda: own_dma(0, sA))): dma.setdefault(5*KVS+3+2*i_, []).append(("kv", None, gr))
    def kvdone(DS):
        Lz = lab("z")
        DS.wait(("w", 19))
        a("s_waitcnt vmcnt(0)")
        a(f"s_cmp_eq_u32 s{sSlotD}, 0"); a(f"s_cbranch_scc1 {Lz}"); lsig(4); a(f"{Lz}:")
    def kvhook(n, DS):
        if n == 4: lsig(12); DS.add("sig")
        if n == 8: pload()
        if n == 12:
            stamp("a")
            lwait(12)
        if n == KVS: a("s_waitcnt vmcnt(0)"); gate()
        if n == 19: kvdone(DS)
    KV2 = opt.get("kv2", 0); L_F = 132224
    if KV2:
        for i, x in enumerate((vAB, vAB+1, vE, vE+1)): a(f"v_add_u32 v{vP+i}, 51200, v{x}")
    lwait(CW[0])
    dma = {}; kvslots(dma)
    qpipe([(16+w_, 5120*w_) if i == 0 else (4*w_, L_F + 5120*w_) if i == 1 and KV2 else (4*w_+i-1, L_X + 5120*(4*w_+i-1)) for i in range(5) for w_ in range(4)], Q("vmcnt", 63), dma, kvhook)
    a(f"s_branch {Lj}")
    a(f"{Lq}:")
    if probe or prof and not opt.get("tailprof"): np_["a"] -= 4
    def xget(js):
        for j in js:
            for t in range(2): a(xrd(2*j+t, 2048*(j%3)))
    VM = Q("vmcnt", 63)
    VM.add("x012", 6); VM.add("W0", 5)
    if not opt.get("w0early", 0): gw(0)
    gw(1); VM.add("W1", 5)
    tail_addr()
    VM.wait("x012"); xget([0, 1, 2]); a("s_waitcnt lgkmcnt(0)")
    stamp("a")
    tagfix()
    gx([3, 4, 5]); VM.add("x345", 6)
    VM.wait("W0"); lsig(CW[0])
    dma = {}
    pos = [0]; DP = opt.get("dp", 2)
    def put(tag, fn, start=0, dep=None):
        pos[0] = max(pos[0], start)
        for gr in cap(fn):
            dma.setdefault(pos[0], []).append((tag, dep, gr)); pos[0] += DP
    XG2 = opt.get("xg2", 5)
    put("W2", lambda: gw(2)); put("x678", lambda: gx([6, 7, 8]), 8, ("x", 5)); put("W3", lambda: gw(3))
    put("x9", lambda: gx([9]), 5*XG2+3, ("x", 6)); put("W4", lambda: gw(4)); put("pl", pload, 5*opt.get("plstep", 8))
    kvslots(dma)
    def qhook(n, DS):
        def get(js):
            xget(js)
            for j in js: DS.add(("x", j), 2)
        later = {t for sl, l in dma.items() if sl >= 5*n for t, _, _ in l}
        assert not (n == XG2 and "x678" in later) and not (n == 13 and "x9" in later) and not (n % 4 == 1 and f"W{n//4+1}" in later) and not (n == KVS and "pl" in later) and not (n == 19 and later)
        if n == 1: VM.wait("x345"); get([3, 4, 5])
        if n == XG2: VM.wait("x678"); get([6, 7, 8])
        if n == 13: VM.wait("x9"); get([9])
        if n % 4 == 1 and n < 16:
            VM.wait(f"W{n//4+1}"); lsig(CW[n//4+1]); DS.add("sig")
        if n in (4, 12, 16): stamp("a")
        if n == KVS: VM.wait("pl"); gate()
        if n == 15: DS.wait(("x", 9)); lsig(13); DS.add("sig")
        if n == 19: kvdone(DS)
    lwait(CW[0])
    qpipe([(4*i+w_, 5120*w_ if i == 0 else L_X + 20480*w_ + 5120*(i-1)) for i in range(5) for w_ in range(4)], VM, dma, qhook)
    a(f"{Lj}:")
    stamp("a")
    Lp4 = lab("p4")
    a(f"s_cmp_eq_u32 s{sSlotD}, 1"); a(f"s_cbranch_scc1 {Lp4}")
    poll(vPv, vPo, "0")
    own_dma(0)
    a("s_waitcnt vmcnt(0)")
    lsig(4)
    a(f"{Lp4}:")
    stamp("a")
    a("s_setprio 0")
    lwait(4, 8)
    a("s_setprio 2")
    a(f"ds_read_b128 {v(K1[0],4)}, v{vK}"); a(f"ds_read_b128 {v(K2[0],4)}, v{vK} offset:4096")
    a(f"ds_read_b128 {v(V0[0],4)}, v{vV}"); a(f"ds_read_b128 {v(V1[0],4)}, v{vV} offset:672")
    for j in range(2):
        for i in range(4): a(f"v_cvt_pk_bf16_f32 v{Q1[j]+i}, v{ACC+8*j+2*i}, v{ACC+8*j+2*i+1}")
    B2 = opt.get("b2", 1)
    for i in range(2):
        a(f"v_cvt_pk_bf16_f32 v{Q2a[0]+i}, v{ACC+16+2*i}, v{ACC+17+2*i}")
        if B2: continue
        a(f"v_mov_b32 v{Q2a[1]+i}, 0"); a(f"v_mov_b32 v{Q2b[0]+i}, 0")
        a(f"v_mov_b32 v{Q2b[1]+i}, v{Q2a[0]+i}")
    for i in range(0 if B2 else 2):
        a(f"v_permlane32_swap_b32 v{Q2a[0]+i}, v{Q2a[1]+i}")
        a(f"v_permlane32_swap_b32 v{Q2b[0]+i}, v{Q2b[1]+i}")
    a(f"s_lshl_b32 s{sT}, s{sG}, 7"); a(f"s_add_u32 s{sT}, s{sT}, {WS_FO}")
    a(f"v_and_b32 v{vPo}, 7, v{vL}"); a(f"v_lshlrev_b32 v{vPo}, 12, v{vPo}"); a(f"v_add_u32 v{vPo}, s{sT}, v{vPo}")
    phase[0] = "tail"
    stamp("a")
    TPC = 8
    def rdK1(T):
        Tl = T % TPC
        return f"ds_read_b128 {v(K1[T%2],4)}, v{vK} offset:{(Tl//4)*GRP + (Tl%4)*1024}"
    def rdK2(T):
        Tl = T % TPC
        return f"ds_read_b128 {v(K2[(T//4)%2],4)}, v{vK} offset:{(Tl//4)*GRP+4096}"
    def rdV(T, sidx):
        Tl = T % TPC
        buf = (V0 if sidx == 0 else V1)[T%2]
        return f"ds_read_b128 {v(buf,4)}, v{vV} offset:{(Tl//4)*GRP+(Tl%4)*1344+sidx*672}"
    def qkA(n, cz=False):
        T, j = divmod(n, 2); t4 = T % 4
        q = Q2a[j] if t4 < 2 else Q2b[j]
        return f"v_mfma_f32_32x32x8_bf16 {v(S[n%NB],16)}, {v(K2[(T//4)%2]+2*(t4&1),2)}, {v(q,2)}, " + ("0" if cz else v(C[j],16))
    def qk2(T, c="0"):
        t4 = T % 4
        return f"v_mfma_f32_32x32x4_2b_bf16 {v(S[2*T%NB],32)}, {v(K2[(T//4)%2]+2*(t4&1),2)}, {v(Q2a[0],2)}, {c} cbsz:1 abid:{t4>>1}"
    def qkB(n):
        T, j = divmod(n, 2)
        return f"v_mfma_f32_32x32x16_bf16 {v(S[n%NB],16)}, {v(K1[T%2],4)}, {v(Q1[j],4)}, {v(S[n%NB],16)}"
    def pv(n, sidx):
        T, j = divmod(n, 2)
        buf = (V0 if sidx == 0 else V1)[T%2]
        return f"v_smfmac_f32_32x32x32_bf16 {v(O[j],16)}, {v(buf,4)}, {v(S[n%NB]+8*sidx,8)}, v{vIdx}"
    def rowmax(Sj, dst, init=None):
        if init is None:
            a(f"v_max3_f32 v{dst}, v{Sj}, v{Sj+1}, v{Sj+2}")
            for i in range(3, 15, 2): a(f"v_max3_f32 v{dst}, v{dst}, v{Sj+i}, v{Sj+i+1}")
            a(f"v_max_f32 v{dst}, v{dst}, v{Sj+15}")
        else:
            for i in range(0, 16, 2): a(f"v_max3_f32 v{dst}, v{dst}, v{Sj+i}, v{Sj+i+1}")
    def setC(j, m, t2):
        a(f"v_mov_b32 v{t2}, v{m}")
        a(f"v_permlane32_swap_b32 v{m}, v{t2}")
        a(f"v_max_f32 v{m}, v{m}, v{t2}")
        for i in range(16): a(f"v_sub_f32 v{C[j]+i}, 0, v{m}")
    vPr = 250
    a("s_waitcnt lgkmcnt(2)")
    M0 = opt.get("m0", 0)
    if M0:
        for j in range(2):
            a(qkA(j, True)); a(qkB(j))
        for j in range(2):
            rowmax(S[j], vT)
            setC(j, vT, vT+1)
            if j == 0:
                for i in range(16): a(f"v_add_f32 v{S[0]+i}, v{S[0]+i}, v{C[0]+i}")
    elif B2:
        a(qk2(0)); a(qkB(0))
    else:
        a(qkA(0, True)); a(qkB(0))
    a(f"s_mov_b32 s{sC}, 0")
    a(f"s_mov_b32 s{sSlotN}, {CHUNK}")
    a("s_waitcnt lgkmcnt(0)")
    if not M0: a("s_nop 9")
    if prof: a("s_memtime s[8:9]"); a("s_memrealtime s[10:11]")
    a(".p2align 6")
    a("L_loop:")
    UNR = opt.get("unr", 2)
    def shift(x, u):
        pre, off = x.rsplit("offset:", 1)
        return f"{pre}offset:{int(off) + (CHUNK if UNR == 2 and u & 1 else 0)}"
    for nn_ in range(16*UNR):
        u, n = divmod(nn_, 16)
        T, j = divmod(n, 2)
        us = u + (T+1)//8
        ins = {i: [] for i in range(17)}
        if B2:
            assert not M0
            PB = opt.get("pb", [1, 5, 8, 0, 4, 8, 13])
            if j == 0:
                ins[PB[0]].append(pv(n-1, 1)); ins[PB[1]].append(qkB(n+1))
                if n == 14: ins[PB[2]].append("s_waitcnt lgkmcnt(2)")
                ins[PB[2]].append(qk2(T+1))
                RP = opt.get("rp", [0, 0, 0, 12])
                assert max(RP[:2]) < PB[2]
                ins[RP[0]].append(shift(rdK1(T+1), us)); ins[RP[1]].append(shift(rdV(T+1,0), us))
                if T == 2: ins[RP[0]].append(shift(rdK2(4), u))
                if RP[3] < 16: ins[RP[3]].append("s_waitcnt lgkmcnt(0)")
            else:
                ins[PB[3]].append(pv(n-1, 0)); ins[PB[4]].append(qkB(n+1)); ins[PB[5]].append(pv(n-1, 1)); ins[PB[6]].append(pv(n, 0))
                if RP[3] >= 16:
                    assert RP[3]-16 < PB[4] and RP[3]-16 <= RP[2]
                    ins[RP[3]-16].append("s_waitcnt lgkmcnt(0)")
                ins[RP[2]].append(shift(rdV(T+1,1), us))
        else:
            POS = opt.get("pos", [0,4,8,12])
            ins[POS[0]].append(qkA(n+1, not M0))
            ins[POS[1]].append(qkB(n+1))
            ins[POS[2]].append(pv(n-1, 1))
            ins[POS[3]].append(pv(n, 0))
            if j == 0:
                ins[0] += [shift(rdK1(T+1), us), shift(rdV(T+1,0), us)]
                if (T+1) % 4 == 0: ins[0].append(shift(rdK2(T+1), us))
                ins[12].append("s_waitcnt lgkmcnt(0)")
            else:
                ins[0].append(shift(rdV(T+1,1), us))
        if n == 13:
            ins[12] += ["s_waitcnt lgkmcnt(0)"] + (["s_memrealtime s[98:99]"] if prof else []) + ["s_barrier"] + (["s_memrealtime s[100:101]"] if prof else [])
            if UNR == 1: ins[13] += [f"v_add_u32 v{vK}, s{sSlotN}, v{vK0}", f"v_add_u32 v{vV}, s{sSlotN}, v{vV0}"]
            if B2: ins[13].append(shift(rdK2(8), u+1))
        if n == opt.get("pln", 12) and opt.get("ne", 0): ins[6].append(f"buffer_load_dword v{vPv}, v{vPo}, s[{sWS}:{sWS+3}], 0 offen sc1")
        if n == 14 and UNR == 1:
            ins[8] += [f"s_xor_b32 s{sSlotN}, s{sSlotN}, {CHUNK}"]
        if n == 15:
            if prof: ins[4] += [f"s_add_u32 m0, s{sC}, {u}", f"v_writelane_b32 v{vPr}, s98, m0", f"v_writelane_b32 v{vPr+1}, s100, m0"]
            if u == UNR-1: ins[9] += [f"s_add_u32 s{sC}, s{sC}, {UNR}", f"s_cmp_lt_u32 s{sC}, 8"]
        for i in range(16):
            for x in ins[i]:
                if x: a(x)
            a(f"v_exp_f32 v{S[n%NB]+i}, v{S[n%NB]+i}")
    a("s_cbranch_scc1 L_loop")
    a(pv(15, 1))
    if prof:
        a("s_memtime s[12:13]"); a("s_memrealtime s[14:15]"); a("s_waitcnt lgkmcnt(0)")
        a("s_sub_u32 s12, s12, s8"); a("s_sub_u32 s14, s14, s10")
        a(f"v_writelane_b32 v{vPr}, s12, 8"); a(f"v_writelane_b32 v{vPr}, s14, 9")
    stamp("a")
    a("L_slow_ret:")
    RO = Regs(20)
    vSt = RO(); vRd = RO(3); vOut = RO(3); RO.p = 36
    OF = RO(80, 4); AC = RO(20, 4); NWB = 5
    WB = [RO(20, 4) for _ in range(NWB)]
    PK = 236; sOwn = sCh
    assert RO.p <= PK and WB[2]+20 <= S[3]+8 and Q2b[1]+2 <= OF; RO.hi = 249
    steps = []
    for p in (2, 3, 0, 1):
        steps += [("m", 2*p, 0), ("m", 2*p, 1), ("m", 2*p+1, 0), ("m", 2*p+1, 1), ("l", 2*p, 0)]
    def wrd(n):
        kind, sp, j = steps[n]; buf = WB[n % NWB]; r = []
        sub = 51200 if sp >= 4 else 0
        for t5 in range(5):
            for t in range(2):
                if kind == "m": r.append(f"ds_read_b64_tr_b16 {v(buf+4*t5+2*t,2)}, v{vWm} offset:{(80*sp+40*j+8*t)*160+8*t5-sub}")
                else: r.append(f"ds_read_b64_tr_b16 {v(buf+4*t5+2*t,2)}, v{vWl} offset:{80*(sp+t)*160+8*t5-sub}")
        return r
    def sload(sl, D=sWS):
        p, q = divmod(sl, 2)
        a(f"s_add_u32 s{sT3}, s{sGo}, {10240*sl}")
        for j in range(2):
            a(f"buffer_load_dwordx4 {v(OF+20*p+8*q+4*j,4)}, v{vDma}, s[{D}:{D+3}], s{sT3} offen offset:{1024*j} sc1")
        a(f"buffer_load_dwordx2 {v(OF+20*p+16+2*q,2)}, v{vO8}, s[{D}:{D+3}], s{sT3} offen offset:2048 sc1")
    def oload(p): sload(2*p); sload(2*p+1)
    def lines(fn):
        keep = a.lines; a.lines = []; fn(); got = a.lines; a.lines = keep; return got
    def weave(main, *sides):
        slots = [[] for _ in main]
        for sd in sides:
            for i, g_ in enumerate(sd): slots[i*len(main)//len(sd)] += g_
        for m_, sl in zip(main, slots):
            a(m_)
            for x in sl: a(x)
    a(f"s_lshl_b32 s{sGo}, s{sG}, 5"); a(f"s_add_u32 s{sGo}, s{sGo}, s{sW}"); a(f"s_mul_i32 s{sGo}, s{sGo}, 2560")
    a(f"s_add_u32 s{sGo}, s{sGo}, {WS_O}")
    a(f"s_mul_i32 s{sOwn}, s{sS}, 10240"); a(f"s_add_u32 s{sOwn}, s{sOwn}, s{sGo}")
    NE = opt.get("ne", 0)
    a("s_waitcnt vmcnt(0) lgkmcnt(0)")
    if NE:
        a(f"v_cmp_ne_u32 vcc, s{sTag}, v{vPv}")
        a(f"s_mov_b64 s[{sA}:{sA+1}], s[{sWS}:{sWS+1}]"); a(f"s_mov_b32 s{sA+3}, s{sWS+3}")
        a(f"s_and_b32 s{sT}, vcc_lo, {(1 << NE)-1}")
        a(f"s_cselect_b32 s{sA+2}, 0, s{sWS+2}")
    pload()
    stamp("a", True)
    eg = cap(lambda: [sload(i, sA) for i in range(NE)]) if NE else [[], []]
    WGE = opt.get("wge", 0)
    wg = [[x] for n in range(3) for x in wrd(n)] if WGE else [[]]*30
    def guard():
        for j in range(2):
            a(f"v_add_f32 v{vT+j}, |v{O[j]}|, |v{O[j]+12}|")
            for i in range(1, 12): a(f"v_add_f32 v{vT+j}, |v{O[j]+i}|, v{vT+j}")
    ne1 = (len(eg)+1)//2
    weave(lines(guard), eg[:ne1], wg[:12])
    a(f"v_add_f32 v{vT}, v{vT}, v{vT+1}")
    thr = 0x71800000 if not opt.get("forceslow") else 0
    a(f"v_min_f32 v{vT+1}, v{O[0]+12}, v{O[1]+12}")
    a(f"v_cmp_ngt_f32 vcc, {thr:#x}, v{vT}")
    a("s_cbranch_vccnz L_slow")
    a(f"v_cmp_ngt_f32 vcc, v{vT+1}, v{vLow}")
    a("s_cbranch_vccnz L_slow")
    a("L_guard_ok:")
    stamp("a", True)
    for j in range(2):
        a(f"v_rcp_f32 v{vT+j}, v{O[j]+12}")
    ASC = opt.get("asc", "")
    def norm(j):
        for i in range(12): a(f"v_mul_f32 v{O[j]+i}, v{O[j]+i}, v{vT+j}")
        for i in range(6): a(f"v_cvt_pk_bf16_f32 v{O[j]+i}, v{O[j]+2*i}, v{O[j]+2*i+1}")
        for i in range(4): a(f"v_min_u32 v{PK+4*j+i}, -2, v{O[j]+i}")
    for j in range(2):
        if j == 0: weave(lines(lambda: norm(0)), eg[ne1:], wg[12:21])
        else: weave(lines(lambda: norm(1)), wg[21:])
        a(f"buffer_store_dwordx4 {v(PK+4*j,4)}, v{vDma}, s[{sWS}:{sWS+3}], s{sOwn} offen offset:{1024*j} {ASC}")
    for i in range(2): a(f"v_permlane32_swap_b32 v{O[0]+4+i}, v{O[1]+4+i}")
    for i in range(2): a(f"v_min_u32 v{PK+8+i}, -2, v{O[0]+4+i}")
    a(f"buffer_store_dwordx2 {v(PK+8,2)}, v{vO8}, s[{sWS}:{sWS+3}], s{sOwn} offen offset:2048 {ASC}")
    def bstore():
        Lb = lab("bst")
        a(f"s_bitcmp1_b32 s{sSlotN}, 4"); a(f"s_cbranch_scc1 {Lb}")
        a(f"s_bitset1_b32 s{sSlotN}, 4")
        a(f"s_add_u32 s{sT3}, s{sOwn}, {0 if SAME else WS_OB}")
        for j in range(2): a(f"buffer_store_dwordx4 {v(PK+4*j,4)}, v{vDma}, s[{sWS}:{sWS+3}], s{sT3} offen offset:{1024*j} sc1")
        a(f"buffer_store_dwordx2 {v(PK+8,2)}, v{vO8}, s[{sWS}:{sWS+3}], s{sT3} offen offset:2048 sc1")
        a(f"{Lb}:")
    a(f"s_mov_b32 s{sSlotN}, 0")
    BE = opt.get("bearly", 1) and not SAME
    if BE: bstore()
    stamp("a", True)
    a(f"v_mov_b32 v{vCnt}, {L_C2}")
    def wpre():
        for n in range(3 if WGE else 0, 4):
            a("s_waitcnt lgkmcnt(4)")
            for x in wrd(n): a(x)
    if NE: wpre()
    stamp("a", True)
    a(f"s_waitcnt vmcnt({6 if BE else 3})")
    stamp("a")
    Lf = lab("fl"); Le = lab("el")
    OOL = opt.get("ool", 1); cold = []
    a(f"v_cmp_ne_u32 vcc, s{sTag}, v{vPv}")
    if OOL:
        a(f"s_cbranch_vccnz {Lf}c")
        cold += [f"{Lf}c:"] + lines(lambda: poll(vPv, vPo, "0", 1, sleep=opt.get("fsleep", 2))) + [f"s_branch {Lf}"]
    else:
        a(f"s_cbranch_vccz {Lf}")
        poll(vPv, vPo, "0", 1, sleep=opt.get("fsleep", 2))
    a(f"{Lf}:")
    if NE:
        a(f"s_cmp_lg_u32 s{sA+2}, 0"); a(f"s_cbranch_scc1 {Le}")
        for i in range(NE): sload(i)
        a("s_waitcnt vmcnt(0)")
        a(f"{Le}:")
    stamp("a")
    def ocheck(p):
        b = OF+20*p
        a(f"v_max3_u32 v{vT}, v{b}, v{b+1}, v{b+2}"); a(f"v_max3_u32 v{vT+1}, v{b+3}, v{b+4}, v{b+5}")
        for i in range(7): a(f"v_max3_u32 v{vT+(i&1)}, v{vT+(i&1)}, v{b+6+2*i}, v{b+7+2*i}")
        a(f"v_max_u32 v{vT}, v{vT}, v{vT+1}")
        a(f"v_cmp_eq_u32 vcc, -1, v{vT}")
    lg = cap(lambda: [sload(i) for i in range(NE, 8)])
    NL0 = opt.get("nl0", 3 if NE else 24)
    if NE:
        for g_ in lg[:NL0]:
            for x in g_: a(x)
    else:
        weave(lines(wpre), lg[:NL0])
        a(f"s_waitcnt vmcnt({NL0-6})")
    lg = lg[NL0:]
    def stage_addr():
        srd(a, sA, pOut, 2048*2560)
        a(f"s_mul_i32 s{sT}, s{sW}, 2816"); a(f"s_add_u32 s{sT}, s{sT}, {L_WO+51200}")
        a(f"v_and_b32 v{vT}, 15, v{vL}"); a(f"v_mul_u32_u24 v{vT}, 176, v{vT}")
        a(f"v_lshrrev_b32 v{vT+1}, 4, v{vL}"); a(f"v_mul_u32_u24 v{vT+1}, 40, v{vT+1}"); a(f"v_add3_u32 v{vSt}, v{vT}, v{vT+1}, s{sT}")
        for m in range(3):
            a(f"v_add_u32 v{vT}, {64*m}, v{vL}"); a(f"v_mul_u32_u24 v{vT+1}, 205, v{vT}"); a(f"v_lshrrev_b32 v{vT+1}, 11, v{vT+1}")
            a(f"v_add_u32 v{vT+2}, v{vT}, v{vT+1}"); a(f"v_lshl_add_u32 v{vRd+m}, v{vT+2}, 4, s{sT}")
            a(f"v_mul_u32_u24 v{vT+1}, 150, v{vT+1}"); a(f"v_add_lshl_u32 v{vOut+m}, v{vT}, v{vT+1}, 4")
    sa = lines(stage_addr)
    a(f"s_mov_b32 s{sC}, 0")
    for n in range(20):
        p, r_ = divmod(n, 5)
        if r_ == 0:
            Lr = lab("rnd"); Lg = lab("go")
            if OOL:
                if p == 0: ocheck(0); a(f"s_cbranch_vccnz {Lr}")
                elif p == 1:
                    a("s_waitcnt vmcnt(0)")
                    b = OF+20
                    for i in range(2): a(f"v_max3_u32 v{vT+i}, v{b+3*i}, v{b+3*i+1}, v{b+3*i+2}")
                    for i in range(27): a(f"v_max3_u32 v{vT+(i&1)}, v{vT+(i&1)}, v{b+6+2*i}, v{b+7+2*i}")
                    a(f"v_max_u32 v{vT}, v{vT}, v{vT+1}"); a(f"v_cmp_eq_u32 vcc, -1, v{vT}"); a(f"s_cbranch_vccnz {Lr}")
                    a(f"s_or_b32 s{sSlotN}, s{sSlotN}, 14")
                else: a(f"s_bitcmp1_b32 s{sSlotN}, {p}"); a(f"s_cbranch_scc0 {Lr}")
                keep_ = a.lines; a.lines = cold
            elif p:
                a(f"s_bitcmp1_b32 s{sSlotN}, {p}"); a(f"s_cbranch_scc1 {Lg}")
            LZ = -1 if OOL else opt.get("lazy", 0)
            if 0 < p <= LZ:
                a(f"s_bitcmp1_b32 s{sSlotN}, 5"); a(f"s_cbranch_scc1 {Lr}")
                a(f"s_waitcnt vmcnt({6*(3-p)})")
            if p <= LZ:
                ocheck(p); a(f"s_cbranch_vccz {Lg}")
                if p: a(f"s_bitset1_b32 s{sSlotN}, 5")
            a(f"{Lr}:")
            La = lab("ab")
            a(f"s_add_u32 s{sC}, s{sC}, 1"); a(f"s_cmp_lt_u32 s{sC}, {opt.get('arounds', 12)}"); a(f"s_cbranch_scc1 {La}")
            bstore()
            if not SAME: a(f"s_xor_b32 s{sGo}, s{sGo}, {WS_O ^ (WS_O+WS_OB):#x}")
            a(f"{La}:")
            if opt.get("rsleep", 0): a(f"s_sleep {opt['rsleep']}")
            a("s_waitcnt vmcnt(0)")
            for q in range(p, 4 if p else 1):
                Lo = lab("ok"); Ln = lab("nx")
                if q > p:
                    a(f"s_bitcmp1_b32 s{sSlotN}, {q}"); a(f"s_cbranch_scc1 {Ln}")
                ocheck(q); a(f"s_cbranch_vccz {Lo}")
                oload(q); a(f"s_branch {Ln}")
                a(f"{Lo}:"); a(f"s_bitset1_b32 s{sSlotN}, {q}")
                a(f"{Ln}:")
            a(f"s_bitcmp1_b32 s{sSlotN}, {p}"); a(f"s_cbranch_scc1 {Lg}")
            a(f"s_cmp_lt_u32 s{sC}, {SPIN//4}"); a(f"s_cbranch_scc1 {Lr}")
            a("s_waitcnt vmcnt(0)")
            if OOL: a(f"s_branch {Lg}"); a.lines = keep_
            a(f"{Lg}:")
            if p == (SAME or opt.get("bp", 3)) and not BE: bstore()
            if p in (0, 1, 3): stamp("a", True)
        if n == opt.get("odrop", 5): a("s_setprio 0")
        if n == opt.get("oup", 99): a("s_setprio 2")
        nn = n + NWB - 1
        nx = []
        if nn < 20:
            if nn == 10:
                lwait(0)
                a(f"v_subrev_u32 v{vWm}, 51200, v{vWm}"); a(f"v_subrev_u32 v{vWl}, 51200, v{vWl}")
            nx = wrd(nn)
        out_allowed = min(10, 10*(min(19, nn-1) - n))
        a(f"s_waitcnt lgkmcnt({out_allowed})")
        if n == 10: lsig((L_C2-L_CNT)//4 + 3)
        for t5 in range(5):
            a(f"v_mfma_f32_16x16x32_bf16 {v(AC+4*t5,4)}, {v(WB[n%NWB]+4*t5,4)}, {v(OF+4*n,4)}, {'0' if n==0 else v(AC+4*t5,4)}")
            for x in nx[2*t5:2*t5+2]: a(x)
            sl = 5*n+t5
            if sl < 25:
                LD = opt.get("ld", 2)
                if sl % LD == 0 and lg:
                    for x in lg.pop(0): a(x)
            if n >= 16:
                for x in sa[2*(sl-80):2*(sl-80)+2]: a(x)
        assert n < 4 or not lg
    assert len(sa) <= 40
    a(f"s_lshl_b32 s{sT}, s{sG}, 2"); a(f"s_add_u32 s{sT}, s{sT}, s{sW}"); a(f"s_mul_i32 s{sT}, s{sT}, {16*2560}")
    a(f"s_add_u32 s{sT}, s{sT}, s{sT4}")
    lwait(3)
    for i in range(10): a(f"v_cvt_pk_bf16_f32 v{OF+i}, v{AC+2*i}, v{AC+2*i+1}")
    for i in range(5): a(f"ds_write_b64 v{vSt}, {v(OF+2*i,2)} offset:{8*i}")
    for m in range(3): a(f"ds_read_b128 {v(OF+12+4*m,4)}, v{vRd+m}")
    for m in range(3):
        a(f"s_waitcnt lgkmcnt({2-m})")
        if m == 2: a("s_mov_b32 exec_hi, 0")
        if opt.get("osn"):
            Lc = lab("oc"); Ld = lab("od")
            a(f"s_cmp_ge_u32 s{sS}, 3"); a(f"s_cbranch_scc1 {Lc}")
            a(f"buffer_store_dwordx4 {v(OF+12+4*m,4)}, v{vOut+m}, s[{sA}:{sA+3}], s{sT} offen sc1")
            a(f"s_branch {Ld}"); a(f"{Lc}:")
        a(f"buffer_store_dwordx4 {v(OF+12+4*m,4)}, v{vOut+m}, s[{sA}:{sA+3}], s{sT} offen {opt.get('osc','')}")
        if opt.get("osn"): a(f"{Ld}:")
    if prof:
        stamp("a"); a("s_waitcnt vmcnt(0)"); stamp("a")
        prof_store("a", vT)
        a("s_mov_b64 exec, -1")
        a(f"v_lshlrev_b32 v{vT}, 2, v{vL}")
        a("s_mov_b64 exec, 0xff")
        a(f"s_add_u32 s{sT}, s{sT}, {0x40000}")
        a(f"buffer_store_dword v{vPr}, v{vT}, s[{sWS}:{sWS+3}], s{sT} offen")
        a(f"buffer_store_dword v{vPr+1}, v{vT}, s[{sWS}:{sWS+3}], s{sT} offen offset:32")
        a("s_mov_b64 exec, 0x300")
        a(f"s_add_u32 s{sT}, s{sT}, {0x40000}")
        a(f"buffer_store_dword v{vPr}, v{vT}, s[{sWS}:{sWS+3}], s{sT} offen")
    if probe:
        if probe[0] == 99: a("s_waitcnt vmcnt(0)"); a("s_memrealtime s[72:73]")
        if probe[0] == 0: a("s_mov_b32 s72, s70")
        a(f"s_cmp_lt_u32 s2, {probe[2]}"); a("s_cbranch_scc1 L_pe"); a(f"s_cmp_gt_u32 s2, {probe[3]}"); a("s_cbranch_scc1 L_pe")
        a("s_waitcnt lgkmcnt(0)")
        a("s_sub_u32 s72, s72, s70"); a(f"s_mul_i32 s72, s72, {probe[1]}"); a("s_add_u32 s72, s72, 4000"); a("s_min_u32 s72, s72, 30000")
        a("L_pl:"); a("s_memrealtime s[74:75]"); a("s_waitcnt lgkmcnt(0)"); a("s_sub_u32 s74, s74, s70"); a("s_cmp_lt_u32 s74, s72"); a("s_cbranch_scc1 L_pl")
        a("L_pe:")
    a("s_endpgm")
    for x in cold: a(x)
    for Ls, Lb, k in spins:
        a(f"{Ls}:"); lwait(k); a(f"s_branch {Lb}")
    a("L_slow:")
    a(f"s_cmp_lg_u32 s{sC}, 8"); a("s_cbranch_scc1 L_guard_ok")
    a("s_waitcnt vmcnt(0) lgkmcnt(0)")
    M = [vK, vV]
    for j in range(2):
        a(f"v_mov_b32 v{M[j]}, 0xff800000")
        for i in range(16): a(f"v_mov_b32 v{C[j]+i}, 0"); a(f"v_mov_b32 v{O[j]+i}, 0")
    a(f"s_mov_b32 s{sSlotN}, 0")
    a("L_slow_pass:")
    a(f"s_mov_b32 s{sC}, 0")
    a("L_slow_it:")
    a(f"s_lshr_b32 s{sT}, s{sC}, 2"); a(f"s_mul_i32 s{sT}, s{sT}, {CHUNK}")
    a(f"s_bfe_u32 s{sT2}, s{sC}, 0x10001"); a(f"s_mul_i32 s{sT2}, s{sT2}, {GRP}")
    a(f"s_add_u32 s{sT}, s{sT}, s{sT2}"); a(f"s_add_u32 s{sT}, s{sT}, {WS_KV}")
    a(f"s_and_b32 s{sT2}, s{sC}, 1")
    a(f"s_lshl_b32 s{sT3}, s{sT2}, 10"); a(f"s_add_u32 s{sT3}, s{sT3}, s{sT}")
    for q in range(2): a(f"buffer_load_dwordx4 {v(K1[q],4)}, v{vK0}, s[{sWS}:{sWS+3}], s{sT3} offen offset:{2048*q} sc1")
    a(f"s_lshl_b32 s{sT3}, s{sT2}, 3"); a(f"s_add_u32 s{sT3}, s{sT3}, s{sT}"); a(f"s_add_u32 s{sT3}, s{sT3}, 4096")
    a(f"buffer_load_dwordx2 {v(K2[0],2)}, v{vK0}, s[{sWS}:{sWS+3}], s{sT3} offen sc1")
    a(f"s_mul_i32 s{sT3}, s{sT2}, 1344"); a(f"s_add_u32 s{sT3}, s{sT3}, s{sT}")
    for q in range(2):
        a(f"buffer_load_dwordx4 {v(V0[q],4)}, v{vV0}, s[{sWS}:{sWS+3}], s{sT3} offen offset:{2688*q} sc1")
        a(f"buffer_load_dwordx4 {v(V1[q],4)}, v{vV0}, s[{sWS}:{sWS+3}], s{sT3} offen offset:{2688*q+672} sc1")
    a("s_waitcnt vmcnt(0)")
    assert C[1] == C[0]+16
    for q in range(2 if B2 else 0):
        a(f"v_mfma_f32_32x32x4_2b_bf16 {v(S[2*q],32)}, {v(K2[0],2)}, {v(Q2a[0],2)}, {v(C[0],32)} cbsz:1 abid:{q}")
    for q in range(2):
        for j in range(2):
            Sx = S[2*q+j]
            if not B2: a(f"v_mfma_f32_32x32x8_bf16 {v(Sx,16)}, {v(K2[0],2)}, {v((Q2a if q==0 else Q2b)[j],2)}, {v(C[j],16)}")
            a(f"v_mfma_f32_32x32x16_bf16 {v(Sx,16)}, {v(K1[q],4)}, {v(Q1[j],4)}, {v(Sx,16)}")
    a("s_nop 15")
    a(f"s_cmp_eq_u32 s{sSlotN}, 1"); a("s_cbranch_scc1 L_slow_p2")
    for q in range(2):
        for j in range(2): rowmax(S[2*q+j], M[j], True)
    a("s_branch L_slow_nx")
    a("L_slow_p2:")
    for i in range(64): a(f"v_exp_f32 v{S[0]+i}, v{S[0]+i}")
    a("s_nop 1")
    for q in range(2):
        for j in range(2):
            for sidx in range(2):
                a(f"v_smfmac_f32_32x32x32_bf16 {v(O[j],16)}, {v((V0 if sidx==0 else V1)[q],4)}, {v(S[2*q+j]+8*sidx,8)}, v{vIdx}")
    a("s_nop 15")
    a("L_slow_nx:")
    a(f"s_add_u32 s{sC}, s{sC}, 1"); a(f"s_cmp_lt_u32 s{sC}, 32"); a("s_cbranch_scc1 L_slow_it")
    a(f"s_cmp_eq_u32 s{sSlotN}, 1"); a("s_cbranch_scc1 L_slow_ret")
    for j in range(2): setC(j, M[j], vT)
    a(f"s_mov_b32 s{sSlotN}, 1")
    a("s_branch L_slow_pass")
    assert S[1] == S[0]+16 and S[3] == S[0]+48
    hi_a = max(R.hi, RA.hi, RO.hi, KW+8*NKW)

    if FAST & 1: hpre0 = len(a.lines)
    else: a("L_helper:")
    H = Regs(5)
    hT = H(8, 4); hDma = H(); hP = H(5); PR = H(8, 2)
    sCg = sU0
    a(f"s_sub_u32 s{sH}, s{sW}, 4")
    if opt.get("al", 1):
        a(f"s_and_b32 s{sCh}, s2, 7"); a(f"s_lshl_b32 s{sT}, s{sCh}, 3")
        a(f"s_mov_b32 s{sT2}, 0x40301800"); a(f"s_mov_b32 s{sT3}, 0x90806850")
        a(f"s_lshr_b64 s[{sT2}:{sT3}], s[{sT2}:{sT3}], s{sT}"); a(f"s_and_b32 s{sCg}, s{sT2}, 0xff")
        a(f"s_lshr_b32 s{sT3}, s2, 3"); a(f"s_add_u32 s{sCg}, s{sCg}, s{sT3}"); a(f"s_sub_u32 s{sCg}, s{sCg}, 16")
        a(f"s_bitcmp1_b32 0x66, s{sCh}"); a(f"s_cselect_b32 s{sT}, 8, 16")
    else:
        a(f"s_and_b32 s{sT}, s2, 7"); a(f"s_mul_i32 s{sT}, s{sT}, 20"); a(f"s_lshr_b32 s{sT3}, s2, 3")
        a(f"s_add_u32 s{sCg}, s{sT}, s{sT3}"); a(f"s_sub_u32 s{sCg}, s{sCg}, 12"); a(f"s_mov_b32 s{sT}, 12")
    a(f"s_cmp_lt_u32 s{sT3}, s{sT}"); a(f"s_cselect_b32 s{sCg}, -1, s{sCg}")
    a(f"s_lshl_b32 s{sCh}, s{sCg}, 2"); a(f"s_add_u32 s{sCh}, s{sCh}, s{sH}")
    a(f"s_lshl_b32 s{sT}, s{sCh}, 8")
    a(f"v_lshlrev_b32 v{hT+2}, 2, v{vL}"); a(f"v_add_u32 v{hT}, s{sT}, v{hT+2}")
    a(f"s_lshl_b32 s{sT}, s{sCh}, 1"); a(f"v_mov_b32 v{hT+1}, s{sT}")
    a(f"s_mul_i32 s{sT}, s{sT3}, 200"); a(f"s_mul_i32 s{sT2}, s{sH}, 50"); a(f"s_add_u32 s{sT}, s{sT}, s{sT2}")
    a(f"v_add_u32 v2, s{sT}, v{vL}"); a(f"v_lshlrev_b32 v2, 7, v2")
    a(f"v_lshlrev_b32 v{hDma}, 4, v{vL}")
    a(f"s_cmp_lt_i32 s{sCg}, 0")
    a("s_waitcnt lgkmcnt(0)")
    stamp("h")
    a("s_cbranch_scc1 L_h_pre_tr")
    a(f"global_load_ushort v{PR+6}, v{hT+1}, s[{pLdt}:{pLdt+1}]")
    for i, p in enumerate((pAre, pAim, pBre, pBim, pCre, pCim)):
        a(f"global_load_dword v{PR+i}, v{hT}, s[{p}:{p+1}]")
    a(f"global_load_ushort v{PR+7}, v{hT+1}, s[{pDs}:{pDs+1}]")
    a("s_branch L_h_go")
    a("L_h_pre_tr:")
    a(f"s_cmp_ge_u32 s{sS}, 2"); a("s_cbranch_scc1 L_h_go")
    a(f"s_mul_i32 s{sT}, s{sH}, 7168")
    a(f"s_add_u32 m0, s{sT}, {L_WK}")
    a(f"s_cmp_eq_u32 s{sS}, 0")
    a(f"s_cselect_b32 s{sA}, s{pWK}, s{pWV}")
    a(f"s_cselect_b32 s{sA+1}, s{pWK+1}, s{pWV+1}")
    a(f"s_and_b32 s{sA+1}, s{sA+1}, 0xffff"); a(f"s_mov_b32 s{sA+2}, 25600"); a(f"s_mov_b32 s{sA+3}, 0x20000")
    for i in range(4): a(f"buffer_load_dwordx4 v{hDma}, s[{sA}:{sA+3}], s{sT} offen offset:{1024*i} lds")
    a("s_add_u32 m0, m0, 4096"); a(f"s_add_u32 s{sT}, s{sT}, 4096")
    for i in range(3): a(f"buffer_load_dwordx4 v{hDma}, s[{sA}:{sA+3}], s{sT} offen offset:{1024*i} lds")
    if FAST & 1:
        if FAST & 4:
            a.lines[hpre0:] = [x.replace("L_h_go", "L_h_bar") for x in a.lines[hpre0:]]
            a("L_h_bar:"); a("s_barrier")
        a("s_branch L_h_go")
        pre = a.lines[hpre0:]; del a.lines[hpre0:]
        i_ = a.lines.index("@@HPRE"); a.lines[i_:i_+1] = pre
    a("L_h_go:")
    HP = opt.get("hp", 31)
    if HP: a("s_setprio 3")
    WQPF = opt.get("wqpf", -1)
    def wq_pf():
        a("s_mov_b32 exec_hi, 0x3ffff")
        a(f"global_load_dword v3, v2, s[{pWQ}:{pWQ+1}]")
        a("s_mov_b32 exec_hi, -1")
    if WQPF == 0: wq_pf()
    if not FAST & 4: a("s_barrier")
    a(f"s_load_dword s{sTag}, s[{pWS}:{pWS+1}], {WS_TAG}")
    srd(a, sWS, pWS, WS_SIZE)
    srd(a, sWQ, pWO, 640*1280)
    wpattern(hP, vL, hT, False)
    a(f"s_lshr_b32 s{sGo}, s{sG}, 2"); a(f"s_add_u32 s{sGo}, s{sGo}, 1"); a(f"s_and_b32 s{sGo}, s{sGo}, 7")
    a(f"s_mul_i32 s{sGo}, s{sGo}, {CHUNK}"); a(f"s_add_u32 s{sGo}, s{sGo}, {WS_KV}")
    a(f"s_mov_b32 s{sSlotD}, {CHUNK}")
    sWoL = sSlotN; sWoG = sT4
    def wo_set(mul, add):
        a(f"s_mul_i32 s{sT}, s{sH}, {mul}")
        if add: a(f"s_add_u32 s{sT}, s{sT}, {add}")
        a(f"s_mul_i32 s{sWoL}, s{sT}, 5120"); a(f"s_add_u32 s{sWoL}, s{sWoL}, {L_WO}")
        a(f"s_mul_i32 s{sWoG}, s{sT}, 40960"); a(f"s_mul_i32 s{sT}, s{sS}, 160"); a(f"s_add_u32 s{sWoG}, s{sWoG}, s{sT}")
        a(f"s_add_u32 s{sWoG}, s{sWoG}, {10*40960}")
    wo_set(3, 8)
    def wo_step():
        a(f"s_mov_b32 m0, s{sWoL}")
        a(f"s_add_u32 s{sWoL}, s{sWoL}, 5120")
        a(f"s_sub_u32 s{sT}, s{sWoG}, {20*40960}"); a(f"s_cselect_b32 s{sWoG}, s{sWoG}, s{sT}")
        wkstep_dma(hP, sWQ, sWoG)
        a(f"s_add_u32 s{sWoG}, s{sWoG}, 40960")
    def h_sig(k, base=L_C2):
        a(f"v_mov_b32 v{hT+4}, {base}"); a(f"v_mov_b32 v{hT+5}, 1")
        a("s_mov_b64 exec, 1"); a(f"ds_add_u32 v{hT+4}, v{hT+5} offset:{4*k}"); a("s_mov_b64 exec, -1")
    def hl_wait(k, sleep=2, base=L_CNT, n=4):
        L = lab("tw"); D = lab("twd")
        a(f"v_mov_b32 v{hT+4}, {base}")
        a(f"s_mov_b32 s{sBound}, {SPIN*4}")
        a(f"{L}:")
        if sleep: a(f"s_sleep {sleep}")
        a(f"ds_read_b32 v{hT+5}, v{hT+4} offset:{4*k}")
        a(f"s_sub_u32 s{sBound}, s{sBound}, 1"); a(f"s_cbranch_scc1 {D}")
        a("s_waitcnt lgkmcnt(0)")
        a(f"v_cmp_gt_u32 vcc, {n}, v{hT+5}")
        a(f"s_cbranch_vccnz {L}")
        a(f"{D}:")
    def kv_flags(late):
        Lnp = lab("nopoll")
        a(f"s_cmp_lg_u32 s{sH}, 3"); a(f"s_cbranch_scc1 {Lnp}")
        if late: hl_wait(4, 8, L_CNT, 8)
        a(f"v_lshlrev_b32 v{hT+4}, 7, v{vL}")
        a(f"s_mov_b32 s{sT5}, {WS_FKV}")
        poll(hT, hT+4, f"s{sT5}", 4, sleep=opt.get("psleep", 8))
        if FE != 3: h_sig(3, L_CNT)
        a(f"{Lnp}:")
    def pre_b1(flags=True):
        if FE == 3:
            hl_wait(4, 2, L_CNT, 8)
            ring_dma(sH, hDma)
            kv_flags(False)
            return
        if flags: kv_flags(True)
        hl_wait(4, 4 if flags else 2, L_CNT, 8)
        hl_wait(3, 2, L_CNT, 1)
        ring_dma(sH, hDma)
    def tag_advance():
        Lnt = lab("notag")
        a(f"s_add_u32 s{sT}, s2, s{sH}"); a(f"s_cmp_lg_u32 s{sT}, 0"); a(f"s_cbranch_scc1 {Lnt}")
        a(f"v_lshlrev_b32 v{hT+4}, 7, v{vL}")
        for i in range(4):
            a(f"s_mov_b32 s{sT5}, {WS_FO+8192*i}")
            poll(hT, hT+4, f"s{sT5}", 1, sleep=4)
        a(f"v_mov_b32 v{hT}, s{sTag}")
        a("s_mov_b64 exec, 1")
        a(f"buffer_store_dword v{hT}, off, s[{sWS}:{sWS+3}], 0 offset:{WS_TAG} sc1")
        a("s_mov_b64 exec, -1")
        a(f"{Lnt}:")
    a(f"s_cmp_lt_i32 s{sCg}, 0"); a("s_cbranch_scc1 L_h_tr")
    vSw = H(4); vSr = H(); vKb = H(); vKc = H(); vKf = H(); vU = H(4); vY = H(2)
    G3 = opt.get("g3", 0); YS = 1152 if G3 else 0
    SEL = H(6)
    a(f"s_mul_i32 s{sT}, s{sH}, {SCP}"); a(f"s_add_u32 s{sT}, s{sT}, {L_SC}")
    a(f"v_lshlrev_b32 v{vSw}, 3, v{vL}"); a(f"v_add_u32 v{vSw}, s{sT}, v{vSw}")
    for i in range(1, 4): a(f"v_add_u32 v{vSw+i}, {2112*i}, v{vSw}")
    a(f"v_and_b32 v{hT+4}, 15, v{vL}")
    a(f"v_lshrrev_b32 v{hT+5}, 4, v{vL}")
    a(f"v_mul_u32_u24 v{hT+6}, 528, v{hT+4}"); a(f"v_lshl_add_u32 v{hT+6}, v{hT+5}, 4, v{hT+6}"); a(f"v_add_u32 v{vSr}, s{sT}, v{hT+6}")
    a(f"s_mul_i32 s{sT2}, s{sH}, {KRP}"); a(f"s_add_u32 s{sT2}, s{sT2}, {L_KR}")
    a(f"v_lshlrev_b32 v{hT+6}, 4, v{hT+4}")
    a(f"v_and_b32 v{hT+7}, 1, v{hT+5}"); a(f"v_lshl_add_u32 v{hT+7}, v{hT+7}, 3, v{hT+6}")
    a(f"v_and_b32 v{vKb}, 32, v{vL}"); a(f"v_lshl_add_u32 v{hT+7}, v{vKb}, 4, v{hT+7}")
    a(f"s_add_u32 s{sT3}, s{sT2}, {4088-256}")
    a(f"v_sub_u32 v{vKb}, s{sT3}, v{hT+7}")
    a(f"v_lshlrev_b32 v{hT+7}, 9, v{hT+5}")
    a(f"v_add_u32 v{hT+7}, v{hT+7}, v{hT+6}")
    a("s_mov_b32 exec_lo, 0"); a("s_mov_b32 exec_hi, 0xffff0000")
    a(f"v_add_u32 v{hT+7}, 512, v{hT+7}")
    a("s_mov_b64 exec, -1")
    a(f"s_add_u32 s{sT3}, s{sT2}, {4080-1024-256-512}")
    a(f"v_sub_u32 v{vKc}, s{sT3}, v{hT+7}")
    a(f"v_and_b32 v{hT}, 7, v{vL}"); a(f"v_bfe_u32 v{hT+1}, v{vL}, 4, 1"); a(f"v_lshl_add_u32 v{hT}, v{hT+1}, 3, v{hT}")
    a(f"v_bfe_u32 v{hT+2}, v{vL}, 3, 1")
    a(f"v_lshrrev_b32 v{hT+3}, 5, v{vL}")
    a(f"v_lshlrev_b32 v{hT+7}, 5, v{hT}"); a(f"v_lshl_add_u32 v{hT+7}, v{hT+2}, 9, v{hT+7}")
    a(f"s_add_u32 s{sT3}, s{sT2}, {4064-3072}")
    a(f"v_sub_u32 v{vKf}, s{sT3}, v{hT+7}"); a(f"v_lshl_add_u32 v{vKf}, v{hT+3}, 4, v{vKf}")
    a(f"v_lshl_add_u32 v{hT+7}, v{hT+3}, 4, v{hT+7}")
    a(f"v_add_u32 v{vY+1}, s{sT2}, v{hT+7}")
    a(f"s_mul_i32 s{sT3}, s{sH}, {UP}"); a(f"s_add_u32 s{sT3}, s{sT3}, {L_U+2368+YS}"); a(f"v_add_u32 v{vY}, s{sT3}, v{hT+7}")
    a(f"v_and_b32 v{hT+7}, 2, v{vL}"); a(f"v_lshl_add_u32 v{hT+7}, v{hT+2}, 2, v{hT+7}")
    a(f"v_bfe_u32 v{hT}, v{vL}, 2, 1"); a(f"v_add_u32 v{hT}, v{hT}, v{hT+3}"); a(f"v_lshl_add_u32 v{hT+7}, v{hT}, 3, v{hT+7}")
    a(f"v_mul_u32_u24 v{hT+1}, 576, v{hT+1}"); a(f"v_lshl_add_u32 v{hT+7}, v{hT+7}, 1, v{hT+1}")
    a(f"v_and_b32 v{hT+6}, 1, v{vL}"); a(f"v_mul_u32_u24 v{vU}, 4576, v{hT+6}")
    a(f"s_mul_i32 s{sT3}, s{sH}, {UP}"); a(f"s_add_u32 s{sT3}, s{sT3}, {L_U+4640-28}")
    a(f"v_sub_u32 v{vU}, s{sT3}, v{vU}"); a(f"v_add_u32 v{vU}, v{vU}, v{hT+7}")
    for i in range(1, 4): a(f"v_add_u32 v{vU+i}, {1152*i}, v{vU}")
    def sel(lo, hi): return (2*lo) | (2*lo+1) << 8 | (2*hi) << 16 | (2*hi+1) << 24
    a(f"v_mov_b32 v{SEL}, {sel(3,2):#x}"); a(f"v_mov_b32 v{SEL+1}, {sel(1,0):#x}")
    a(f"v_mov_b32 v{SEL+2}, {sel(2,2):#x}"); a(f"v_mov_b32 v{SEL+3}, {sel(1,1):#x}"); a(f"v_mov_b32 v{SEL+4}, {sel(1,0):#x}")
    a("s_mov_b32 exec_lo, 0")
    a(f"v_mov_b32 v{SEL}, {sel(2,1):#x}"); a(f"v_mov_b32 v{SEL+1}, {sel(0,0):#x}")
    a(f"v_mov_b32 v{SEL+2}, {sel(1,1):#x}"); a(f"v_mov_b32 v{SEL+4}, {sel(0,0):#x}")
    a(f"v_mul_u32_u24 v{SEL+3}, 0x101, v{hT+6}"); a(f"v_lshlrev_b32 v{SEL+3}, 17, v{SEL+3}"); a(f"v_add_u32 v{SEL+3}, {sel(1,0):#x}, v{SEL+3}")
    a(f"v_add_u32 v{SEL+5}, 0x04040404, v{SEL+3}")
    a("s_mov_b32 exec_lo, -1")
    for i in range(4): a(f"v_mov_b32 v{hT+i}, 0")
    vKz = H()
    a(f"v_lshlrev_b32 v{vKz}, 3, v{vL}"); a(f"v_add_u32 v{vKz}, s{sT2}, v{vKz}")
    for r_ in (vKb, vKc, vKf, vKz):
        a(f"v_subrev_u32 v{r_}, s{sT2}, v{r_}")
        a(f"v_bfe_u32 v{hT+4}, v{r_}, 4, 1"); a(f"v_mul_u32_u24 v{hT+4}, 2304, v{hT+4}")
        a(f"v_lshrrev_b32 v{hT+5}, 5, v{r_}"); a(f"v_lshl_add_u32 v{hT+4}, v{hT+5}, 4, v{hT+4}")
        a(f"v_and_b32 v{r_}, 15, v{r_}"); a(f"v_add3_u32 v{r_}, v{r_}, v{hT+4}, s{sT2}")
    HK = Regs(H.p)
    Z1 = [HK(2) for _ in range(2)]; Z8 = [HK(2) for _ in range(2)]
    ZB = [HK(2) for _ in range(2)]; Wc = [[HK(2) for _ in range(2)] for _ in range(2)]; Cu = [[HK(2) for _ in range(2)] for _ in range(2)]
    E = [HK(2) for _ in range(2)]; AR = [HK(2) for _ in range(2)]; TB = [HK(2) for _ in range(2)]; TC = [HK(2) for _ in range(2)]
    Z2 = TC; Z4 = TB
    LF = [HK(32, 4) for _ in range(2)]; HF = [HK(32, 4) for _ in range(2)]; DK = [HK(4, 4) for _ in range(4)]; EX = HK(8, 4)
    L2E = 1.4426950408889634
    f2 = lambda x: struct.unpack("<I", struct.pack("<f", x))[0]
    hi_ = struct.unpack("<f", struct.pack("<f", L2E))[0]; lo_ = L2E - hi_
    a(f"v_mov_b32 v{EX}, 0x3f80"); a(f"v_mov_b32 v{EX+1}, 0x3f80")
    a(f"s_mov_b32 s{sT}, {f2(hi_):#x}")
    if opt.get("kprio", 0): a(f"s_setprio {opt['kprio']}")
    if HP == 1: a("s_setprio 0")
    if WQPF == 1:
        a("s_waitcnt lgkmcnt(0)"); wq_pf()
    if WQPF == 3: wq_pf()
    a(f"s_waitcnt vmcnt({6 if WQPF in (0, 1, 3) else 5})")
    if WQPF == 2: wq_pf()
    stamp("h")
    if opt.get("k2"):
        a(f"s_mov_b32 s{sC}, 0"); a("L_k2:")
        a(f"v_mov_b32 v{EX}, 0x3f80"); a(f"v_mov_b32 v{EX+1}, 0x3f80")
    dt = hT+4
    a(f"v_lshlrev_b32 v{hT+5}, 16, v{PR+6}")
    a(f"v_mul_f32 v{hT+6}, {f2(hi_):#x}, v{hT+5}")
    a(f"v_fma_f32 v{hT+7}, v{hT+5}, s{sT}, -v{hT+6}")
    a(f"v_fmac_f32 v{hT+7}, {f2(lo_):#x}, v{hT+5}")
    a(f"v_exp_f32 v{hT+6}, v{hT+6}")
    a(f"v_mul_f32 v{hT+7}, {f2(0.6931471805599453):#x}, v{hT+7}")
    a(f"v_fmac_f32 v{hT+6}, v{hT+6}, v{hT+7}")
    a(f"v_cvt_pk_bf16_f32 v{dt}, v{hT+6}, v{hT+6}")
    a(f"v_lshlrev_b32 v{dt}, 16, v{dt}")
    def unpack(dst, src, m):
        if m == 0: a(f"v_lshlrev_b32 v{dst}, 16, v{src}")
        else: a(f"v_and_b32 v{dst}, 0xffff0000, v{src}")
    fill = []
    def cmul(d, x, y):
        if opt.get("nopk", 0):
            for m in range(2):
                a(f"v_mul_f32 v{d[m]}, v{x[m]}, v{y[m]}"); a(f"v_mul_f32 v{d[m]+1}, v{x[m]}, v{y[m]+1}")
            for m in range(2):
                a(f"v_fma_f32 v{d[m]}, -v{x[m]+1}, v{y[m]+1}, v{d[m]}"); a(f"v_fmac_f32 v{d[m]+1}, v{x[m]+1}, v{y[m]}")
            return
        for m in range(2): a(f"v_pk_mul_f32 {v(d[m],2)}, {v(x[m],2)}, {v(y[m],2)} op_sel:[0,0] op_sel_hi:[0,1]")
        for m in range(2): a(f"v_pk_fma_f32 {v(d[m],2)}, {v(x[m],2)}, {v(y[m],2)}, {v(d[m],2)} op_sel:[1,1,0] op_sel_hi:[1,0,1] neg_lo:[0,1,0]")
    for m in range(2):
        for i in range(2): unpack(AR[m]+i, PR+i, m)
    for m in range(2):
        for i in range(2): a(f"v_mul_f32 v{AR[m]+i}, v{dt}, v{AR[m]+i}")
        a(f"v_mul_f32 v{AR[m]}, {f2(L2E):#x}, v{AR[m]}")
        a(f"v_mul_f32 v{AR[m]+1}, {f2(0.15915494309189535):#x}, v{AR[m]+1}")
    def cpow(d, p):
        for m in range(2):
            if p != 1:
                a(f"v_mul_f32 v{E[m]}, {f2(float(p)):#x}, v{AR[m]}"); a(f"v_mul_f32 v{E[m]+1}, {f2(float(p)):#x}, v{AR[m]+1}")
                a(f"v_exp_f32 v{E[m]}, v{E[m]}"); a(f"v_fract_f32 v{E[m]+1}, v{E[m]+1}")
            else:
                a(f"v_exp_f32 v{E[m]}, v{AR[m]}"); a(f"v_fract_f32 v{E[m]+1}, v{AR[m]+1}")
        for m in range(2):
            a(f"v_cos_f32 v{d[m]}, v{E[m]+1}"); a(f"v_sin_f32 v{d[m]+1}, v{E[m]+1}")
        for m in range(2):
            a(f"v_pk_mul_f32 {v(d[m],2)}, {v(d[m],2)}, {v(E[m],2)} op_sel_hi:[1,0]")
    er = [1]; pend = [(EX, 0)]
    def flush():
        if len(pend) == 1:
            e, r_ = pend[0]; a(f"ds_write_b64 v{vSw}, {v(e,2)} offset:{528*r_}")
        elif len(pend) == 2:
            (e0, r0), (e1, r1) = pend
            b = min(r0, r1)//4
            if max(r0, r1) - 4*b > 3:
                a(f"ds_write_b64 v{vSw}, {v(e0,2)} offset:{528*r0}"); a(f"ds_write_b64 v{vSw}, {v(e1,2)} offset:{528*r1}")
            else:
                a(f"ds_write2_b64 v{vSw+b}, {v(e0,2)}, {v(e1,2)} offset0:{66*(r0-4*b)} offset1:{66*(r1-4*b)}")
        pend.clear()
    def row(x, rows, neg):
        e = EX + 2*(er[0] % 4); er[0] += 1
        for m in range(2): a(f"v_cvt_pk_bf16_f32 v{e+m}, v{x[m]}, {'-' if neg else ''}v{x[m]+1}")
        if fill: a(fill.pop(0))
        for r_ in rows:
            if pend and pend[0][1]//4 != r_//4: flush()
            pend.append((e, r_))
            if len(pend) == 2: flush()
        if fill: a(fill.pop(0))
    def frags(dst):
        flush()
        for q in range(8): a(f"ds_read_b128 {v(dst+4*q,4)}, v{vSr} offset:{64*q}")
    cpow(Z8, 8)
    row(Z8, [1], False)
    cur = Z8
    for j in range(2, 32):
        nxt = Cu[j & 1]
        cmul(nxt, cur, Z8); cur = nxt
        row(cur, [j % 16], False)
        if j == 15: frags(LF[0])
        if j == HP: a("s_setprio 0")
    frags(LF[1])
    cmul(ZB, cur, Z8)
    cpow(Z1, 1)
    a(f"s_waitcnt vmcnt({1 if WQPF >= 0 else 0})")
    for m in range(2):
        for i in range(2): unpack(TB[m]+i, PR+2+i, m); unpack(TC[m]+i, PR+4+i, m)
    for m in range(2): a(f"v_pk_mul_f32 {v(TB[m],2)}, {v(TB[m],2)}, {v(dt,2)} op_sel_hi:[1,0]")
    cmul(Wc[0], TC, TB)
    row(Wc[0], [0], True)
    cur = Wc[0]
    for h_ in range(1, 8):
        nxt = Cu[h_ & 1]; cmul(nxt, cur, Z1); cur = nxt
        row(cur, [h_], True)
    cmul(Z2, Z1, Z1)
    cmul(Wc[1], Wc[0], ZB); row(Wc[1], [8], True)
    cur = Wc[1]
    for i, rows in enumerate(([9], [10, 12], [13], [14])):
        nxt = Cu[i & 1]; cmul(nxt, cur, Z2); cur = nxt
        row(cur, rows, True)
    frags(HF[0])
    def hm(hb):
        return [f"v_mfma_f32_16x16x32_bf16 {v(DK[2*hb+lb],4)}, {v(HF[hb]+4*q,4)}, {v(LF[lb]+4*q,4)}, {'0' if q==0 else v(DK[2*hb+lb],4)}" for q in range(8) for lb in range(2)]
    g_ = [1]
    def nextG():
        cmul(Wc[(g_[0]+1) & 1], Wc[g_[0] & 1], ZB); g_[0] += 1
        return Wc[g_[0] & 1]
    cmul(Z4, Z2, Z2)
    for base in (0, 4):
        G = nextG()
        row(G, [base], True)
        cmul(Cu[0], G, Z4); row(Cu[0], [base+1], True)
        cmul(Cu[1], Cu[0], Z4); row(Cu[1], [base+2], True)
        if base == 0:
            a("s_waitcnt lgkmcnt(1)"); fill += hm(0)
    for r_ in (8, 10, 12, 14):
        G = nextG(); row(G, [r_], True)
        cmul(Cu[0], G, Z8); row(Cu[0], [r_+1], True)
    assert not fill
    frags(HF[1])
    a(f"v_lshlrev_b32 v{hT+5}, 16, v{PR+7}")
    a("s_mov_b64 exec, 1"); a(f"v_add_f32 v{DK[0]}, v{DK[0]}, v{hT+5}"); a("s_mov_b64 exec, -1")
    for lb in range(2):
        D = DK[lb]
        a(f"v_cvt_pk_bf16_f32 v{D}, v{D}, v{D+1}"); a(f"v_cvt_pk_bf16_f32 v{D+1}, v{D+2}, v{D+3}")
        a(f"v_perm_b32 v{D+2}, v{D+1}, v{D}, v{SEL}"); a(f"v_perm_b32 v{D+3}, v{D+1}, v{D}, v{SEL+1}")
    m1 = hm(1)
    for q in range(8):
        a(f"s_waitcnt lgkmcnt({7-q})"); a(m1[2*q]); a(m1[2*q+1])
    a(f"s_mov_b32 s{sT}, {sel(0,0):#x}"); a(f"s_mov_b32 s{sT2}, {sel(3,3):#x}"); a(f"s_mov_b32 s{sT3}, {sel(2,2):#x}")
    for lb in range(2):
        D = DK[2+lb]; X = HF[0] + 8*lb
        a(f"v_cvt_pk_bf16_f32 v{D}, v{D}, v{D+1}"); a(f"v_cvt_pk_bf16_f32 v{D+1}, v{D+2}, v{D+3}")
        for i in range(3): a(f"v_perm_b32 v{X+i}, v{D+1}, v{D}, v{SEL+2+i}")
        a(f"v_perm_b32 v{X+3}, v{D+1}, v{D}, s{sT}")
        a(f"v_perm_b32 v{X+4}, v{D+1}, v{D}, s{sT2}"); a(f"v_perm_b32 v{X+5}, v{D+1}, v{D}, v{SEL+5}")
        a(f"v_perm_b32 v{X+6}, v{D+1}, v{D}, s{sT3}"); a(f"v_perm_b32 v{X+7}, v{D+1}, v{D}, s{sT3}")
    tagfix()
    HC = Regs(H.p)
    YA = HC(64, 4); UF = [HC(16, 4) for _ in range(2)]; KF = [HC(16, 4) for _ in range(2)]
    UW = HC(32, 4);  G = HC(18, 4)
    while HC.p <= DK[1]+3: HC()
    vGo = HC(); vUw = HC(); vYr = HC(2); vYo = HC(); vHa = HC()
    sLo = sC; sHi = sCh
    srd(a, sX, pU, 2048*1280)
    a(f"v_mul_u32_u24 v{vGo}, 10240, v{vL}")
    a(f"v_lshrrev_b32 v{hT}, 5, v{vL}"); a(f"v_mul_u32_u24 v{hT}, 576, v{hT}"); a(f"v_and_b32 v{hT+1}, 31, v{vL}")
    a(f"s_mul_i32 s{sT}, s{sH}, 1152"); a(f"s_add_u32 s{sT}, s{sT}, {L_U+64}")
    a(f"v_lshl_add_u32 v{hT}, v{hT+1}, 4, v{hT}"); a(f"v_add_u32 v{vUw}, s{sT}, v{hT}")
    a(f"v_and_b32 v{hT}, 3, v{vL}"); a(f"v_mul_u32_u24 v{hT}, {UP}, v{hT}"); a(f"v_bfe_u32 v{hT+1}, v{vL}, 2, 1"); a(f"v_mul_u32_u24 v{hT+1}, 4576, v{hT+1}")
    a(f"v_add3_u32 v{vHa}, v{hT}, v{hT+1}, s{sT}"); a(f"v_and_b32 v{hT}, 8, v{vL}"); a(f"v_mul_u32_u24 v{hT}, 72, v{hT}")
    a(f"v_and_b32 v{hT+1}, 16, v{vL}"); a(f"v_add3_u32 v{vHa}, v{vHa}, v{hT}, v{hT+1}")
    a(f"s_lshl_b32 s{sT}, s{sH}, 8"); a(f"v_lshl_add_u32 v{hT}, v{vL}, 2, s{sT}")
    a(f"v_add_u32 v{vYr}, {L_U+2368+YS}, v{hT}"); a(f"v_add_u32 v{vYr+1}, {L_KR}, v{hT}")
    a(f"v_mul_u32_u24 v{vYo}, 5120, v{vL}")
    if opt.get("ytest") == 2:
        a(f"v_and_b32 v{hT}, 1, v{vL}"); a(f"v_lshlrev_b32 v{hT}, 8, v{hT}"); a(f"v_sub_u32 v{vYo}, v{vYo}, v{hT}")
    a(f"s_mov_b32 s{sLo}, 0x05040100"); a(f"s_mov_b32 s{sHi}, 0x07060302")
    assert vGo > DK[1]+3 and vGo > HF[0]+15
    if opt.get("k2"):
        a("s_nop 7"); a("s_nop 7")
        a(f"s_cmp_eq_u32 s{sC}, 1"); a("s_cbranch_scc1 L_k2d")
        stamp("h")
        a(f"s_mov_b32 s{sC}, 1"); a("s_branch L_k2"); a("L_k2d:")
    stamp("h")
    h_sig(4, L_CNT)
    if FE == 1: kv_flags(False)
    for i in range(2): a(f"v_mov_b32 v{hT+i}, 0")
    hl_wait(13, 2)
    a(f"s_setprio {opt.get('ktprio', 3)}")
    for lb in range(2): a(f"ds_write_b64 v{vKb}, {v(DK[lb]+2,2)} offset:{128*(1-lb)}")
    a(f"ds_write_b64 v{vKz}, {v(hT,2)} offset:2048")
    for lb in range(2): a(f"ds_write_b128 v{vKc}, {v(HF[0]+8*lb,4)} offset:{256+128*(1-lb)}")
    a("s_mov_b32 exec_lo, 0")
    for lb in range(2): a(f"ds_write_b128 v{vKc}, {v(HF[0]+8*lb+4,4)} offset:{128*(1-lb)}")
    a("s_mov_b32 exec_lo, -1")
    stamp("h")
    def gather(part):
        a(f"s_mul_i32 s{sT}, s{sH}, {512*1280}"); a(f"s_lshl_b32 s{sT2}, s{sCg}, 3"); a(f"s_add_u32 s{sT}, s{sT}, s{sT2}")
        if part: a(f"s_add_u32 s{sT}, s{sT}, 5120")
        for i in range(4*part, 4*part+4):
            a(f"buffer_load_dwordx2 {v(G+2+2*i,2)}, v{vGo}, s[{sX}:{sX+3}], s{sT} offen offset:{1280*(i%4)}")
        if part: return
        a(f"s_sub_u32 s{sT}, s{sT}, 1280")
        a(f"s_cmp_eq_u32 s{sH}, 0"); a(f"s_cselect_b32 s{sT}, 0x10000000, s{sT}")
        a(f"v_mov_b32 v{hT}, s{sT}")
        a("s_mov_b64 exec, 1")
        a(f"buffer_load_dwordx2 {v(G,2)}, v{hT}, s[{sX}:{sX+3}], 0 offen")
        a("s_mov_b64 exec, -1")
    def zero_c2(halo):
        a(f"s_mul_i32 s{sT}, s{sH}, {UP}"); a(f"s_add_u32 s{sT}, s{sT}, {L_U}")
        a(f"v_add_u32 v{hT+4}, s{sT}, v{hDma}")
        for i in range(4): a(f"v_mov_b32 v{hT+i}, 0")
        a("s_mov_b64 exec, 15")
        a(f"ds_write_b128 v{hT+4}, {v(hT,4)}")
        if halo:
            a("s_mov_b64 exec, 3")
            a(f"ds_write_b128 v{hT+4}, {v(hT,4)} offset:4608")
        a("s_mov_b64 exec, -1")
    def uwrite():
        for d in range(2): a(f"v_mov_b32_dpp v{G+d}, v{G+16+d} wave_shr:1 row_mask:0xf bank_mask:0xf")
        for c in range(4):
            for odd in range(2):
                B = UW + 8*c + 4*odd
                for q in range(4):
                    r0 = G + 2*(2*q+1-odd) + (c >> 1)
                    a(f"v_perm_b32 v{B+q}, v{r0+2}, v{r0}, s{sHi if c & 1 else sLo}")
                a(f"ds_write_b128 v{vUw}, {v(B,4)} offset:{UP*c+4576*odd}")
        if opt.get("halo", 1):
            a(f"s_cmp_eq_u32 s{sH}, 3"); a("s_cselect_b32 exec_lo, 0x00ff00ff, -1"); a("s_mov_b32 exec_hi, 0")
            a(f"ds_read_b128 {v(G,4)}, v{vHa} offset:480"); a("s_waitcnt lgkmcnt(0)")
            a(f"ds_write_b128 v{vHa}, {v(G,4)} offset:544")
            a("s_mov_b64 exec, -1")
            return
        a(f"s_cmp_eq_u32 s{sH}, 3"); a("s_mov_b32 exec_lo, 0xc0000000"); a("s_cselect_b32 exec_hi, 0, exec_lo")
        for c in range(4):
            for odd in range(2): a(f"ds_write_b128 v{vUw}, {v(UW+8*c+4*odd,4)} offset:{UP*c+4576*odd+64}")
        a("s_mov_b64 exec, -1")
    def ufrag(dst, R_, k): return [f"ds_read2_b32 {v(dst+2*i,2)}, v{vU+R_} offset0:{8*k+2*i} offset1:{8*k+2*i+1}" for i in range(2)]
    def kfrag(dst, D, k): return [f"ds_read_b128 {v(dst,4)}, v{vKf} offset:{1536-512*D+16*k}"]
    def cmm(R_, D, k, b, z):
        N = R_+D
        return f"v_mfma_f32_32x32x16_bf16 {v(YA+16*N,16)}, {v(UF[b]+4*R_,4)}, {v(KF[b]+4*D,4)}, {'0' if z else v(YA+16*N,16)}"
    GA = opt.get("ga", 2)
    pairsA = [(R_, N-R_) for N in range(GA) for R_ in range(N+1)]
    pairsB = sorted([(R_, N-R_) for N in range(GA, 4) for R_ in range(N+1)])
    jobs = []
    for k in range(16):
        hu = set(); hk = set()
        for R_, D in pairsA:
            rd = []
            if R_ not in hu: rd += ufrag(UF[k&1]+4*R_, R_, k); hu.add(R_)
            if D not in hk: rd += kfrag(KF[k&1]+4*D, D, k); hk.add(D)
            jobs.append((rd, cmm(R_, D, k, k & 1, k == 0 and R_ == 0)))
    NJA = len(jobs)
    EXP = [tuple(x) for x in opt.get("ex", [(0,2),(1,1)] if G3 else [(0,3),(0,2)])]
    started = set()
    for k in range(16 if EXP else 0):
        hu = set(); hk = set()
        for R_, D in EXP:
            rd = []
            if R_ not in hu: rd += ufrag(UF[k&1]+4*R_, R_, k); hu.add(R_)
            if D not in hk: rd += kfrag(KF[k&1]+4*D, D, k); hk.add(D)
            jobs.append((rd, cmm(R_, D, k, k & 1, R_+D not in started))); started.add(R_+D)
    if G3:
        for k in range(16): jobs.append((ufrag(UF[k&1]+8, 2, k) + kfrag(KF[k&1], 0, k), cmm(2, 0, k, k & 1, False)))
        opt.setdefault("sched", [0,0,0,12+4*len(EXP),12+4*len(EXP),12+4*len(EXP),12+4*len(EXP),16])
        assert opt["sched"][7] >= 16
    sched = opt.get("sched", {0: [0]*8, 1: [0,0,0,16,0,0,0,0], 2: [0,0,0,16,16,16,8*len(EXP),8*len(EXP)]}[GA])
    assert sum(sched) == len(jobs)
    lastA = min(c for c in range(8) if sum(sched[:c+1]) >= NJA)
    def combine(N):
        for i in range(8):
            a(f"v_add_f32_dpp v{YA+16*N+i}, v{YA+16*N+8+i}, v{YA+16*N+i} row_ror:8 row_mask:0xf bank_mask:0xc")
        if N:
            for i in range(8):
                a(f"v_add_f32_dpp v{YA+16*N+i}, v{YA+16*N-8+i}, v{YA+16*N+i} row_ror:8 row_mask:0xf bank_mask:0x3")
        for i in range(4): a(f"v_cvt_pk_bf16_f32 v{YA+16*N+i}, v{YA+16*N+2*i}, v{YA+16*N+2*i+1}")
    def yread(T, tail, idx):
        p = 18 if tail else 36
        for i in range(2): a(f"ds_read2st64_b32 {v(T+2*i,2)}, v{vYr+tail} offset0:{2*p*i+int(4*idx)} offset1:{2*p*i+p+int(4*idx)}")
    def yout(T, N):
        a(f"s_mul_i32 s{sT}, s{sH}, {128*2560}"); a(f"s_lshl_b32 s{sT2}, s{sCg}, 3"); a(f"s_add_u32 s{sT}, s{sT}, s{sT2}")
        a(f"s_add_u32 s{sT}, s{sT}, {512*2560*N+1280}")
        if opt.get("ytest") == 1:
            a(f"s_sub_u32 s{sT}, s{sT}, s{sT2}"); a(f"s_and_b32 s{sT2}, s2, 7"); a(f"s_lshl_b32 s{sT2}, s{sT2}, 7"); a(f"s_add_u32 s{sT}, s{sT}, s{sT2}")
            a(f"s_and_b32 s{sT2}, s2, 0x78"); a(f"s_add_u32 s{sT}, s{sT}, s{sT2}")
        if opt.get("ytest") == 3:
            a(f"s_sub_u32 s{sT}, s{sT}, s{sT2}"); a(f"s_and_b32 s{sT2}, s2, 7"); a(f"s_lshl_b32 s{sT2}, s{sT2}, 7"); a(f"s_add_u32 s{sT}, s{sT}, s{sT2}")
            a(f"s_and_b32 s{sT2}, s2, 0x78"); a(f"s_add_u32 s{sT}, s{sT}, s{sT2}"); a(f"s_add_u32 s{sT}, s{sT}, 64")
        for r_ in range(2):
            for i in range(2): a(f"v_perm_b32 v{T+4+2*r_+i}, v{T+2*i+1}, v{T+2*i}, s{sHi if r_ else sLo}")
            a(f"buffer_store_dwordx2 {v(T+4+2*r_,2)}, v{vYo}, s[{sA}:{sA+3}], s{sT} offen offset:{2560*r_} {opt.get('ysc','') if N >= opt.get('ywt', 0) else 'sc1'}")
    def seg_dma(c):
        if 1 <= c <= 6: ring_dma(sH, hDma)
        if 1 <= c <= 3: wo_step()
        if c == 4:
            a(f"s_lshr_b32 s{sT}, s2, 3"); a(f"s_lshl_b32 s{sT}, s{sT}, 2"); a(f"s_add_u32 s{sT}, s{sT}, s{sH}"); a(f"s_mul_i32 s{sT}, s{sT}, 2560")
            a(f"s_add_u32 s{sT}, s{sT}, {320*1280}")
            a(f"v_lshlrev_b32 v{hT}, 7, v{vL}")
            a("s_mov_b64 exec, 0xfffff")
            a(f"buffer_load_dword v{hT}, v{hT}, s[{sWQ}:{sWQ+3}], s{sT} offen")
            a("s_mov_b64 exec, -1")
        if c == opt.get("pseg", 5):
            a(f"s_lshl_b32 s{sT}, s{sG}, 3"); a(f"s_add_u32 s{sT}, s{sT}, s{sS}"); a(f"s_lshl_b32 s{sT}, s{sT}, 2"); a(f"s_add_u32 s{sT}, s{sT}, s{sH}")
            a(f"s_mul_i32 s{sT}, s{sT}, 2560"); a(f"s_add_u32 s{sT}, s{sT}, {WS_O}")
            for i in range(4): a(f"v_mov_b32 v{hT+i}, -1")
            a(f"s_add_u32 s{sT2}, s{sT}, {WS_OB}")
            for i in range(3):
                if i == 2: a("s_mov_b32 exec_hi, 0")
                for r_ in ((sT,) if SAME else (sT, sT2)): a(f"buffer_store_dwordx4 {v(hT,4)}, v{hDma}, s[{sWS}:{sWS+3}], s{r_} offen offset:{1024*i} sc1")
            a("s_mov_b32 exec_hi, -1")
        if c == opt.get("fseg", 7.5):
            Lw = lab("f8")
            a(f"s_cmp_lg_u32 s{sH}, 0"); a(f"s_cbranch_scc1 {Lw}")
            publish(hT, WS_FO, sH)
            a(f"{Lw}:")
        if c == 7:
            Lw = lab("w7")
            a(f"s_cmp_eq_u32 s{sH}, 3"); a(f"s_cbranch_scc1 {Lw}")
            wo_set(1, 0); wo_step()
            a(f"{Lw}:")
        if c == 8:
            Lw = lab("w8")
            wo_set(1, 3); wo_step()
            a(f"s_cmp_lg_u32 s{sH}, 3"); a(f"s_cbranch_scc1 {Lw}")
            wo_step()
            a(f"{Lw}:")
    GS = opt.get("gs", [0, 3])
    def useg(c, tail):
        for half in range(2):
            ph = c - GS[half]
            if ph not in (0, 1): continue
            Lx = lab("ux")
            a(f"s_cmp_ge_u32 s{sH}, 2"); a(f"s_cbranch_scc{1-half} {Lx}")
            if not tail: gather(ph)
            else:
                a(f"s_waitcnt vmcnt({5-ph}) lgkmcnt(0)")
                a("s_barrier"); a(f"s_branch L_seg{c+1}")
            a(f"{Lx}:")
    def useg_early(c):
        for half in range(2):
            if c != (GS[0]+2, 7)[half] and not (G3 and half and c == 6): continue
            Lx = lab("uw"); Ly = lab("uy")
            n = (5 if c <= 3 else 1 if c == 4 else 0)
            if G3 and half: a(f"s_cmp_eq_u32 s{sH}, {c-4}"); a(f"s_cbranch_scc0 {Lx}")
            else: a(f"s_cmp_ge_u32 s{sH}, 2"); a(f"s_cbranch_scc{1-half} {Lx}")
            if not half: a(f"s_waitcnt vmcnt({n+6})")
            a(f"s_setprio {opt.get('uprio', 3)}")
            uwrite()
            a("s_setprio 0")
            a(f"{Lx}:")
    srd(a, sA, pOut, 2048*2560)
    if FE == 2: kv_flags(False)
    pre_b1(not FE)
    stamp("h")
    useg(0, False)
    a("s_setprio 0")
    useg(0, True)
    a("s_waitcnt vmcnt(0) lgkmcnt(0)")
    a("s_barrier")
    jn = 0
    for c in range(1, 8):
        a(f"L_seg{c}:")
        seg_dma(c)
        if c == 1: zero_c2(True)
        useg(c, False)
        useg_early(c)
        if GA and c == lastA + 1:
            assert c - GS[1] > 1 and c < 7
            for N in range(GA): yread(UW+8*N, 0, 4.5*N if G3 else N)
            for N in range(GA):
                a(f"s_waitcnt lgkmcnt({2*(GA-1-N)})"); yout(UW+8*N, N)
        pipe = c in opt.get("pipe", [3, 4, 5, 6, 7] if G3 else [])
        if G3 and c == 7 and opt.get("p7"): a(f"s_setprio {opt['p7']}")
        for i_ in range(sched[c]):
            rd, mm_ = jobs[jn]; jn += 1
            nrd = jobs[jn][0] if pipe and i_+1 < sched[c] else []
            if not pipe or i_ == 0:
                for x in rd: a(x)
            for x in nrd: a(x)
            if rd: a(f"s_waitcnt lgkmcnt({len(nrd)})")
            a(mm_)
        if G3 and c == 7:
            a(f"s_setprio {opt.get('uprio', 3)}")
            a(f"s_mul_i32 s{sT}, s{sH}, {KRP-1024}"); a(f"s_add_u32 s{sT}, s{sT}, {L_KR-L_Y}")
            a(f"v_subrev_u32 v{hT}, s{sT}, v{vY+1}"); a(f"v_subrev_u32 v{hT+1}, {L_KR-L_Y}, v{vYr+1}")
            combine(2)
            a(f"ds_write_b128 v{hT}, {v(YA+32,4)}")
            h_sig(1)
            a("s_setprio 0")
            hl_wait(1, 1, L_C2)
            for i in range(2): a(f"ds_read2st64_b32 {v(UW+2*i,2)}, v{hT+1} offset0:{8*i} offset1:{8*i+4}")
            a("s_waitcnt lgkmcnt(0)")
            yout(UW, 2)
        if GA and c == lastA:
            a("s_nop 15")
            a(f"s_setprio {opt.get('uprio', 3)}")
            for N in range(GA):
                combine(N)
                a(f"ds_write_b128 v{vY}, {v(YA+16*N,4)} offset:{(4608 if G3 else 1024)*N}")
            a("s_setprio 0")
        useg(c, True)
        RLX = opt.get("rlx", 3)
        assert opt.get("pseg", 5) < 7 and opt.get("pseg", 5) - GS[1] > 1
        a(f"s_waitcnt vmcnt({(4 if GA and c == lastA + 1 and RLX & 2 else 0) + (2 if G3 and c == 7 else 0) + (6 if c == opt.get('pseg', 5) and RLX & 1 else 0)}) lgkmcnt(0)")
        if c == 7: seg_dma(7.5)
        a("s_barrier")
    a("L_seg8:")
    stamp("h")
    assert GA == 2
    bsteps = []; SPLIT = opt.get("split", 1)
    for k in range(16):
        order = [(0,3),(0,2),(1,2),(1,1),(2,1),(2,0)] if k < 15 else [(0,2),(1,1),(2,0),(0,3),(1,2),(2,1)]
        if SPLIT == 2: order.remove((0,3))
        order = [x for x in order if x not in EXP]
        if G3: order = [x for x in [(0,3),(1,2),(2,1),(3,0)] if x not in EXP]
        bsteps.append([(R_, R_, D, D, k) for R_, D in order])
    if G3: pass
    elif SPLIT == 1:
        for k in range(0, 16, 4): bsteps.append([(i, 3, i, 0, k+i) for i in range(4)])
    else:
        for k in range(0, 16, 2): bsteps.append([(i, 3*(i&1), i, 3-3*(i&1), k+i//2) for i in range(4)])
    YO = {1: (0, 2304), 2: (768, 2304+768)}[SPLIT]
    YSTEP = opt.get("ystep", {1: 19, 2: 18}[SPLIT])
    def breads(n):
        r = []; seen = set()
        for us, R_, ks_, D, k in bsteps[n]:
            if ("k", ks_) not in seen: r += [(("k", n, ks_), x) for x in kfrag(KF[n&1]+4*ks_, D, k)]
            if ("u", us) not in seen: r += [(("u", n, us), x) for x in ufrag(UF[n&1]+4*us, R_, k)]
            seen |= {("k", ks_), ("u", us)}
        return r
    DS = Q("lgkmcnt", 15)
    for t_, x in breads(0): a(x); DS.add(t_)
    seg_dma(8)
    a(f"s_setprio {opt.get('bprio', 1)}")
    def lines(fn):
        keep = a.lines; a.lines = []; fn(); got = a.lines; a.lines = keep; return got
    first = set(started)
    for n, st in enumerate(bsteps):
        nx = breads(n+1) if n+1 < len(bsteps) else []
        per = -(-len(nx)//(len(st)-1)) if n < 15 and not G3 else max(3, -(-len(nx)//len(st)))
        fill_ = lines(lambda: combine(2)) if n == 16 else []
        if opt.get("bprof") and n % 8 == 0: stamp("h")
        if n == opt.get("bdrop", 99): a("s_setprio 0")
        for i, (us, R_, ks_, D, k) in enumerate(st):
            DS.wait(("k", n, ks_), ("u", n, us))
            N = R_+D
            a(f"v_mfma_f32_32x32x16_bf16 {v(YA+16*N,16)}, {v(UF[n&1]+4*us,4)}, {v(KF[n&1]+4*ks_,4)}, {v(YA+16*N,16) if N in first else '0'}"); first.add(N)
            for t_, x in nx[per*i:per*i+per]: a(x); DS.add(t_)
            for x in fill_[5*i:5*i+5]: a(x)
        if n == 16:
            if SPLIT == 1: a(f"ds_write_b128 v{vY+1}, {v(YA+32,4)} offset:{YO[0]}")
            else: a(f"ds_write_b128 v{vY}, {v(YA+32,4)}")
            h_sig(1); DS.add("s", 2)
        if n == YSTEP:
            hl_wait(1, 0, L_C2)
            if SPLIT == 1: yread(UW, 1, 0)
            else: yread(UW, 0, 0)
            a("s_waitcnt lgkmcnt(0)"); DS.q = []
            yout(UW, 2)
        if n == opt.get("wosig", 8):
            a("s_waitcnt vmcnt(0)"); h_sig(0); DS.add("s")
    stamp("h")
    a(f"s_setprio {opt.get('yprio', 1)}")
    combine(3)
    a(f"ds_write_b128 v{vY+1}, {v(YA+48,4)} offset:2304")
    h_sig(2)
    hl_wait(2, 0, L_C2)
    yread(UF[0]+8, 1, 2.25)
    a("s_waitcnt lgkmcnt(0)")
    yout(UF[0]+8, 3)
    if prof:
        stamp("h"); a("s_waitcnt vmcnt(0)"); stamp("h")
    a("s_branch L_h_end")
    a("L_h_tr:")
    if HP: a("s_setprio 0")
    if WQPF == 3: wq_pf()
    a("s_waitcnt lgkmcnt(0)")
    if WQPF in (1, 2): wq_pf()
    tagfix()
    a(f"s_cmp_ge_u32 s{sS}, 2"); a("s_cbranch_scc1 L_h_now")
    HW = Regs(H.p); wP = HW(5)
    wpattern(wP, vL, hT, True)
    srd(a, sX, pWQ, 640*1280)
    a(f"s_mul_i32 s{sT3}, s{sS}, 160")
    a(f"s_add_u32 s{sC}, s{sH}, 16"); a(f"s_mul_i32 s{sC}, s{sC}, 40960"); a(f"s_add_u32 s{sC}, s{sC}, s{sT3}")
    a(f"s_mul_i32 s{sCh}, s{sH}, {4*40960}"); a(f"s_add_u32 s{sCh}, s{sCh}, s{sT3}")
    a(f"s_lshl_b32 s{sT5}, s{sH}, 2"); a(f"s_add_u32 s{sT5}, s{sT5}, {L_CNT}")
    early = opt.get("kvt", -1) >= 0
    if opt.get("touch", 0):
        a(f"s_lshr_b32 s{sT}, s{sG}, 2"); a(f"s_mul_i32 s{sT}, s{sT}, {CHUNK}")
        a(f"s_bfe_u32 s{sT2}, s{sG}, 0x10001"); a(f"s_mul_i32 s{sT2}, s{sT2}, {GRP}"); a(f"s_add_u32 s{sT}, s{sT}, s{sT2}")
        a(f"s_and_b32 s{sT2}, s{sG}, 1"); a(f"s_mul_i32 s{sT2}, s{sT2}, 2688"); a(f"s_add_u32 s{sT2}, s{sT2}, 1024"); a(f"s_mul_i32 s{sT2}, s{sT2}, s{sS}")
        a(f"s_add_u32 s{sT}, s{sT}, s{sT2}"); a(f"s_lshl_b32 s{sT2}, s{sH}, 10"); a(f"s_add_u32 s{sT}, s{sT}, s{sT2}"); a(f"s_add_u32 s{sT}, s{sT}, {WS_KV+4096}")
        a(f"s_lshl_b32 s{sT2}, s2, 7"); a(f"s_add_u32 s{sT2}, s{sT2}, {WS_FKV}")
        a(f"s_cmp_eq_u32 s{sH}, 3"); a(f"s_cselect_b32 s{sT}, s{sT2}, s{sT}")
        a(f"v_lshlrev_b32 v{hT+6}, 7, v{vL}")
        a("s_cselect_b64 exec, 1, 0xff")
        a(f"buffer_load_dword v{hT+7}, v{hT+6}, s[{sWS}:{sWS+3}], s{sT} offen sc1")
        a("s_mov_b64 exec, -1")
    a(f"s_waitcnt vmcnt({opt.get('touch', 0)})"); h_sig(0, L_CNT)
    hl_wait(8, 1, f"s{sT5}", 1)
    a(f"s_mul_i32 m0, s{sH}, 5120")
    wkstep_dma(wP, sX, sC)
    if KV2:
        a(f"s_add_u32 m0, m0, {L_F-5120}")
        wkstep_dma(wP, sX, sCh)
    if early: hl_wait(8, 1, f"s{sT5}", 2)
    a(f"s_mul_i32 s{sT}, s{sH}, 20480"); a(f"s_add_u32 m0, s{sT}, {L_X + (5120 if KV2 else 0)}")
    for i in range(4):
        if not (KV2 and i == 0): wkstep_dma(wP, sX, sCh)
        a(f"s_add_u32 s{sCh}, s{sCh}, 40960")
        if i >= 1:
            a("s_waitcnt vmcnt(10)"); h_sig(CW[i-1], L_CNT)
    a("s_waitcnt vmcnt(5)"); h_sig(CW[3], L_CNT)
    a("s_waitcnt vmcnt(0)"); h_sig(CW[4], L_CNT)
    a("L_h_now:")
    h_sig(4, L_CNT)
    pre_b1()
    a("s_waitcnt vmcnt(0)")
    a("s_barrier")
    for c in range(1, 8):
        seg_dma(c)
        if c == 1:
            zero_c2(False)
        if c == opt.get("upf", 1):
            srd(a, sX, pU, 2048*1280)
            a(f"s_and_b32 s{sT}, s2, 7"); a(f"s_lshl_b32 s{sT}, s{sT}, 3")
            a(f"s_mov_b32 s{sT2}, 0x08050200"); a(f"s_mov_b32 s{sT3}, 0x120f0c0a")
            a(f"s_lshr_b64 s[{sT2}:{sT3}], s[{sT2}:{sT3}], s{sT}"); a(f"s_and_b32 s{sT2}, s{sT2}, 0xff"); a(f"s_lshl_b32 s{sT2}, s{sT2}, 6")
            a(f"s_lshr_b32 s{sT}, s2, 3"); a(f"s_lshl_b32 s{sT}, s{sT}, 2"); a(f"s_add_u32 s{sT}, s{sT}, s{sH}"); a(f"s_add_u32 s{sT}, s{sT}, 32")
            a(f"s_mul_i32 s{sT}, s{sT}, {32*1280}"); a(f"s_add_u32 s{sT}, s{sT}, s{sT2}")
            a(f"v_lshrrev_b32 v{hT+6}, 1, v{vL}"); a(f"v_mul_u32_u24 v{hT+6}, 10, v{hT+6}"); a(f"v_and_b32 v{hT+7}, 1, v{vL}")
            a(f"v_add_lshl_u32 v{hT+6}, v{hT+6}, v{hT+7}, 7")
            a(f"buffer_load_dword v{hT+7}, v{hT+6}, s[{sX}:{sX+3}], s{sT} offen")
        if "s" in opt.get("wb", "") and c == 7:
            Lw = lab("wb")
            a(f"s_lshr_b32 s{sT}, s2, 3"); a(f"s_lshl_b32 s{sT}, s{sT}, 2"); a(f"s_add_u32 s{sT}, s{sT}, s{sH}")
            a(f"s_cmp_lg_u32 s{sT}, {4*opt.get('wbs', 0)+3}"); a(f"s_cbranch_scc1 {Lw}")
            a("buffer_wbl2 sc1")
            a(f"{Lw}:")
        a(f"s_waitcnt vmcnt({6 if c == opt.get('pseg', 5) and RLX & 1 else 1 if c == opt.get('upf', 1) else 0}) lgkmcnt(0)")
        if c == 7: seg_dma(7.5)
        a("s_barrier")
    seg_dma(8)
    a("s_waitcnt vmcnt(0)"); h_sig(0)
    tag_advance()
    WBM = opt.get("wb", "")
    if WBM:
        a(f"s_lshr_b32 s{sT}, s2, 3"); a(f"s_lshl_b32 s{sT}, s{sT}, 2"); a(f"s_add_u32 s{sT}, s{sT}, s{sH}")
        a(f"s_cmp_lg_u32 s{sT}, {4*opt.get('wbw', 8)+1}"); a("s_cbranch_scc1 L_h_end")
        if "a" in WBM: a("buffer_wbl2 sc1"); a("s_waitcnt vmcnt(0)")
        if "b" in WBM:
            hl_wait(3, 4, L_C2)
            a("buffer_wbl2 sc1"); a("s_waitcnt vmcnt(0)")
    a("L_h_end:")
    prof_store("h", hT)
    a("L_end:")
    a("s_endpgm")
    nv = max(hi_a, HK.hi, HC.hi)
    return a, nv

HDR = open("cdna_kernels/" + NAME + ".s.ref").read().split("; @launch")[0] if os.path.exists("cdna_kernels/" + NAME + ".s.ref") else ""
def build(path, prof=False, opt=None, verbose=False):
    a, nv = gen(prof, opt)
    lines = hz.fix(a.lines, verbose)
    body = "\n".join(lines) + "\n"
    k = NAME + "_kernel"
    nv = 256 if prof else max(nv, 129)
    txt = HDR + f"; @launch grid=(256,1,1) block=(512,1,1) lds={LDS_TOTAL}\n" + '.amdgcn_target "amdgcn-amd-amdhsa--gfx950"\n'
    txt += kernel_header(k) + body + "L_code_end:\n" + kernel_desc(k, nv)
    txt = txt.replace("CODE_BYTES", f"(L_code_end-{k}-64)&0xfffffffc")
    open(path, "w").write(txt)
    return nv
if __name__ == "__main__":
    nv = build("cdna_kernels/" + NAME + ".s", False, None, "-v" in sys.argv)
    print("vgprs", nv)
    build("k_prof.s", True)
    build("k_slow.s", False, {"forceslow": 1})
    import json
    for i, o in enumerate([x for x in sys.argv[1:] if x.startswith("{")]):
        if "-r" in sys.argv: build(f"k_r{i+1}.s", False, json.loads(o))
        else: build(f"k_prof{i+1}.s", True, json.loads(o))
```

```python
import sys, os
sys.path.insert(0, os.path.dirname(os.path.abspath(__file__)))
from asmlib import *
import hz
NAME = "concat_heads__grouped_kv_mqa__ssm_conv_s4__prompt"
WS_TAG=0; WS_FKV=0x1000; WS_FU=0x18000; WS_FY=0x8000; WS_FO=0x10000
WS_KV=0x20000; GRP=10496; CHUNK=21504
WS_O=0x400000; WS_OB=0x400000; WS_UT=0x300000; UTP=8448; WS_YT=0x900000; WS_PROF=0xC00000; WS_SIZE=0x1000000
L_X=21504; L_CNT=103424; L_WK=103552; L_SC=103552; SCP=8448; L_WO=2048; L_U=104448; UP=9216; L_Y=141312; L_C2=104448; L_XR=137344; L_KR=145408; KRP=4608; LDS_TOTAL=163840
sW=3; sG=4; sS=5; sTag=6; sT=7
sX=8; sWQ=12; P=16
pX,pWQ,pWK,pWV,pWO,pU,pAre,pAim,pBre,pBim,pCre,pCim,pLdt,pDs,pOut,pDbg,pWS = [16+2*i for i in range(17)]
sWS=52; sA=56
sT2=50; sT3=51; sC=60; sSlotN=61; sGo=62; sSlotD=63; sBound=64; sCh=65; sU0=66; sH=67; sT4=68; sT5=69
sPr=70
SPIN = 200000

def gen(prof=False, opt=None):
    opt = opt or {}
    a = Asm()
    uid = [0]
    def lab(p="L"):
        uid[0] += 1; return f"{p}_{uid[0]}"
    np_ = {"a": 0, "h": 0}
    phase = ["pro"]
    probe = opt.get("probe")
    SAME = opt.get("same", 0)
    def stamp(role, extra=False):
        if probe and role == "a" and not extra:
            if np_["a"] == probe[0]: a("s_memrealtime s[72:73]")
            np_["a"] += 1
        if not prof: return
        if role == "a" and opt.get("tailprof"):
            if phase[0] == "pro": return
        elif extra: return
        i = np_[role]; np_[role] += 1
        assert i < 14
        a(f"{'s_memtime' if opt.get('cyc') else 's_memrealtime'} s[{sPr+2*i}:{sPr+2*i+1}]")
    def prof_store(role, vt):
        if not prof: return
        a("s_waitcnt lgkmcnt(0)")
        a(f"s_lshl_b32 s{sT}, s2, 3"); a(f"s_add_u32 s{sT}, s{sT}, s{sW}"); a(f"s_lshl_b32 s{sT}, s{sT}, 6")
        a(f"s_add_u32 s{sT}, s{sT}, {WS_PROF}")
        a("s_mov_b64 exec, 1")
        a(f"v_mov_b32 v{vt+1}, 0")
        for i in range(np_[role]):
            a(f"v_mov_b32 v{vt}, s{sPr+2*i}")
            a(f"buffer_store_dword v{vt}, v{vt+1}, s[{sWS}:{sWS+3}], s{sT} offen offset:{4*i}")
        a("s_waitcnt vmcnt(0)")
    def poll(vP, vOff, soff, n=1, sleep=0):
        L = lab("poll"); D = lab("pdone")
        a(f"s_mov_b32 s{sBound}, {SPIN}")
        if sleep:
            L0 = lab("poll0"); a(f"s_branch {L0}")
        a(f"{L}:")
        if sleep:
            a(f"s_sleep {sleep}"); a(f"{L0}:")
        a(f"buffer_load_dword{'' if n==1 else 'x'+str(n)} {v(vP,n)}, v{vOff}, s[{sWS}:{sWS+3}], {soff} offen sc1")
        a(f"s_sub_u32 s{sBound}, s{sBound}, 1")
        a(f"s_cbranch_scc1 {D}")
        a("s_waitcnt vmcnt(0)")
        if n == 4:
            for i in range(4): a(f"v_xor_b32 v{vP+i}, s{sTag}, v{vP+i}")
            a(f"v_or3_b32 v{vP}, v{vP}, v{vP+1}, v{vP+2}")
            a(f"v_or_b32 v{vP}, v{vP}, v{vP+3}")
            a(f"v_cmp_ne_u32 vcc, 0, v{vP}")
        else:
            a(f"v_cmp_ne_u32 vcc, s{sTag}, v{vP}")
        a(f"s_cbranch_vccnz {L}")
        a(f"{D}:")
    def publish(vt, base, widx):
        a(f"s_lshl_b32 s{sT}, s2, 7"); a(f"s_lshl_b32 s{sT2}, s{widx}, 2"); a(f"s_add_u32 s{sT}, s{sT}, s{sT2}")
        a(f"s_add_u32 s{sT}, s{sT}, {base}")
        a(f"v_mov_b32 v{vt}, s{sTag}")
        a("s_mov_b64 exec, 1")
        a(f"buffer_store_dword v{vt}, off, s[{sWS}:{sWS+3}], s{sT} sc1")
        a("s_mov_b64 exec, -1")
    def ring_dma(wreg, vDma):
        for k in range(2):
            Lk = lab("dma")
            if k == 1:
                a(f"s_cmp_ge_u32 s{wreg}, 3"); a(f"s_cbranch_scc1 {Lk}")
            a(f"s_mul_i32 s{sT}, s{wreg}, 3072")
            if k: a(f"s_add_u32 s{sT}, s{sT}, {4*3072}")
            a(f"s_add_u32 m0, s{sT}, s{sSlotD}")
            a(f"s_add_u32 s{sT}, s{sT}, s{sGo}")
            for i in range(3):
                a(f"buffer_load_dwordx4 v{vDma}, s[{sWS}:{sWS+3}], s{sT} offen offset:{i*1024} sc1 lds")
            if k == 1: a(f"{Lk}:")
        a(f"s_add_u32 s{sGo}, s{sGo}, {CHUNK}")
        a(f"s_cmp_eq_u32 s{sGo}, {WS_KV+8*CHUNK}")
        a(f"s_cselect_b32 s{sGo}, {WS_KV}, s{sGo}")
        a(f"s_xor_b32 s{sSlotD}, s{sSlotD}, {CHUNK}")
    def wpattern(vP, vL, vt, perm):
        for p in range(5):
            a(f"v_add_u32 v{vt}, {64*p}, v{vL}")
            a(f"v_mul_u32_u24 v{vt+1}, 205, v{vt}")
            a(f"v_lshrrev_b32 v{vt+1}, 11, v{vt+1}")
            a(f"v_mul_u32_u24 v{vt+2}, 10, v{vt+1}")
            a(f"v_sub_u32 v{vt}, v{vt}, v{vt+2}")
            if perm:
                a(f"v_lshrrev_b32 v{vt+2}, 1, v{vt+1}")
                a(f"v_and_b32 v{vt+2}, 4, v{vt+2}")
                a(f"v_xor_b32 v{vt+1}, v{vt+1}, v{vt+2}")
            a(f"v_mul_u32_u24 v{vt+1}, 80, v{vt+1}")
            a(f"v_add_u32 v{vt}, v{vt}, v{vt+1}")
            if 0 < p < 4: a(f"v_subrev_u32 v{vt}, {64*p}, v{vt}")
            a(f"v_lshlrev_b32 v{vP+p}, 4, v{vt}")
    def wkstep_dma(vP, srd_, soff):
        for p in range(4):
            a(f"buffer_load_dwordx4 v{vP+p}, s[{srd_}:{srd_+3}], s{soff} offen offset:{p*1024} lds")
        a("s_add_u32 m0, m0, 4096")
        a(f"buffer_load_dwordx4 v{vP+4}, s[{srd_}:{srd_+3}], s{soff} offen lds")
        a("s_add_u32 m0, m0, 1024")

    if prof:
        a(f"{'s_memtime' if opt.get('cyc') else 's_memrealtime'} s[{sPr}:{sPr+1}]"); np_["a"] = np_["h"] = 1
    if probe: a("s_memrealtime s[70:71]"); np_["a"] = 1
    a("s_cmp_ge_u32 s2, 256")
    a("s_cbranch_scc1 L_end")
    a("s_load_dwordx16 s[16:31], s[0:1], 0")
    a("s_load_dwordx16 s[32:47], s[0:1], 64")
    a("s_load_dwordx2 s[48:49], s[0:1], 128")
    vL = 1
    a("v_lshrrev_b32 v2, 6, v0")
    a(f"v_and_b32 v{vL}, 63, v0")
    a(f"v_readfirstlane_b32 s{sW}, v2")
    if opt.get("codepf", 1):
        a("s_getpc_b64 s[50:51]")
        if opt.get("codepf", 1) == 1:
            a("s_lshr_b32 s4, s2, 3"); a("s_lshl_b32 s4, s4, 7")
            a("v_lshl_add_u32 v3, v2, 12, s4")
            a(f"v_lshl_add_u32 v3, v{vL}, 15, v3")
            a("v_min_u32 v3, CODE_BYTES, v3")
            a("s_mov_b64 exec, 3")
            a("global_load_dword v4, v3, s[50:51]")
            a("s_mov_b64 exec, -1")
        else:
            a("v_lshlrev_b32 v3, 7, v0")
            a("v_min_u32 v3, CODE_BYTES, v3")
            a("global_load_dword v4, v3, s[50:51]")
    a(f"s_and_b32 s{sG}, s2, 31")
    a(f"s_lshr_b32 s{sS}, s2, 5")
    a("v_mov_b32 v5, 0"); a("v_lshlrev_b32 v6, 2, v0"); a("v_and_b32 v6, 127, v6"); a(f"v_add_u32 v6, {L_CNT}, v6")
    a("ds_write_b32 v6, v5")
    FAST = opt.get("fast", 5)
    a(f"s_cmp_ge_u32 s{sW}, 4")
    if FAST & 1:
        a("s_cbranch_scc0 L_att"); a.lines.append("@@HPRE"); a("L_att:")
    else: a("s_cbranch_scc1 L_helper")
    NPF = 1 if opt.get("codepf", 1) else 0

    R = Regs(5)
    vT = R(4, 4); vDma = R(); vCnt = R(); vOne = R(); vPo = R(); vPv = R()
    vX0 = R(); vX1 = R(); vP = R(5)
    a(f"v_lshrrev_b32 v{vT}, 3, v{vL}")
    a(f"v_lshrrev_b32 v{vT+1}, 4, v{vL}")
    a(f"v_xor_b32 v{vT+1}, v{vT+1}, v{vL}")
    a(f"v_and_b32 v{vT+1}, 7, v{vT+1}")
    a(f"v_mul_u32_u24 v{vT}, 80, v{vT}")
    a(f"v_add_u32 v{vT}, v{vT}, v{vT+1}")
    a(f"v_lshlrev_b32 v{vX0}, 4, v{vT}")
    a(f"v_xor_b32 v{vX1}, 64, v{vX0}")
    a(f"v_add_u32 v{vX1}, 10240, v{vX1}")
    a(f"s_lshl_b32 s{sT}, s{sG}, 2"); a(f"s_add_u32 s{sT}, s{sT}, s{sW}"); a(f"s_mul_i32 s{sT2}, s{sT}, 20480")
    a(f"s_mul_i32 s{sT3}, s{sW}, 20480"); a(f"s_add_u32 s{sT3}, s{sT3}, {L_X}")
    a(f"v_lshlrev_b32 v{vDma}, 4, v{vL}")
    sI = sCh; sXo = sU0; sWo = sH
    a(f"s_lshr_b32 s{sI}, s{sG}, 3"); a(f"s_add_u32 s{sI}, s{sI}, s{sS}")
    if not opt.get("rot", 1): a(f"s_mov_b32 s{sI}, 0")
    for _ in range(2):
        a(f"s_sub_u32 s{sC}, s{sI}, 5"); a(f"s_cselect_b32 s{sI}, s{sI}, s{sC}")
    a(f"s_mul_i32 s{sT4}, s{sS}, 160")
    a(f"s_lshl_b32 s{sXo}, s{sI}, 8"); a(f"s_add_u32 s{sXo}, s{sXo}, s{sT2}"); a(f"s_add_u32 s{sC}, s{sT2}, 1280")
    a(f"s_mul_i32 s{sSlotN}, s{sW}, 6144"); a(f"s_add_u32 s{sSlotN}, s{sSlotN}, {L_XR}")
    if not FAST & 10: wpattern(vP, vL, vT, True)
    a("s_waitcnt lgkmcnt(0)")
    srd(a, sX, pX, 2048*1280)
    if not FAST & 10: srd(a, sWQ, pWQ, 640*1280)
    a(f"s_cmp_ge_u32 s{sS}, 2")
    if not FAST & 2: a("s_barrier")
    stamp("a")
    Lnokv = lab("nokv"); Lw1 = lab("w1")
    a(f"s_cbranch_scc1 {Lnokv}")
    def xpieces(js, soff):
        for j in js:
            a(f"buffer_load_dwordx4 v{vX0}, s[{sX}:{sX+3}], s{soff} offen offset:{128*j} lds")
            a("s_add_u32 m0, m0, 1024")
            a(f"buffer_load_dwordx4 v{vX1}, s[{sX}:{sX+3}], s{soff} offen offset:{128*j} lds")
            if j != js[-1]: a("s_add_u32 m0, m0, 896")
    NX0 = opt.get("nx0", 6)
    a(f"s_mov_b32 m0, s{sT3}")
    NXA = opt.get("nxa", 3)
    xpieces(list(range(NXA)), sT2)
    a(f"s_mov_b32 s{sSlotN}, s{sT3}")
    a(f"s_branch {Lw1}")
    a(f"{Lnokv}:")
    sXe = sC; sXr = sSlotN
    def gx(js):
        for j in js:
            a(f"s_add_u32 m0, s{sXr}, {2048*(j%3)}")
            xpieces([0], sXo)
            a(f"s_add_u32 s{sXo}, s{sXo}, 128"); a(f"s_cmp_eq_u32 s{sXo}, s{sXe}"); a(f"s_cselect_b32 s{sXo}, s{sT2}, s{sXo}")
    def gw(i):
        a(f"s_lshl_b32 s{sWo}, s{sI}, 2"); a(f"s_add_u32 s{sWo}, s{sWo}, s{sW}"); a(f"s_mul_i32 s{sWo}, s{sWo}, 40960"); a(f"s_add_u32 s{sWo}, s{sWo}, s{sT4}")
        if i == 0: a(f"s_mul_i32 m0, s{sW}, 5120")
        else: a(f"s_add_u32 m0, s{sT3}, {5120*(i-1)}")
        wkstep_dma(vP, sWQ, sWo)
        a(f"s_add_u32 s{sI}, s{sI}, 1"); a(f"s_cmp_eq_u32 s{sI}, 5"); a(f"s_cselect_b32 s{sI}, 0, s{sI}")
    gx([0, 1, 2])
    if opt.get("w0early", 0): gw(0)
    a(f"{Lw1}:")
    if FAST & 10:
        assert not opt.get("w0early", 0)
        if FAST & 2: a("s_barrier")
        wpattern(vP, vL, vT, True); srd(a, sWQ, pWQ, 640*1280)
    a(f"s_load_dword s{sTag}, s[{pWS}:{pWS+1}], {WS_TAG}")
    srd(a, sWS, pWS, WS_SIZE)
    vXr = R(2); vAB = R(2); vE = R(2); vAB2 = R(2); vE2 = R(2)
    a(f"v_and_b32 v{vT}, 15, v{vL}")
    a(f"v_lshrrev_b32 v{vT+1}, 4, v{vL}")
    a(f"v_lshrrev_b32 v{vT+2}, 1, v{vT}")
    a(f"v_xor_b32 v{vT+2}, v{vT+2}, v{vT+1}")
    a(f"v_lshlrev_b32 v{vT+2}, 4, v{vT+2}")
    a(f"v_lshlrev_b32 v{vT}, 7, v{vT}")
    a(f"v_add3_u32 v{vXr}, v{vT}, v{vT+2}, s{sSlotN}")
    a(f"v_xor_b32 v{vXr+1}, 64, v{vXr}")
    a(f"v_bfe_u32 v{vT}, v{vL}, 2, 2")
    a(f"v_lshl_add_u32 v{vT}, v{vT+1}, 3, v{vT}")
    vKM = 19; vKE = 25; assert vP == 20 and vXr == 26
    a(f"v_mul_u32_u24 v{vT+2}, 40, v{vT}")
    a(f"v_add_u32 v{vKE}, {L_WK+32}, v{vT+2}")
    a(f"v_and_b32 v{vT+3}, 3, v{vL}")
    a(f"v_lshl_add_u32 v{vT+2}, v{vT+3}, 3, v{vT+2}")
    a(f"v_add_u32 v{vKM}, {L_WK}, v{vT+2}")
    a(f"v_and_b32 v{vT+2}, 1, v{vT+1}")
    a(f"v_lshl_add_u32 v{vT}, v{vT+2}, 2, v{vT}")
    a(f"v_xor_b32 v{vT+2}, 4, v{vT}")
    a(f"v_mul_u32_u24 v{vT}, 160, v{vT}")
    a(f"v_mul_u32_u24 v{vT+2}, 160, v{vT+2}")
    a(f"v_mul_u32_u24 v{vT+3}, 40, v{vT+3}")
    a(f"v_add3_u32 v{vE2}, v{vT}, v{vT+3}, 32"); a(f"v_add3_u32 v{vE2+1}, v{vT+2}, v{vT+3}, 32")
    a(f"v_and_b32 v{vT+3}, 1, v{vL}")
    a(f"v_mul_u32_u24 v{vT+3}, 40, v{vT+3}")
    a(f"v_and_b32 v{vT+1}, 2, v{vL}")
    a(f"v_lshl_add_u32 v{vT+3}, v{vT+1}, 3, v{vT+3}")
    a(f"v_add_u32 v{vAB2}, v{vT}, v{vT+3}"); a(f"v_add_u32 v{vAB2+1}, v{vT+2}, v{vT+3}")
    for x, y in ((vAB2, vAB), (vAB2+1, vAB+1), (vE2, vE), (vE2+1, vE+1)):
        a(f"v_add_u32 v{y}, 51200, v{x}")
    vSig = 7
    a(f"v_mov_b32 v{vCnt}, {L_CNT}"); a(f"v_mov_b32 v{vOne}, 1")
    a(f"v_min_u32 v{vSig}, 1, v{vL}"); a(f"v_mul_u32_u24 v{vSig}, {LDS_TOTAL-L_CNT}, v{vSig}"); a(f"v_add_u32 v{vSig}, {L_CNT}, v{vSig}")
    a(f"s_and_b32 s{sT}, s{sG}, 28"); a(f"s_add_u32 s{sT}, s{sT}, s{sW}")
    FE = opt.get("fearly", 2)
    if FE == 3:
        a(f"v_bfe_u32 v{vT+1}, v{vL}, 3, 1"); a(f"v_lshl_add_u32 v{vT+1}, v{vT+1}, 2, s{sT}"); a(f"v_and_b32 v{vT+1}, 31, v{vT+1}")
    else: a(f"v_mov_b32 v{vT+1}, s{sT}")
    a(f"v_and_b32 v{vT+2}, 4, v{vL}"); a(f"v_lshl_add_u32 v{vT+1}, v{vT+2}, 3, v{vT+1}")
    a(f"v_lshlrev_b32 v{vT+1}, 5, v{vT+1}"); a(f"v_and_b32 v{vT+2}, 3, v{vL}"); a(f"v_add_u32 v{vT+1}, v{vT+1}, v{vT+2}")
    a(f"v_lshlrev_b32 v{vPo}, 2, v{vT+1}"); a(f"v_add_u32 v{vPo}, {WS_FKV}, v{vPo}")
    def tagfix(): a(f"s_mul_i32 s{sTag}, s{sTag}, 1664525"); a(f"s_add_u32 s{sTag}, s{sTag}, 1013904223")
    def lsig(k):
        a(f"ds_add_u32 v{vSig}, v{vOne} offset:{4*k}")
    def lwait(k, n=4):
        L = lab("ls"); D = lab("lsd")
        a(f"s_mov_b32 s{sBound}, {SPIN*4}")
        a(f"{L}:")
        a(f"ds_read_b32 v{vT}, v{vCnt} offset:{4*k}")
        a(f"s_sub_u32 s{sBound}, s{sBound}, 1"); a(f"s_cbranch_scc1 {D}")
        a("s_waitcnt lgkmcnt(0)")
        a(f"v_cmp_gt_u32 vcc, {n}, v{vT}")
        a(f"s_cbranch_vccnz {L}")
        a(f"{D}:")
    XF = R(80, 4); ACC = R(20, 4); WF = [R(20, 4), R(20, 4), R(20, 4)]
    assert R.p == 196 and ACC == 116
    RA = Regs(20)
    NB = 4
    Q1 = [RA(4, 4) for _ in range(2)]; Q2a = [RA(2) for _ in range(2)]; Q2b = [RA(2) for _ in range(2)]
    C = [RA(16, 4) for _ in range(2)]
    K1 = [RA(4, 4) for _ in range(2)]; K2 = [RA(4, 4) for _ in range(2)]
    V0 = [RA(4, 4) for _ in range(2)]; V1 = [RA(4, 4), 236]
    assert RA.p <= ACC
    S = [140+16*i for i in range(NB)]; O = [204, 220]
    vK0, vV0, vK, vV, vIdx = range(240, 245); RA.hi = 245
    vLow = 245
    a(f"v_mov_b32 v{vLow}, 0x30800000")
    a(f"v_mov_b32 v{vIdx}, 0xdddd")
    a(f"v_mov_b32 v{vK0}, v{vDma}")
    a(f"v_and_b32 v{vT+2}, 31, v{vL}"); a(f"v_min_u32 v{vT+2}, 20, v{vT+2}"); a(f"v_lshlrev_b32 v{vT+2}, 4, v{vT+2}")
    a(f"v_lshrrev_b32 v{vT+3}, 5, v{vL}"); a(f"v_mul_u32_u24 v{vT+3}, 336, v{vT+3}")
    a(f"v_add_u32 v{vV0}, v{vT+2}, v{vT+3}"); a(f"v_add_u32 v{vV0}, 5120, v{vV0}")
    a("s_mov_b32 exec_lo, 0xeef00000"); a("s_mov_b32 exec_hi, 0xeef00000")
    a(f"v_mov_b32 v{vV0}, {LDS_TOTAL}")
    a("s_mov_b64 exec, -1")
    a(f"v_mov_b32 v{vK}, v{vK0}"); a(f"v_mov_b32 v{vV}, v{vV0}")
    for i in range(196, 240): a(f"v_mov_b32 v{i}, 0")
    import struct
    cbits = struct.unpack("<I", struct.pack("<f", (20**-0.5)*1.4426950408889634))[0]
    if opt.get("qprio", 1): a("s_setprio 2")
    def xrd(k, off): return f"ds_read_b128 {v(XF+4*k,4)}, v{vXr+(k&1)} offset:{off}"
    class Q:
        def __init__(self, name, cap_): self.q = []; self.name = name; self.cap = cap_
        def add(self, tag, n=1): self.q += [tag]*n
        def wait(self, *tags):
            idx = [i for i, t in enumerate(self.q) if t in tags]
            if not idx: return
            n = len(self.q) - 1 - max(idx)
            a(f"s_waitcnt {self.name}({min(n, self.cap)})")
            self.q = self.q[len(self.q)-min(n, self.cap):]
    def xnext(j, DS=None):
        a(f"s_waitcnt vmcnt({2*(min(10, j+NX0)-j-1)})")
        a(xrd(2*j, 2048*j)); a(xrd(2*j+1, 2048*j))
        if DS: DS.add(("x", j), 2)
        if j+NX0 < 10:
            a(f"s_add_u32 m0, s{sT3}, {1920*(j+NX0)}")
            xpieces([j+NX0], sXo)
    XL = opt.get("xl", 0)
    def xstream(mm, post, DS):
        if not XL: xnext(0, DS)
        for j in range(1, 11):
            if j-1+max(XL, 1) < 10: xnext(j-1+max(XL, 1), DS)
            DS.wait(("x", j-1), ("k", 2*j-2), ("k", 2*j-1))
            mm(2*j-2); mm(2*j-1)
            post(j)
    def qrd(addr, buf):
        hi = addr >= 51200
        off = addr - (51200 if hi else 0)
        r = []
        if addr >= 102400:
            off = addr - 102400
            return [f"ds_read_b64_tr_b16 {v(buf+4*t5+2*t,2)}, v{vP+(0 if t5 < 4 else 2)+t} offset:{off+(80*(t5>>1)+8*(t5&1) if t5 < 4 else 0)}" for t5 in range(5) for t in range(2)]
        for t5 in range(5):
            for t in range(2):
                if t5 < 4: r.append(f"ds_read_b64_tr_b16 {v(buf+4*t5+2*t,2)}, v{(vAB if hi else vAB2)+t} offset:{off+80*(t5>>1)+8*(t5&1)}")
                else: r.append(f"ds_read_b64_tr_b16 {v(buf+16+2*t,2)}, v{(vE if hi else vE2)+t} offset:{off}")
        return r
    def cap(fn):
        keep = a.lines; a.lines = []
        fn()
        got = a.lines; a.lines = keep
        gr = [[]]
        for l in got:
            gr[-1].append(l)
            if "exec_hi, -1" in l and len(gr) > 1 and len(gr[-1]) == 1: gr[-2].append(gr[-1].pop())
            if "buffer_load" in l: gr.append([])
        if len(gr) > 1:
            t_ = gr.pop(); gr[-1] += t_
        return gr
    spins = []
    def qpipe(ks, VM, dma, hook):
        DS = Q("lgkmcnt", 15)
        for n in range(2):
            for x in qrd(ks[n][1], WF[n]): a(x)
            DS.add(("w", n), 10)
        for n, (k, _) in enumerate(ks):
            buf = WF[n % 3]
            nx = qrd(ks[n+2][1], WF[(n+2) % 3]) if n+2 < len(ks) else []
            hook(n, DS)
            DS.wait(("w", n), ("x", k//2))
            chk = n % 4 == 2 and nx
            per = [0, 0, 4, 3, 3] if chk else [2]*5
            for t5 in range(5):
                if not opt.get("noq"): a(f"v_mfma_f32_16x16x32_bf16 {v(ACC+4*t5,4)}, {v(buf+4*t5,4)}, {v(XF+4*k,4)}, {'0' if n==0 else v(ACC+4*t5,4)}")
                if chk and t5 == 2:
                    Ls = lab("spin"); Lb = lab("back")
                    DS.wait("chk")
                    a(f"v_cmp_gt_u32 vcc, 4, v{vT}"); a(f"s_cbranch_vccnz {Ls}"); a(f"{Lb}:")
                    spins.append((Ls, Lb, CW[n//4+1]))
                for x in nx[sum(per[:t5]):sum(per[:t5+1])]: a(x); DS.add(("w", n+2))
                for tag, dep, lines in dma.get(5*n+t5, []):
                    if dep is not None: DS.wait(dep)
                    for x in lines: a(x)
                    VM.add(tag)
            if n % 4 == 1 and n+3 < len(ks):
                a(f"ds_read_b32 v{vT}, v{vCnt} offset:{4*CW[n//4+1]}"); DS.add("chk")
    def pload(): a(f"buffer_load_dword v{vPv}, v{vPo}, s[{sWS}:{sWS+3}], 0 offen sc1")
    def gate():
        a(f"v_cmp_ne_u32 vcc, s{sTag}, v{vPv}")
        a(f"s_mov_b64 s[{sA}:{sA+1}], s[{sWS}:{sWS+1}]"); a(f"s_mov_b32 s{sA+3}, s{sWS+3}")
        a("s_cmp_eq_u64 vcc, 0")
        a(f"s_cselect_b32 s{sA+2}, s{sWS+2}, 0"); a(f"s_cselect_b32 s{sSlotD}, 1, 0")
    def own_dma(slot, sWS=sWS):
        a(f"s_lshr_b32 s{sGo}, s{sG}, 2"); a(f"s_mul_i32 s{sGo}, s{sGo}, {CHUNK}"); a(f"s_add_u32 s{sGo}, s{sGo}, {WS_KV}")
        a(f"s_lshr_b32 s{sT}, s{sW}, 1"); a(f"s_mul_i32 s{sT}, s{sT}, {GRP}"); a(f"s_and_b32 s{sT2}, s{sW}, 1")
        for mul, add, parts in ((2048, 0, [(0, None), (1024, None)]), (512, 4096, [(0, (-1, 0))]), (2688, 5120, [(0, None), (1024, None), (2048, (-1, 0xff))])):
            a(f"s_mul_i32 s{sT5}, s{sT2}, {mul}"); a(f"s_add_u32 s{sT5}, s{sT5}, s{sT}")
            a(f"s_add_u32 m0, s{sT5}, {slot+add}")
            a(f"s_add_u32 s{sT5}, s{sT5}, s{sGo}")
            if add: a(f"s_add_u32 s{sT5}, s{sT5}, {add}")
            for off, ex in parts:
                if ex: a(f"s_mov_b32 exec_hi, {ex[1]}")
                a(f"buffer_load_dwordx4 v{vDma}, s[{sWS}:{sWS+3}], s{sT5} offen offset:{off} sc1 lds")
                if ex: a("s_mov_b32 exec_hi, -1")
    vO8, vWm, vWl = 246, 247, 248
    def tail_addr():
        a(f"v_bfe_u32 v{vT}, v{vL}, 2, 2")
        a(f"v_bfe_u32 v{vT+1}, v{vL}, 4, 1")
        a(f"v_mul_u32_u24 v{vT+1}, 20, v{vT+1}"); a(f"v_add_u32 v{vT}, v{vT}, v{vT+1}")
        a(f"v_lshrrev_b32 v{vT+1}, 5, v{vL}")
        a(f"v_mul_u32_u24 v{vT+2}, 40, v{vT+1}"); a(f"v_add3_u32 v{vT+2}, v{vT+2}, v{vT}, 16")
        a(f"v_lshl_add_u32 v{vT}, v{vT+1}, 2, v{vT}")
        a(f"v_and_b32 v{vT+1}, 3, v{vL}"); a(f"v_mul_u32_u24 v{vT+1}, 40, v{vT+1}"); a(f"v_add_u32 v{vT+1}, {L_WO+51200}, v{vT+1}")
        a(f"v_mul_u32_u24 v{vT}, 160, v{vT}"); a(f"v_add_u32 v{vWm}, v{vT}, v{vT+1}")
        a(f"v_mul_u32_u24 v{vT+2}, 160, v{vT+2}"); a(f"v_add_u32 v{vWl}, v{vT+2}, v{vT+1}")
        a(f"v_lshlrev_b32 v{vO8}, 3, v{vL}")
    CW = [1, 2, 5, 6, 7]
    a(f"s_mov_b32 s{sSlotD}, 0")
    Lq = lab("qonly"); Lj = lab("join")
    a(f"s_cmp_ge_u32 s{sS}, 2")
    a(f"s_cbranch_scc1 {Lq}")
    KW = ACC + 12; NKW = (196 - KW)//8
    def kvrd(k):
        b = KW + 8*(k % NKW)
        return [f"ds_read_b64_tr_b16 {v(b+2*t,2)}, v{vKM} offset:{1280*k+160*t}" for t in range(2)] + \
               [f"ds_read_b64_tr_b16 {v(b+4+2*t,2)}, v{vKE} offset:{1280*k+160*t}" for t in range(2)]
    a(f"s_mov_b32 s{sXo}, s{sT2}")
    a(f"s_add_u32 m0, s{sT3}, {1920*NXA}")
    xpieces(list(range(NXA, NX0)), sXo)
    a(f"s_lshr_b32 s{sT}, s{sG}, 2"); a(f"s_mul_i32 s{sT}, s{sT}, {CHUNK}")
    a(f"s_bfe_u32 s{sT2}, s{sG}, 0x10001"); a(f"s_mul_i32 s{sT2}, s{sT2}, {GRP}")
    a(f"s_add_u32 s{sT}, s{sT}, s{sT2}"); a(f"s_add_u32 s{sGo}, s{sT}, {WS_KV}")
    a(f"s_and_b32 s{sT}, s{sG}, 1"); a(f"s_lshl_b32 s{sT}, s{sT}, 1"); a(f"s_lshr_b32 s{sT2}, s{sW}, 1"); a(f"s_add_u32 s{sC}, s{sT}, s{sT2}")
    a(f"s_and_b32 s{sT5}, s{sW}, 1")
    tail_addr()
    if opt.get("xpre", 0):
        for j in range(NX0, 10):
            a(f"s_waitcnt vmcnt({2*(NX0-1)})")
            a(f"s_add_u32 m0, s{sT3}, {1920*j}")
            xpieces([j], sXo)
        NX0 = 10
    for j in range(XL): xnext(j)
    lwait(0)
    tagfix()
    stamp("a")
    NPRE = opt.get("npre", 4)
    for k in range(NPRE):
        for x in kvrd(k): a(x)
    def wsig():
        a(f"s_lshl_b32 s{sH}, s{sW}, 2"); a(f"v_add_u32 v{vT}, s{sH}, v{vCnt}")
        a("s_mov_b64 exec, 1"); a(f"ds_add_u32 v{vT}, v{vOne} offset:32"); a("s_mov_b64 exec, -1")
    def kvproj(isK):
        D1 = ACC; D2 = ACC+4
        DS = Q("lgkmcnt", 15)
        for k in range(NPRE): DS.add(("k", k), 4)
        def mm(k):
            b = KW + 8*(k % NKW)
            nx = kvrd(k+NPRE) if k+NPRE < 20 else []
            for D, o in ((D1, 0), (D2, 4)):
                A_, B_ = v(b+o,4), v(XF+4*k,4)
                if not isK: A_, B_ = B_, A_
                a(f"v_mfma_f32_16x16x32_bf16 {v(D,4)}, {A_}, {B_}, {'0' if k==0 else v(D,4)}")
                for x in nx[o//2:o//2+2]: a(x); DS.add(("k", k+NPRE))
        def post(j):
            if j == opt.get("kvt", -1): wsig(); DS.add("sig")
        xstream(mm, post, DS)
    LV = lab("isv"); LKd = lab("kvdone")
    a(f"s_cmp_eq_u32 s{sS}, 1"); a(f"s_cbranch_scc1 {LV}")
    def pack_swap():
        D1 = ACC; D2 = ACC+4
        a(f"v_cvt_pk_bf16_f32 v{ACC+8}, v{D1}, v{D1+1}"); a(f"v_cvt_pk_bf16_f32 v{ACC+9}, v{D1+2}, v{D1+3}")
        a(f"v_cvt_pk_bf16_f32 v{ACC+10}, v{D2}, v{D2+1}"); a(f"v_cvt_pk_bf16_f32 v{ACC+11}, v{D2+2}, v{D2+3}")
        a(f"v_permlane16_swap_b32 v{ACC+8}, v{ACC+10}")
        a(f"v_permlane16_swap_b32 v{ACC+9}, v{ACC+11}")
    a(f"v_and_b32 v{vT+2}, 15, v{vL}"); a(f"v_lshlrev_b32 v{vT+2}, 4, v{vT+2}")
    a(f"v_and_b32 v{vT+3}, 32, v{vL}"); a(f"v_lshl_add_u32 v{vT+3}, v{vT+3}, 4, v{vT+2}")
    a(f"s_lshl_b32 s{sT5}, s{sT5}, 8"); a(f"s_add_u32 s{sGo}, s{sGo}, s{sT5}")
    a(f"s_lshl_b32 s{sT}, s{sC}, 10"); a(f"s_add_u32 s{sT}, s{sT}, s{sGo}")
    a(f"s_lshr_b32 s{sT2}, s{sC}, 1"); a(f"s_lshl_b32 s{sT2}, s{sT2}, 9"); a(f"s_add_u32 s{sT2}, s{sT2}, s{sGo}")
    a(f"s_and_b32 s{sT5}, s{sC}, 1"); a(f"s_lshl_b32 s{sT5}, s{sT5}, 3"); a(f"s_add_u32 s{sT2}, s{sT2}, s{sT5}"); a(f"s_add_u32 s{sT2}, s{sT2}, 4096")
    kvproj(True)
    for i in range(8): a(f"v_mul_f32 v{ACC+i}, {cbits:#x}, v{ACC+i}")
    pack_swap()
    a("s_mov_b32 exec_lo, 0xffff"); a("s_mov_b32 exec_hi, 0xffff")
    a(f"buffer_store_dwordx4 {v(ACC+8,4)}, v{vT+3}, s[{sWS}:{sWS+3}], s{sT} offen sc1")
    a("s_mov_b32 exec_lo, 0xffff0000"); a("s_mov_b32 exec_hi, 0")
    a(f"buffer_store_dwordx2 {v(ACC+8,2)}, v{vT+2}, s[{sWS}:{sWS+3}], s{sT2} offen sc1")
    a(f"s_branch {LKd}")
    a(f"{LV}:")
    a(f"v_and_b32 v{vT+2}, 31, v{vL}"); a(f"v_lshlrev_b32 v{vT+2}, 4, v{vT+2}")
    a(f"v_lshrrev_b32 v{vT+3}, 5, v{vL}"); a(f"v_mul_u32_u24 v{vT+3}, 336, v{vT+3}"); a(f"v_add_u32 v{vT+3}, v{vT+3}, v{vT+2}")
    a(f"s_mul_i32 s{sT5}, s{sT5}, 672"); a(f"s_mul_i32 s{sT}, s{sC}, 1344"); a(f"s_add_u32 s{sT}, s{sT}, s{sT5}")
    a(f"s_add_u32 s{sT}, s{sT}, s{sGo}"); a(f"s_add_u32 s{sT}, s{sT}, 5120")
    kvproj(False)
    pack_swap()
    a("s_mov_b32 exec_lo, 0x100000"); a("s_mov_b32 exec_hi, 0x100000")
    for i in range(4): a(f"v_mov_b32 v{ACC+8+i}, 0x3f803f80")
    a("s_mov_b32 exec_lo, 0x1fffff"); a("s_mov_b32 exec_hi, 0x1fffff")
    a(f"buffer_store_dwordx4 {v(ACC+8,4)}, v{vT+3}, s[{sWS}:{sWS+3}], s{sT} offen sc1")
    a(f"{LKd}:")
    a("s_mov_b64 exec, -1")
    stamp("a")
    wsig()
    a("s_waitcnt vmcnt(0)")
    publish(vT, WS_FKV, sW)
    stamp("a")
    KVS = opt.get("kvs", 12)
    def kvslots(dma):
        for i_, gr in enumerate(cap(lambda: own_dma(0, sA))): dma.setdefault(5*KVS+3+2*i_, []).append(("kv", None, gr))
    def kvdone(DS):
        Lz = lab("z")
        DS.wait(("w", 19))
        a("s_waitcnt vmcnt(0)")
        a(f"s_cmp_eq_u32 s{sSlotD}, 0"); a(f"s_cbranch_scc1 {Lz}"); lsig(4); a(f"{Lz}:")
    def kvhook(n, DS):
        if n == 4: lsig(12); DS.add("sig")
        if n == 8: pload()
        if n == 12:
            stamp("a")
            lwait(12)
        if n == KVS: a("s_waitcnt vmcnt(0)"); gate()
        if n == 19: kvdone(DS)
    KV2 = opt.get("kv2", 0); L_F = 132224
    if KV2:
        for i, x in enumerate((vAB, vAB+1, vE, vE+1)): a(f"v_add_u32 v{vP+i}, 51200, v{x}")
    lwait(CW[0])
    dma = {}; kvslots(dma)
    qpipe([(16+w_, 5120*w_) if i == 0 else (4*w_, L_F + 5120*w_) if i == 1 and KV2 else (4*w_+i-1, L_X + 5120*(4*w_+i-1)) for i in range(5) for w_ in range(4)], Q("vmcnt", 63), dma, kvhook)
    a(f"s_branch {Lj}")
    a(f"{Lq}:")
    if probe or prof and not opt.get("tailprof"): np_["a"] -= 4
    def xget(js):
        for j in js:
            for t in range(2): a(xrd(2*j+t, 2048*(j%3)))
    VM = Q("vmcnt", 63)
    VM.add("x012", 6); VM.add("W0", 5)
    if not opt.get("w0early", 0): gw(0)
    gw(1); VM.add("W1", 5)
    tail_addr()
    VM.wait("x012"); xget([0, 1, 2]); a("s_waitcnt lgkmcnt(0)")
    stamp("a")
    tagfix()
    gx([3, 4, 5]); VM.add("x345", 6)
    VM.wait("W0"); lsig(CW[0])
    dma = {}
    pos = [0]; DP = opt.get("dp", 2)
    def put(tag, fn, start=0, dep=None):
        pos[0] = max(pos[0], start)
        for gr in cap(fn):
            dma.setdefault(pos[0], []).append((tag, dep, gr)); pos[0] += DP
    XG2 = opt.get("xg2", 6); XG1 = opt.get("xg1", 1)
    put("W2", lambda: gw(2))
    if opt.get("w3f"): put("W3", lambda: gw(3))
    put("x678", lambda: gx([6, 7, 8]), 5*XG1+3, ("x", 5))
    if not opt.get("w3f"): put("W3", lambda: gw(3))
    put("x9", lambda: gx([9]), 5*XG2+3, ("x", 6)); put("W4", lambda: gw(4)); put("pl", pload, 5*opt.get("plstep", 8))
    kvslots(dma)
    def qhook(n, DS):
        def get(js):
            xget(js)
            for j in js: DS.add(("x", j), 2)
        later = {t for sl, l in dma.items() if sl >= 5*n for t, _, _ in l}
        assert not (n == XG2 and "x678" in later) and not (n == 13 and "x9" in later) and not (n % 4 == 1 and f"W{n//4+1}" in later) and not (n == KVS and "pl" in later) and not (n == 19 and later)
        if n == XG1: VM.wait("x345"); get([3, 4, 5])
        if n == XG2: VM.wait("x678"); get([6, 7, 8])
        if n == 13: VM.wait("x9"); get([9])
        if n % 4 == 1 and n < 16:
            VM.wait(f"W{n//4+1}"); lsig(CW[n//4+1]); DS.add("sig")
        if n in (4, 12, 16): stamp("a")
        if n == KVS: VM.wait("pl"); gate()
        if n == 15: DS.wait(("x", 9)); lsig(13); DS.add("sig")
        if n == 19: kvdone(DS)
    lwait(CW[0])
    qpipe([(4*i+w_, 5120*w_ if i == 0 else L_X + 20480*w_ + 5120*(i-1)) for i in range(5) for w_ in range(4)], VM, dma, qhook)
    a(f"{Lj}:")
    stamp("a")
    Lp4 = lab("p4")
    a(f"s_cmp_eq_u32 s{sSlotD}, 1"); a(f"s_cbranch_scc1 {Lp4}")
    poll(vPv, vPo, "0")
    own_dma(0)
    a("s_waitcnt vmcnt(0)")
    lsig(4)
    a(f"{Lp4}:")
    stamp("a")
    a("s_setprio 0")
    lwait(4, 8)
    a("s_setprio 2")
    a(f"ds_read_b128 {v(K1[0],4)}, v{vK}"); a(f"ds_read_b128 {v(K2[0],4)}, v{vK} offset:4096")
    a(f"ds_read_b128 {v(V0[0],4)}, v{vV}"); a(f"ds_read_b128 {v(V1[0],4)}, v{vV} offset:672")
    for j in range(2):
        for i in range(4): a(f"v_cvt_pk_bf16_f32 v{Q1[j]+i}, v{ACC+8*j+2*i}, v{ACC+8*j+2*i+1}")
    B2 = opt.get("b2", 1)
    for i in range(2):
        a(f"v_cvt_pk_bf16_f32 v{Q2a[0]+i}, v{ACC+16+2*i}, v{ACC+17+2*i}")
        if B2: continue
        a(f"v_mov_b32 v{Q2a[1]+i}, 0"); a(f"v_mov_b32 v{Q2b[0]+i}, 0")
        a(f"v_mov_b32 v{Q2b[1]+i}, v{Q2a[0]+i}")
    for i in range(0 if B2 else 2):
        a(f"v_permlane32_swap_b32 v{Q2a[0]+i}, v{Q2a[1]+i}")
        a(f"v_permlane32_swap_b32 v{Q2b[0]+i}, v{Q2b[1]+i}")
    a(f"s_lshl_b32 s{sT}, s{sG}, 7"); a(f"s_add_u32 s{sT}, s{sT}, {WS_FO}")
    a(f"v_and_b32 v{vPo}, 7, v{vL}"); a(f"v_lshlrev_b32 v{vPo}, 12, v{vPo}"); a(f"v_add_u32 v{vPo}, s{sT}, v{vPo}")
    phase[0] = "tail"
    stamp("a")
    TPC = 8
    def rdK1(T):
        Tl = T % TPC
        return f"ds_read_b128 {v(K1[T%2],4)}, v{vK} offset:{(Tl//4)*GRP + (Tl%4)*1024}"
    def rdK2(T):
        Tl = T % TPC
        return f"ds_read_b128 {v(K2[(T//4)%2],4)}, v{vK} offset:{(Tl//4)*GRP+4096}"
    def rdV(T, sidx):
        Tl = T % TPC
        buf = (V0 if sidx == 0 else V1)[T%2]
        return f"ds_read_b128 {v(buf,4)}, v{vV} offset:{(Tl//4)*GRP+(Tl%4)*1344+sidx*672}"
    def qkA(n, cz=False):
        T, j = divmod(n, 2); t4 = T % 4
        q = Q2a[j] if t4 < 2 else Q2b[j]
        return f"v_mfma_f32_32x32x8_bf16 {v(S[n%NB],16)}, {v(K2[(T//4)%2]+2*(t4&1),2)}, {v(q,2)}, " + ("0" if cz else v(C[j],16))
    def qk2(T, c="0"):
        t4 = T % 4
        return f"v_mfma_f32_32x32x4_2b_bf16 {v(S[2*T%NB],32)}, {v(K2[(T//4)%2]+2*(t4&1),2)}, {v(Q2a[0],2)}, {c} cbsz:1 abid:{t4>>1}"
    def qkB(n):
        T, j = divmod(n, 2)
        return f"v_mfma_f32_32x32x16_bf16 {v(S[n%NB],16)}, {v(K1[T%2],4)}, {v(Q1[j],4)}, {v(S[n%NB],16)}"
    def pv(n, sidx):
        T, j = divmod(n, 2)
        buf = (V0 if sidx == 0 else V1)[T%2]
        return f"v_smfmac_f32_32x32x32_bf16 {v(O[j],16)}, {v(buf,4)}, {v(S[n%NB]+8*sidx,8)}, v{vIdx}"
    def rowmax(Sj, dst, init=None):
        if init is None:
            a(f"v_max3_f32 v{dst}, v{Sj}, v{Sj+1}, v{Sj+2}")
            for i in range(3, 15, 2): a(f"v_max3_f32 v{dst}, v{dst}, v{Sj+i}, v{Sj+i+1}")
            a(f"v_max_f32 v{dst}, v{dst}, v{Sj+15}")
        else:
            for i in range(0, 16, 2): a(f"v_max3_f32 v{dst}, v{dst}, v{Sj+i}, v{Sj+i+1}")
    def setC(j, m, t2):
        a(f"v_mov_b32 v{t2}, v{m}")
        a(f"v_permlane32_swap_b32 v{m}, v{t2}")
        a(f"v_max_f32 v{m}, v{m}, v{t2}")
        for i in range(16): a(f"v_sub_f32 v{C[j]+i}, 0, v{m}")
    vPr = 250
    a("s_waitcnt lgkmcnt(2)")
    M0 = opt.get("m0", 0)
    if M0:
        for j in range(2):
            a(qkA(j, True)); a(qkB(j))
        for j in range(2):
            rowmax(S[j], vT)
            setC(j, vT, vT+1)
            if j == 0:
                for i in range(16): a(f"v_add_f32 v{S[0]+i}, v{S[0]+i}, v{C[0]+i}")
    elif B2:
        a(qk2(0)); a(qkB(0))
    else:
        a(qkA(0, True)); a(qkB(0))
    a(f"s_mov_b32 s{sC}, 0")
    a(f"s_mov_b32 s{sSlotN}, {CHUNK}")
    a("s_waitcnt lgkmcnt(0)")
    if not M0: a("s_nop 9")
    if prof: a("s_memtime s[8:9]"); a("s_memrealtime s[10:11]")
    a(".p2align 6")
    a("L_loop:")
    UNR = opt.get("unr", 2)
    def shift(x, u):
        pre, off = x.rsplit("offset:", 1)
        return f"{pre}offset:{int(off) + (CHUNK if UNR == 2 and u & 1 else 0)}"
    for nn_ in range(16*UNR):
        u, n = divmod(nn_, 16)
        T, j = divmod(n, 2)
        us = u + (T+1)//8
        ins = {i: [] for i in range(17)}
        if B2:
            assert not M0
            PB = opt.get("pb", [1, 5, 8, 0, 4, 8, 13])
            if j == 0:
                ins[PB[0]].append(pv(n-1, 1)); ins[PB[1]].append(qkB(n+1))
                if n == 14: ins[PB[2]].append("s_waitcnt lgkmcnt(2)")
                ins[PB[2]].append(qk2(T+1))
                RP = opt.get("rp", [0, 0, 0, 12])
                assert max(RP[:2]) < PB[2]
                ins[RP[0]].append(shift(rdK1(T+1), us)); ins[RP[1]].append(shift(rdV(T+1,0), us))
                if T == 2: ins[RP[0]].append(shift(rdK2(4), u))
                if RP[3] < 16: ins[RP[3]].append("s_waitcnt lgkmcnt(0)")
            else:
                ins[PB[3]].append(pv(n-1, 0)); ins[PB[4]].append(qkB(n+1)); ins[PB[5]].append(pv(n-1, 1)); ins[PB[6]].append(pv(n, 0))
                if RP[3] >= 16:
                    assert RP[3]-16 < PB[4] and RP[3]-16 <= RP[2]
                    ins[RP[3]-16].append("s_waitcnt lgkmcnt(0)")
                ins[RP[2]].append(shift(rdV(T+1,1), us))
        else:
            POS = opt.get("pos", [0,4,8,12])
            ins[POS[0]].append(qkA(n+1, not M0))
            ins[POS[1]].append(qkB(n+1))
            ins[POS[2]].append(pv(n-1, 1))
            ins[POS[3]].append(pv(n, 0))
            if j == 0:
                ins[0] += [shift(rdK1(T+1), us), shift(rdV(T+1,0), us)]
                if (T+1) % 4 == 0: ins[0].append(shift(rdK2(T+1), us))
                ins[12].append("s_waitcnt lgkmcnt(0)")
            else:
                ins[0].append(shift(rdV(T+1,1), us))
        if n == 13:
            ins[12] += ["s_waitcnt lgkmcnt(0)"] + (["s_memrealtime s[98:99]"] if prof else []) + ["s_barrier"] + (["s_memrealtime s[100:101]"] if prof else [])
            if UNR == 1: ins[13] += [f"v_add_u32 v{vK}, s{sSlotN}, v{vK0}", f"v_add_u32 v{vV}, s{sSlotN}, v{vV0}"]
            if B2: ins[13].append(shift(rdK2(8), u+1))
        if n == opt.get("pln", 12) and opt.get("ne", 0): ins[6].append(f"buffer_load_dword v{vPv}, v{vPo}, s[{sWS}:{sWS+3}], 0 offen sc1")
        if n == opt.get("pl2", -1) and u == UNR-1: ins[8].append(f"buffer_load_dword v{vPv}, v{vPo}, s[{sWS}:{sWS+3}], 0 offen sc1")
        if n == 14 and UNR == 1:
            ins[8] += [f"s_xor_b32 s{sSlotN}, s{sSlotN}, {CHUNK}"]
        if n == 15:
            if prof: ins[4] += [f"s_add_u32 m0, s{sC}, {u}", f"v_writelane_b32 v{vPr}, s98, m0", f"v_writelane_b32 v{vPr+1}, s100, m0"]
            if u == UNR-1: ins[9] += [f"s_add_u32 s{sC}, s{sC}, {UNR}", f"s_cmp_lt_u32 s{sC}, 8"]
        for i in range(16):
            for x in ins[i]:
                if x: a(x)
            a(f"v_exp_f32 v{S[n%NB]+i}, v{S[n%NB]+i}")
    a("s_cbranch_scc1 L_loop")
    a(pv(15, 1))
    if prof:
        a("s_memtime s[12:13]"); a("s_memrealtime s[14:15]"); a("s_waitcnt lgkmcnt(0)")
        a("s_sub_u32 s12, s12, s8"); a("s_sub_u32 s14, s14, s10")
        a(f"v_writelane_b32 v{vPr}, s12, 8"); a(f"v_writelane_b32 v{vPr}, s14, 9")
    stamp("a")
    a("L_slow_ret:")
    RO = Regs(20)
    vSt = RO(); vRd = RO(3); vOut = RO(3); RO.p = 36
    OF = RO(80, 4); AC = RO(20, 4); NWB = 5
    WB = [RO(20, 4) for _ in range(NWB)]
    PK = 236; sOwn = sCh
    assert RO.p <= PK and WB[2]+20 <= S[3]+8 and Q2b[1]+2 <= OF; RO.hi = 249
    steps = []
    for p in (2, 3, 0, 1):
        steps += [("m", 2*p, 0), ("m", 2*p, 1), ("m", 2*p+1, 0), ("m", 2*p+1, 1), ("l", 2*p, 0)]
    def wrd(n):
        kind, sp, j = steps[n]; buf = WB[n % NWB]; r = []
        sub = 51200 if sp >= 4 else 0
        for t5 in range(5):
            for t in range(2):
                if kind == "m": r.append(f"ds_read_b64_tr_b16 {v(buf+4*t5+2*t,2)}, v{vWm} offset:{(80*sp+40*j+8*t)*160+8*t5-sub}")
                else: r.append(f"ds_read_b64_tr_b16 {v(buf+4*t5+2*t,2)}, v{vWl} offset:{80*(sp+t)*160+8*t5-sub}")
        return r
    def sload(sl, D=sWS):
        p, q = divmod(sl, 2)
        a(f"s_add_u32 s{sT3}, s{sGo}, {10240*sl}")
        for j in range(2):
            a(f"buffer_load_dwordx4 {v(OF+20*p+8*q+4*j,4)}, v{vDma}, s[{D}:{D+3}], s{sT3} offen offset:{1024*j} sc1")
        a(f"buffer_load_dwordx2 {v(OF+20*p+16+2*q,2)}, v{vO8}, s[{D}:{D+3}], s{sT3} offen offset:2048 sc1")
    def oload(p): sload(2*p); sload(2*p+1)
    def lines(fn):
        keep = a.lines; a.lines = []; fn(); got = a.lines; a.lines = keep; return got
    def weave(main, *sides):
        slots = [[] for _ in main]
        for sd in sides:
            for i, g_ in enumerate(sd): slots[i*len(main)//len(sd)] += g_
        for m_, sl in zip(main, slots):
            a(m_)
            for x in sl: a(x)
    a(f"s_lshl_b32 s{sGo}, s{sG}, 5"); a(f"s_add_u32 s{sGo}, s{sGo}, s{sW}"); a(f"s_mul_i32 s{sGo}, s{sGo}, 2560")
    a(f"s_add_u32 s{sGo}, s{sGo}, {WS_O}")
    a(f"s_mul_i32 s{sOwn}, s{sS}, 10240"); a(f"s_add_u32 s{sOwn}, s{sOwn}, s{sGo}")
    NE = opt.get("ne", 0)
    a("s_waitcnt vmcnt(0) lgkmcnt(0)" if NE else "s_waitcnt lgkmcnt(0)")
    if NE:
        a(f"v_cmp_ne_u32 vcc, s{sTag}, v{vPv}")
        a(f"s_mov_b64 s[{sA}:{sA+1}], s[{sWS}:{sWS+1}]"); a(f"s_mov_b32 s{sA+3}, s{sWS+3}")
        a(f"s_and_b32 s{sT}, vcc_lo, {(1 << NE)-1}")
        a(f"s_cselect_b32 s{sA+2}, 0, s{sWS+2}")
    if "pl2" not in opt: pload()
    stamp("a", True)
    eg = cap(lambda: [sload(i, sA) for i in range(NE)]) if NE else [[], []]
    WGE = opt.get("wge", 0)
    wg = [[x] for n in range(3) for x in wrd(n)] if WGE else [[]]*30
    def guard():
        for j in range(2):
            a(f"v_add_f32 v{vT+j}, |v{O[j]}|, |v{O[j]+12}|")
            for i in range(1, 12): a(f"v_add_f32 v{vT+j}, |v{O[j]+i}|, v{vT+j}")
    ne1 = (len(eg)+1)//2
    weave(lines(guard), eg[:ne1], wg[:12])
    a(f"v_add_f32 v{vT}, v{vT}, v{vT+1}")
    thr = 0x71800000 if not opt.get("forceslow") else 0
    a(f"v_min_f32 v{vT+1}, v{O[0]+12}, v{O[1]+12}")
    a(f"v_cmp_ngt_f32 vcc, {thr:#x}, v{vT}")
    a("s_cbranch_vccnz L_slow")
    a(f"v_cmp_ngt_f32 vcc, v{vT+1}, v{vLow}")
    a("s_cbranch_vccnz L_slow")
    a("L_guard_ok:")
    stamp("a", True)
    for j in range(2):
        a(f"v_rcp_f32 v{vT+j}, v{O[j]+12}")
    ASC = opt.get("asc", "")
    def norm(j):
        for i in range(12): a(f"v_mul_f32 v{O[j]+i}, v{O[j]+i}, v{vT+j}")
        for i in range(6): a(f"v_cvt_pk_bf16_f32 v{O[j]+i}, v{O[j]+2*i}, v{O[j]+2*i+1}")
        for i in range(4): a(f"v_min_u32 v{PK+4*j+i}, -2, v{O[j]+i}")
    for j in range(2):
        if j == 0: weave(lines(lambda: norm(0)), eg[ne1:], wg[12:21])
        else: weave(lines(lambda: norm(1)), wg[21:])
        a(f"buffer_store_dwordx4 {v(PK+4*j,4)}, v{vDma}, s[{sWS}:{sWS+3}], s{sOwn} offen offset:{1024*j} {ASC}")
    for i in range(2): a(f"v_permlane32_swap_b32 v{O[0]+4+i}, v{O[1]+4+i}")
    for i in range(2): a(f"v_min_u32 v{PK+8+i}, -2, v{O[0]+4+i}")
    a(f"buffer_store_dwordx2 {v(PK+8,2)}, v{vO8}, s[{sWS}:{sWS+3}], s{sOwn} offen offset:2048 {ASC}")
    def bstore():
        Lb = lab("bst")
        a(f"s_bitcmp1_b32 s{sSlotN}, 4"); a(f"s_cbranch_scc1 {Lb}")
        a(f"s_bitset1_b32 s{sSlotN}, 4")
        a(f"s_add_u32 s{sT3}, s{sOwn}, {0 if SAME else WS_OB}")
        for j in range(2): a(f"buffer_store_dwordx4 {v(PK+4*j,4)}, v{vDma}, s[{sWS}:{sWS+3}], s{sT3} offen offset:{1024*j} sc1")
        a(f"buffer_store_dwordx2 {v(PK+8,2)}, v{vO8}, s[{sWS}:{sWS+3}], s{sT3} offen offset:2048 sc1")
        a(f"{Lb}:")
    a(f"s_mov_b32 s{sSlotN}, 0")
    BE = opt.get("bearly", 1) and not SAME
    if BE: bstore()
    stamp("a", True)
    a(f"v_mov_b32 v{vCnt}, {L_C2}")
    def wpre():
        for n in range(3 if WGE else 0, 4):
            a("s_waitcnt lgkmcnt(4)")
            for x in wrd(n): a(x)
    if NE: wpre()
    stamp("a", True)
    a(f"s_waitcnt vmcnt({6 if BE else 3})")
    stamp("a")
    Lf = lab("fl"); Le = lab("el")
    OOL = opt.get("ool", 1); cold = []
    a(f"v_cmp_ne_u32 vcc, s{sTag}, v{vPv}")
    if OOL:
        a(f"s_cbranch_vccnz {Lf}c")
        cold += [f"{Lf}c:"] + lines(lambda: poll(vPv, vPo, "0", 1, sleep=opt.get("fsleep", 2))) + [f"s_branch {Lf}"]
    else:
        a(f"s_cbranch_vccz {Lf}")
        poll(vPv, vPo, "0", 1, sleep=opt.get("fsleep", 2))
    a(f"{Lf}:")
    if NE:
        a(f"s_cmp_lg_u32 s{sA+2}, 0"); a(f"s_cbranch_scc1 {Le}")
        for i in range(NE): sload(i)
        a("s_waitcnt vmcnt(0)")
        a(f"{Le}:")
    stamp("a")
    def ocheck(p):
        b = OF+20*p
        a(f"v_max3_u32 v{vT}, v{b}, v{b+1}, v{b+2}"); a(f"v_max3_u32 v{vT+1}, v{b+3}, v{b+4}, v{b+5}")
        for i in range(7): a(f"v_max3_u32 v{vT+(i&1)}, v{vT+(i&1)}, v{b+6+2*i}, v{b+7+2*i}")
        a(f"v_max_u32 v{vT}, v{vT}, v{vT+1}")
        a(f"v_cmp_eq_u32 vcc, -1, v{vT}")
    lg = cap(lambda: [sload(i) for i in range(NE, 8)])
    NL0 = opt.get("nl0", 3 if NE else 24)
    if NE:
        for g_ in lg[:NL0]:
            for x in g_: a(x)
    else:
        weave(lines(wpre), lg[:NL0])
        a(f"s_waitcnt vmcnt({NL0-6})")
    lg = lg[NL0:]
    def stage_addr():
        srd(a, sA, pOut, 2048*2560)
        a(f"s_mul_i32 s{sT}, s{sW}, 2816"); a(f"s_add_u32 s{sT}, s{sT}, {L_WO+51200}")
        a(f"v_and_b32 v{vT}, 15, v{vL}"); a(f"v_mul_u32_u24 v{vT}, 176, v{vT}")
        a(f"v_lshrrev_b32 v{vT+1}, 4, v{vL}"); a(f"v_mul_u32_u24 v{vT+1}, 40, v{vT+1}"); a(f"v_add3_u32 v{vSt}, v{vT}, v{vT+1}, s{sT}")
        for m in range(3):
            a(f"v_add_u32 v{vT}, {64*m}, v{vL}"); a(f"v_mul_u32_u24 v{vT+1}, 205, v{vT}"); a(f"v_lshrrev_b32 v{vT+1}, 11, v{vT+1}")
            a(f"v_add_u32 v{vT+2}, v{vT}, v{vT+1}"); a(f"v_lshl_add_u32 v{vRd+m}, v{vT+2}, 4, s{sT}")
            a(f"v_mul_u32_u24 v{vT+1}, 150, v{vT+1}"); a(f"v_add_lshl_u32 v{vOut+m}, v{vT}, v{vT+1}, 4")
    sa = lines(stage_addr)
    a(f"s_mov_b32 s{sC}, 0")
    for n in range(20):
        p, r_ = divmod(n, 5)
        if r_ == 0:
            Lr = lab("rnd"); Lg = lab("go")
            if OOL:
                if p == 0: ocheck(0); a(f"s_cbranch_vccnz {Lr}")
                elif p == 1:
                    a("s_waitcnt vmcnt(0)")
                    b = OF+20
                    for i in range(2): a(f"v_max3_u32 v{vT+i}, v{b+3*i}, v{b+3*i+1}, v{b+3*i+2}")
                    for i in range(27): a(f"v_max3_u32 v{vT+(i&1)}, v{vT+(i&1)}, v{b+6+2*i}, v{b+7+2*i}")
                    a(f"v_max_u32 v{vT}, v{vT}, v{vT+1}"); a(f"v_cmp_eq_u32 vcc, -1, v{vT}"); a(f"s_cbranch_vccnz {Lr}")
                    a(f"s_or_b32 s{sSlotN}, s{sSlotN}, 14")
                else: a(f"s_bitcmp1_b32 s{sSlotN}, {p}"); a(f"s_cbranch_scc0 {Lr}")
                keep_ = a.lines; a.lines = cold
            elif p:
                a(f"s_bitcmp1_b32 s{sSlotN}, {p}"); a(f"s_cbranch_scc1 {Lg}")
            LZ = -1 if OOL else opt.get("lazy", 0)
            if 0 < p <= LZ:
                a(f"s_bitcmp1_b32 s{sSlotN}, 5"); a(f"s_cbranch_scc1 {Lr}")
                a(f"s_waitcnt vmcnt({6*(3-p)})")
            if p <= LZ:
                ocheck(p); a(f"s_cbranch_vccz {Lg}")
                if p: a(f"s_bitset1_b32 s{sSlotN}, 5")
            a(f"{Lr}:")
            La = lab("ab")
            a(f"s_add_u32 s{sC}, s{sC}, 1"); a(f"s_cmp_lt_u32 s{sC}, {opt.get('arounds', 12)}"); a(f"s_cbranch_scc1 {La}")
            bstore()
            if not SAME: a(f"s_xor_b32 s{sGo}, s{sGo}, {WS_O ^ (WS_O+WS_OB):#x}")
            a(f"{La}:")
            if opt.get("rsleep", 0): a(f"s_sleep {opt['rsleep']}")
            a("s_waitcnt vmcnt(0)")
            for q in range(p, 4 if p else 1):
                Lo = lab("ok"); Ln = lab("nx")
                if q > p:
                    a(f"s_bitcmp1_b32 s{sSlotN}, {q}"); a(f"s_cbranch_scc1 {Ln}")
                ocheck(q); a(f"s_cbranch_vccz {Lo}")
                oload(q); a(f"s_branch {Ln}")
                a(f"{Lo}:"); a(f"s_bitset1_b32 s{sSlotN}, {q}")
                a(f"{Ln}:")
            a(f"s_bitcmp1_b32 s{sSlotN}, {p}"); a(f"s_cbranch_scc1 {Lg}")
            a(f"s_cmp_lt_u32 s{sC}, {SPIN//4}"); a(f"s_cbranch_scc1 {Lr}")
            a("s_waitcnt vmcnt(0)")
            if OOL: a(f"s_branch {Lg}"); a.lines = keep_
            a(f"{Lg}:")
            if p == (SAME or opt.get("bp", 3)) and not BE: bstore()
            if p in (0, 1, 3): stamp("a", True)
        if n == opt.get("odrop", 5): a("s_setprio 0")
        if n == opt.get("oup", 99): a("s_setprio 2")
        nn = n + NWB - 1
        nx = []
        if nn < 20:
            if nn == 10:
                lwait(0)
                a(f"v_subrev_u32 v{vWm}, 51200, v{vWm}"); a(f"v_subrev_u32 v{vWl}, 51200, v{vWl}")
            nx = wrd(nn)
        out_allowed = min(10, 10*(min(19, nn-1) - n))
        a(f"s_waitcnt lgkmcnt({out_allowed})")
        if n == 10: lsig((L_C2-L_CNT)//4 + 3)
        for t5 in range(5):
            a(f"v_mfma_f32_16x16x32_bf16 {v(AC+4*t5,4)}, {v(WB[n%NWB]+4*t5,4)}, {v(OF+4*n,4)}, {'0' if n==0 else v(AC+4*t5,4)}")
            for x in nx[2*t5:2*t5+2]: a(x)
            sl = 5*n+t5
            if sl < 25:
                LD = opt.get("ld", 2)
                if sl % LD == 0 and lg:
                    for x in lg.pop(0): a(x)
            if n >= 16:
                for x in sa[2*(sl-80):2*(sl-80)+2]: a(x)
        assert n < 4 or not lg
    assert len(sa) <= 40
    a(f"s_lshl_b32 s{sT}, s{sG}, 2"); a(f"s_add_u32 s{sT}, s{sT}, s{sW}"); a(f"s_mul_i32 s{sT}, s{sT}, {16*2560}")
    a(f"s_add_u32 s{sT}, s{sT}, s{sT4}")
    lwait(3)
    for i in range(10): a(f"v_cvt_pk_bf16_f32 v{OF+i}, v{AC+2*i}, v{AC+2*i+1}")
    for i in range(5): a(f"ds_write_b64 v{vSt}, {v(OF+2*i,2)} offset:{8*i}")
    for m in range(3): a(f"ds_read_b128 {v(OF+12+4*m,4)}, v{vRd+m}")
    for m in range(3):
        a(f"s_waitcnt lgkmcnt({2-m})")
        if m == 2: a("s_mov_b32 exec_hi, 0")
        if opt.get("osn"):
            Lc = lab("oc"); Ld = lab("od")
            a(f"s_cmp_ge_u32 s{sS}, 3"); a(f"s_cbranch_scc1 {Lc}")
            a(f"buffer_store_dwordx4 {v(OF+12+4*m,4)}, v{vOut+m}, s[{sA}:{sA+3}], s{sT} offen sc1")
            a(f"s_branch {Ld}"); a(f"{Lc}:")
        a(f"buffer_store_dwordx4 {v(OF+12+4*m,4)}, v{vOut+m}, s[{sA}:{sA+3}], s{sT} offen {opt.get('osc','')}")
        if opt.get("osn"): a(f"{Ld}:")
    if prof:
        stamp("a"); a("s_waitcnt vmcnt(0)"); stamp("a")
        prof_store("a", vT)
        a("s_mov_b64 exec, -1")
        a(f"v_lshlrev_b32 v{vT}, 2, v{vL}")
        a("s_mov_b64 exec, 0xff")
        a(f"s_add_u32 s{sT}, s{sT}, {0x40000}")
        a(f"buffer_store_dword v{vPr}, v{vT}, s[{sWS}:{sWS+3}], s{sT} offen")
        a(f"buffer_store_dword v{vPr+1}, v{vT}, s[{sWS}:{sWS+3}], s{sT} offen offset:32")
        a("s_mov_b64 exec, 0x300")
        a(f"s_add_u32 s{sT}, s{sT}, {0x40000}")
        a(f"buffer_store_dword v{vPr}, v{vT}, s[{sWS}:{sWS+3}], s{sT} offen")
    if probe:
        if probe[0] == 99: a("s_waitcnt vmcnt(0)"); a("s_memrealtime s[72:73]")
        if probe[0] == 0: a("s_mov_b32 s72, s70")
        a(f"s_cmp_lt_u32 s2, {probe[2]}"); a("s_cbranch_scc1 L_pe"); a(f"s_cmp_gt_u32 s2, {probe[3]}"); a("s_cbranch_scc1 L_pe")
        a("s_waitcnt lgkmcnt(0)")
        a("s_sub_u32 s72, s72, s70"); a(f"s_mul_i32 s72, s72, {probe[1]}"); a("s_add_u32 s72, s72, 4000"); a("s_min_u32 s72, s72, 30000")
        a("L_pl:"); a("s_memrealtime s[74:75]"); a("s_waitcnt lgkmcnt(0)"); a("s_sub_u32 s74, s74, s70"); a("s_cmp_lt_u32 s74, s72"); a("s_cbranch_scc1 L_pl")
        a("L_pe:")
    a("s_endpgm")
    for x in cold: a(x)
    for Ls, Lb, k in spins:
        a(f"{Ls}:"); lwait(k); a(f"s_branch {Lb}")
    a("L_slow:")
    a(f"s_cmp_lg_u32 s{sC}, 8"); a("s_cbranch_scc1 L_guard_ok")
    a("s_waitcnt vmcnt(0) lgkmcnt(0)")
    M = [vK, vV]
    for j in range(2):
        a(f"v_mov_b32 v{M[j]}, 0xff800000")
        for i in range(16): a(f"v_mov_b32 v{C[j]+i}, 0"); a(f"v_mov_b32 v{O[j]+i}, 0")
    a(f"s_mov_b32 s{sSlotN}, 0")
    a("L_slow_pass:")
    a(f"s_mov_b32 s{sC}, 0")
    a("L_slow_it:")
    a(f"s_lshr_b32 s{sT}, s{sC}, 2"); a(f"s_mul_i32 s{sT}, s{sT}, {CHUNK}")
    a(f"s_bfe_u32 s{sT2}, s{sC}, 0x10001"); a(f"s_mul_i32 s{sT2}, s{sT2}, {GRP}")
    a(f"s_add_u32 s{sT}, s{sT}, s{sT2}"); a(f"s_add_u32 s{sT}, s{sT}, {WS_KV}")
    a(f"s_and_b32 s{sT2}, s{sC}, 1")
    a(f"s_lshl_b32 s{sT3}, s{sT2}, 10"); a(f"s_add_u32 s{sT3}, s{sT3}, s{sT}")
    for q in range(2): a(f"buffer_load_dwordx4 {v(K1[q],4)}, v{vK0}, s[{sWS}:{sWS+3}], s{sT3} offen offset:{2048*q} sc1")
    a(f"s_lshl_b32 s{sT3}, s{sT2}, 3"); a(f"s_add_u32 s{sT3}, s{sT3}, s{sT}"); a(f"s_add_u32 s{sT3}, s{sT3}, 4096")
    a(f"buffer_load_dwordx2 {v(K2[0],2)}, v{vK0}, s[{sWS}:{sWS+3}], s{sT3} offen sc1")
    a(f"s_mul_i32 s{sT3}, s{sT2}, 1344"); a(f"s_add_u32 s{sT3}, s{sT3}, s{sT}")
    for q in range(2):
        a(f"buffer_load_dwordx4 {v(V0[q],4)}, v{vV0}, s[{sWS}:{sWS+3}], s{sT3} offen offset:{2688*q} sc1")
        a(f"buffer_load_dwordx4 {v(V1[q],4)}, v{vV0}, s[{sWS}:{sWS+3}], s{sT3} offen offset:{2688*q+672} sc1")
    a("s_waitcnt vmcnt(0)")
    assert C[1] == C[0]+16
    for q in range(2 if B2 else 0):
        a(f"v_mfma_f32_32x32x4_2b_bf16 {v(S[2*q],32)}, {v(K2[0],2)}, {v(Q2a[0],2)}, {v(C[0],32)} cbsz:1 abid:{q}")
    for q in range(2):
        for j in range(2):
            Sx = S[2*q+j]
            if not B2: a(f"v_mfma_f32_32x32x8_bf16 {v(Sx,16)}, {v(K2[0],2)}, {v((Q2a if q==0 else Q2b)[j],2)}, {v(C[j],16)}")
            a(f"v_mfma_f32_32x32x16_bf16 {v(Sx,16)}, {v(K1[q],4)}, {v(Q1[j],4)}, {v(Sx,16)}")
    a("s_nop 15")
    a(f"s_cmp_eq_u32 s{sSlotN}, 1"); a("s_cbranch_scc1 L_slow_p2")
    for q in range(2):
        for j in range(2): rowmax(S[2*q+j], M[j], True)
    a("s_branch L_slow_nx")
    a("L_slow_p2:")
    for i in range(64): a(f"v_exp_f32 v{S[0]+i}, v{S[0]+i}")
    a("s_nop 1")
    for q in range(2):
        for j in range(2):
            for sidx in range(2):
                a(f"v_smfmac_f32_32x32x32_bf16 {v(O[j],16)}, {v((V0 if sidx==0 else V1)[q],4)}, {v(S[2*q+j]+8*sidx,8)}, v{vIdx}")
    a("s_nop 15")
    a("L_slow_nx:")
    a(f"s_add_u32 s{sC}, s{sC}, 1"); a(f"s_cmp_lt_u32 s{sC}, 32"); a("s_cbranch_scc1 L_slow_it")
    a(f"s_cmp_eq_u32 s{sSlotN}, 1"); a("s_cbranch_scc1 L_slow_ret")
    for j in range(2): setC(j, M[j], vT)
    a(f"s_mov_b32 s{sSlotN}, 1")
    a("s_branch L_slow_pass")
    assert S[1] == S[0]+16 and S[3] == S[0]+48
    hi_a = max(R.hi, RA.hi, RO.hi, KW+8*NKW)

    if FAST & 1: hpre0 = len(a.lines)
    else: a("L_helper:")
    H = Regs(5)
    hT = H(8, 4); hDma = H(); hP = H(5); PR = H(8, 2)
    sCg = sU0
    a(f"s_sub_u32 s{sH}, s{sW}, 4")
    if opt.get("al", 1):
        a(f"s_and_b32 s{sCh}, s2, 7"); a(f"s_lshl_b32 s{sT}, s{sCh}, 3")
        a(f"s_mov_b32 s{sT2}, 0x40301800"); a(f"s_mov_b32 s{sT3}, 0x90806850")
        a(f"s_lshr_b64 s[{sT2}:{sT3}], s[{sT2}:{sT3}], s{sT}"); a(f"s_and_b32 s{sCg}, s{sT2}, 0xff")
        a(f"s_lshr_b32 s{sT3}, s2, 3"); a(f"s_add_u32 s{sCg}, s{sCg}, s{sT3}"); a(f"s_sub_u32 s{sCg}, s{sCg}, 16")
        a(f"s_bitcmp1_b32 0x66, s{sCh}"); a(f"s_cselect_b32 s{sT}, 8, 16")
    else:
        a(f"s_and_b32 s{sT}, s2, 7"); a(f"s_mul_i32 s{sT}, s{sT}, 20"); a(f"s_lshr_b32 s{sT3}, s2, 3")
        a(f"s_add_u32 s{sCg}, s{sT}, s{sT3}"); a(f"s_sub_u32 s{sCg}, s{sCg}, 12"); a(f"s_mov_b32 s{sT}, 12")
    a(f"s_cmp_lt_u32 s{sT3}, s{sT}"); a(f"s_cselect_b32 s{sCg}, -1, s{sCg}")
    a(f"s_lshl_b32 s{sCh}, s{sCg}, 2"); a(f"s_add_u32 s{sCh}, s{sCh}, s{sH}")
    a(f"s_lshl_b32 s{sT}, s{sCh}, 8")
    a(f"v_lshlrev_b32 v{hT+2}, 2, v{vL}"); a(f"v_add_u32 v{hT}, s{sT}, v{hT+2}")
    a(f"s_lshl_b32 s{sT}, s{sCh}, 1"); a(f"v_mov_b32 v{hT+1}, s{sT}")
    a(f"s_mul_i32 s{sT}, s{sT3}, 200"); a(f"s_mul_i32 s{sT2}, s{sH}, 50"); a(f"s_add_u32 s{sT}, s{sT}, s{sT2}")
    a(f"v_add_u32 v2, s{sT}, v{vL}"); a(f"v_lshlrev_b32 v2, 7, v2")
    a(f"v_lshlrev_b32 v{hDma}, 4, v{vL}")
    a(f"s_cmp_lt_i32 s{sCg}, 0")
    a("s_waitcnt lgkmcnt(0)")
    stamp("h")
    a("s_cbranch_scc1 L_h_pre_tr")
    a(f"global_load_ushort v{PR+6}, v{hT+1}, s[{pLdt}:{pLdt+1}]")
    for i, p in enumerate((pAre, pAim, pBre, pBim, pCre, pCim)):
        a(f"global_load_dword v{PR+i}, v{hT}, s[{p}:{p+1}]")
    a(f"global_load_ushort v{PR+7}, v{hT+1}, s[{pDs}:{pDs+1}]")
    a("s_branch L_h_go")
    a("L_h_pre_tr:")
    a(f"s_cmp_ge_u32 s{sS}, 2"); a("s_cbranch_scc1 L_h_go")
    a(f"s_mul_i32 s{sT}, s{sH}, 7168")
    a(f"s_add_u32 m0, s{sT}, {L_WK}")
    a(f"s_cmp_eq_u32 s{sS}, 0")
    a(f"s_cselect_b32 s{sA}, s{pWK}, s{pWV}")
    a(f"s_cselect_b32 s{sA+1}, s{pWK+1}, s{pWV+1}")
    a(f"s_and_b32 s{sA+1}, s{sA+1}, 0xffff"); a(f"s_mov_b32 s{sA+2}, 25600"); a(f"s_mov_b32 s{sA+3}, 0x20000")
    for i in range(4): a(f"buffer_load_dwordx4 v{hDma}, s[{sA}:{sA+3}], s{sT} offen offset:{1024*i} lds")
    a("s_add_u32 m0, m0, 4096"); a(f"s_add_u32 s{sT}, s{sT}, 4096")
    for i in range(3): a(f"buffer_load_dwordx4 v{hDma}, s[{sA}:{sA+3}], s{sT} offen offset:{1024*i} lds")
    if FAST & 1:
        if FAST & 4:
            a.lines[hpre0:] = [x.replace("L_h_go", "L_h_bar") for x in a.lines[hpre0:]]
            a("L_h_bar:"); a("s_barrier")
        a("s_branch L_h_go")
        pre = a.lines[hpre0:]; del a.lines[hpre0:]
        i_ = a.lines.index("@@HPRE"); a.lines[i_:i_+1] = pre
    a("L_h_go:")
    HP = opt.get("hp", 31)
    if HP: a("s_setprio 3")
    WQPF = opt.get("wqpf", -1)
    def wq_pf():
        a("s_mov_b32 exec_hi, 0x3ffff")
        a(f"global_load_dword v3, v2, s[{pWQ}:{pWQ+1}]")
        a("s_mov_b32 exec_hi, -1")
    if WQPF == 0: wq_pf()
    if not FAST & 4: a("s_barrier")
    a(f"s_load_dword s{sTag}, s[{pWS}:{pWS+1}], {WS_TAG}")
    srd(a, sWS, pWS, WS_SIZE)
    srd(a, sWQ, pWO, 640*1280)
    wpattern(hP, vL, hT, False)
    a(f"s_lshr_b32 s{sGo}, s{sG}, 2"); a(f"s_add_u32 s{sGo}, s{sGo}, 1"); a(f"s_and_b32 s{sGo}, s{sGo}, 7")
    a(f"s_mul_i32 s{sGo}, s{sGo}, {CHUNK}"); a(f"s_add_u32 s{sGo}, s{sGo}, {WS_KV}")
    a(f"s_mov_b32 s{sSlotD}, {CHUNK}")
    sWoL = sSlotN; sWoG = sT4
    def wo_set(mul, add):
        a(f"s_mul_i32 s{sT}, s{sH}, {mul}")
        if add: a(f"s_add_u32 s{sT}, s{sT}, {add}")
        a(f"s_mul_i32 s{sWoL}, s{sT}, 5120"); a(f"s_add_u32 s{sWoL}, s{sWoL}, {L_WO}")
        a(f"s_mul_i32 s{sWoG}, s{sT}, 40960"); a(f"s_mul_i32 s{sT}, s{sS}, 160"); a(f"s_add_u32 s{sWoG}, s{sWoG}, s{sT}")
        a(f"s_add_u32 s{sWoG}, s{sWoG}, {10*40960}")
    wo_set(3, 8)
    def wo_step():
        a(f"s_mov_b32 m0, s{sWoL}")
        a(f"s_add_u32 s{sWoL}, s{sWoL}, 5120")
        a(f"s_sub_u32 s{sT}, s{sWoG}, {20*40960}"); a(f"s_cselect_b32 s{sWoG}, s{sWoG}, s{sT}")
        wkstep_dma(hP, sWQ, sWoG)
        a(f"s_add_u32 s{sWoG}, s{sWoG}, 40960")
    def h_sig(k, base=L_C2):
        a(f"v_mov_b32 v{hT+4}, {base}"); a(f"v_mov_b32 v{hT+5}, 1")
        a("s_mov_b64 exec, 1"); a(f"ds_add_u32 v{hT+4}, v{hT+5} offset:{4*k}"); a("s_mov_b64 exec, -1")
    def hl_wait(k, sleep=2, base=L_CNT, n=4):
        L = lab("tw"); D = lab("twd")
        a(f"v_mov_b32 v{hT+4}, {base}")
        a(f"s_mov_b32 s{sBound}, {SPIN*4}")
        a(f"{L}:")
        if sleep: a(f"s_sleep {sleep}")
        a(f"ds_read_b32 v{hT+5}, v{hT+4} offset:{4*k}")
        a(f"s_sub_u32 s{sBound}, s{sBound}, 1"); a(f"s_cbranch_scc1 {D}")
        a("s_waitcnt lgkmcnt(0)")
        a(f"v_cmp_gt_u32 vcc, {n}, v{hT+5}")
        a(f"s_cbranch_vccnz {L}")
        a(f"{D}:")
    def kv_flags(late):
        Lnp = lab("nopoll")
        a(f"s_cmp_lg_u32 s{sH}, 3"); a(f"s_cbranch_scc1 {Lnp}")
        if late: hl_wait(4, 8, L_CNT, 8)
        a(f"v_lshlrev_b32 v{hT+4}, 7, v{vL}")
        a(f"s_mov_b32 s{sT5}, {WS_FKV}")
        poll(hT, hT+4, f"s{sT5}", 4, sleep=opt.get("psleep", 8))
        if FE != 3: h_sig(3, L_CNT)
        a(f"{Lnp}:")
    def pre_b1(flags=True):
        if FE == 3:
            hl_wait(4, 2, L_CNT, 8)
            ring_dma(sH, hDma)
            kv_flags(False)
            return
        if flags: kv_flags(True)
        hl_wait(4, 4 if flags else 2, L_CNT, 8)
        hl_wait(3, 2, L_CNT, 1)
        ring_dma(sH, hDma)
    def tag_advance():
        Lnt = lab("notag")
        a(f"s_add_u32 s{sT}, s2, s{sH}"); a(f"s_cmp_lg_u32 s{sT}, 0"); a(f"s_cbranch_scc1 {Lnt}")
        a(f"v_lshlrev_b32 v{hT+4}, 7, v{vL}")
        for i in range(4):
            a(f"s_mov_b32 s{sT5}, {WS_FO+8192*i}")
            poll(hT, hT+4, f"s{sT5}", 1, sleep=4)
        a(f"v_mov_b32 v{hT}, s{sTag}")
        a("s_mov_b64 exec, 1")
        a(f"buffer_store_dword v{hT}, off, s[{sWS}:{sWS+3}], 0 offset:{WS_TAG} sc1")
        a("s_mov_b64 exec, -1")
        a(f"{Lnt}:")
    a(f"s_cmp_lt_i32 s{sCg}, 0"); a("s_cbranch_scc1 L_h_tr")
    vSw = H(4); vSr = H(); vKb = H(); vKc = H(); vKf = H(); vU = H(4); vY = H(2)
    G3 = opt.get("g3", 0); YS = 1152 if G3 else 0
    SEL = H(6)
    a(f"s_mul_i32 s{sT}, s{sH}, {SCP}"); a(f"s_add_u32 s{sT}, s{sT}, {L_SC}")
    a(f"v_lshlrev_b32 v{vSw}, 3, v{vL}"); a(f"v_add_u32 v{vSw}, s{sT}, v{vSw}")
    for i in range(1, 4): a(f"v_add_u32 v{vSw+i}, {2112*i}, v{vSw}")
    a(f"v_and_b32 v{hT+4}, 15, v{vL}")
    a(f"v_lshrrev_b32 v{hT+5}, 4, v{vL}")
    a(f"v_mul_u32_u24 v{hT+6}, 528, v{hT+4}"); a(f"v_lshl_add_u32 v{hT+6}, v{hT+5}, 4, v{hT+6}"); a(f"v_add_u32 v{vSr}, s{sT}, v{hT+6}")
    a(f"s_mul_i32 s{sT2}, s{sH}, {KRP}"); a(f"s_add_u32 s{sT2}, s{sT2}, {L_KR}")
    a(f"v_lshlrev_b32 v{hT+6}, 4, v{hT+4}")
    a(f"v_and_b32 v{hT+7}, 1, v{hT+5}"); a(f"v_lshl_add_u32 v{hT+7}, v{hT+7}, 3, v{hT+6}")
    a(f"v_and_b32 v{vKb}, 32, v{vL}"); a(f"v_lshl_add_u32 v{hT+7}, v{vKb}, 4, v{hT+7}")
    a(f"s_add_u32 s{sT3}, s{sT2}, {4088-256}")
    a(f"v_sub_u32 v{vKb}, s{sT3}, v{hT+7}")
    a(f"v_lshlrev_b32 v{hT+7}, 9, v{hT+5}")
    a(f"v_add_u32 v{hT+7}, v{hT+7}, v{hT+6}")
    a("s_mov_b32 exec_lo, 0"); a("s_mov_b32 exec_hi, 0xffff0000")
    a(f"v_add_u32 v{hT+7}, 512, v{hT+7}")
    a("s_mov_b64 exec, -1")
    a(f"s_add_u32 s{sT3}, s{sT2}, {4080-1024-256-512}")
    a(f"v_sub_u32 v{vKc}, s{sT3}, v{hT+7}")
    a(f"v_and_b32 v{hT}, 7, v{vL}"); a(f"v_bfe_u32 v{hT+1}, v{vL}, 4, 1"); a(f"v_lshl_add_u32 v{hT}, v{hT+1}, 3, v{hT}")
    a(f"v_bfe_u32 v{hT+2}, v{vL}, 3, 1")
    a(f"v_lshrrev_b32 v{hT+3}, 5, v{vL}")
    a(f"v_lshlrev_b32 v{hT+7}, 5, v{hT}"); a(f"v_lshl_add_u32 v{hT+7}, v{hT+2}, 9, v{hT+7}")
    a(f"s_add_u32 s{sT3}, s{sT2}, {4064-3072}")
    a(f"v_sub_u32 v{vKf}, s{sT3}, v{hT+7}"); a(f"v_lshl_add_u32 v{vKf}, v{hT+3}, 4, v{vKf}")
    a(f"v_lshl_add_u32 v{hT+7}, v{hT+3}, 4, v{hT+7}")
    a(f"v_add_u32 v{vY+1}, s{sT2}, v{hT+7}")
    a(f"s_mul_i32 s{sT3}, s{sH}, {UP}"); a(f"s_add_u32 s{sT3}, s{sT3}, {L_U+2368+YS}"); a(f"v_add_u32 v{vY}, s{sT3}, v{hT+7}")
    a(f"v_and_b32 v{hT+7}, 2, v{vL}"); a(f"v_lshl_add_u32 v{hT+7}, v{hT+2}, 2, v{hT+7}")
    a(f"v_bfe_u32 v{hT}, v{vL}, 2, 1"); a(f"v_add_u32 v{hT}, v{hT}, v{hT+3}"); a(f"v_lshl_add_u32 v{hT+7}, v{hT}, 3, v{hT+7}")
    a(f"v_mul_u32_u24 v{hT+1}, 576, v{hT+1}"); a(f"v_lshl_add_u32 v{hT+7}, v{hT+7}, 1, v{hT+1}")
    a(f"v_and_b32 v{hT+6}, 1, v{vL}"); a(f"v_mul_u32_u24 v{vU}, 4576, v{hT+6}")
    a(f"s_mul_i32 s{sT3}, s{sH}, {UP}"); a(f"s_add_u32 s{sT3}, s{sT3}, {L_U+4640-28}")
    a(f"v_sub_u32 v{vU}, s{sT3}, v{vU}"); a(f"v_add_u32 v{vU}, v{vU}, v{hT+7}")
    for i in range(1, 4): a(f"v_add_u32 v{vU+i}, {1152*i}, v{vU}")
    def sel(lo, hi): return (2*lo) | (2*lo+1) << 8 | (2*hi) << 16 | (2*hi+1) << 24
    a(f"v_mov_b32 v{SEL}, {sel(3,2):#x}"); a(f"v_mov_b32 v{SEL+1}, {sel(1,0):#x}")
    a(f"v_mov_b32 v{SEL+2}, {sel(2,2):#x}"); a(f"v_mov_b32 v{SEL+3}, {sel(1,1):#x}"); a(f"v_mov_b32 v{SEL+4}, {sel(1,0):#x}")
    a("s_mov_b32 exec_lo, 0")
    a(f"v_mov_b32 v{SEL}, {sel(2,1):#x}"); a(f"v_mov_b32 v{SEL+1}, {sel(0,0):#x}")
    a(f"v_mov_b32 v{SEL+2}, {sel(1,1):#x}"); a(f"v_mov_b32 v{SEL+4}, {sel(0,0):#x}")
    a(f"v_mul_u32_u24 v{SEL+3}, 0x101, v{hT+6}"); a(f"v_lshlrev_b32 v{SEL+3}, 17, v{SEL+3}"); a(f"v_add_u32 v{SEL+3}, {sel(1,0):#x}, v{SEL+3}")
    a(f"v_add_u32 v{SEL+5}, 0x04040404, v{SEL+3}")
    a("s_mov_b32 exec_lo, -1")
    for i in range(4): a(f"v_mov_b32 v{hT+i}, 0")
    vKz = H()
    a(f"v_lshlrev_b32 v{vKz}, 3, v{vL}"); a(f"v_add_u32 v{vKz}, s{sT2}, v{vKz}")
    for r_ in (vKb, vKc, vKf, vKz):
        a(f"v_subrev_u32 v{r_}, s{sT2}, v{r_}")
        a(f"v_bfe_u32 v{hT+4}, v{r_}, 4, 1"); a(f"v_mul_u32_u24 v{hT+4}, 2304, v{hT+4}")
        a(f"v_lshrrev_b32 v{hT+5}, 5, v{r_}"); a(f"v_lshl_add_u32 v{hT+4}, v{hT+5}, 4, v{hT+4}")
        a(f"v_and_b32 v{r_}, 15, v{r_}"); a(f"v_add3_u32 v{r_}, v{r_}, v{hT+4}, s{sT2}")
    HK = Regs(H.p)
    Z1 = [HK(2) for _ in range(2)]; Z8 = [HK(2) for _ in range(2)]
    ZB = [HK(2) for _ in range(2)]; Wc = [[HK(2) for _ in range(2)] for _ in range(2)]; Cu = [[HK(2) for _ in range(2)] for _ in range(2)]
    E = [HK(2) for _ in range(2)]; AR = [HK(2) for _ in range(2)]; TB = [HK(2) for _ in range(2)]; TC = [HK(2) for _ in range(2)]
    Z2 = TC; Z4 = TB
    LF = [HK(32, 4) for _ in range(2)]; HF = [HK(32, 4) for _ in range(2)]; DK = [HK(4, 4) for _ in range(4)]; EX = HK(8, 4)
    L2E = 1.4426950408889634
    f2 = lambda x: struct.unpack("<I", struct.pack("<f", x))[0]
    hi_ = struct.unpack("<f", struct.pack("<f", L2E))[0]; lo_ = L2E - hi_
    a(f"v_mov_b32 v{EX}, 0x3f80"); a(f"v_mov_b32 v{EX+1}, 0x3f80")
    a(f"s_mov_b32 s{sT}, {f2(hi_):#x}")
    if opt.get("kprio", 0): a(f"s_setprio {opt['kprio']}")
    if HP == 1: a("s_setprio 0")
    if WQPF == 1:
        a("s_waitcnt lgkmcnt(0)"); wq_pf()
    if WQPF == 3: wq_pf()
    a(f"s_waitcnt vmcnt({6 if WQPF in (0, 1, 3) else 5})")
    if WQPF == 2: wq_pf()
    stamp("h")
    if opt.get("k2"):
        a(f"s_mov_b32 s{sC}, 0"); a("L_k2:")
        a(f"v_mov_b32 v{EX}, 0x3f80"); a(f"v_mov_b32 v{EX+1}, 0x3f80")
    dt = hT+4
    a(f"v_lshlrev_b32 v{hT+5}, 16, v{PR+6}")
    a(f"v_mul_f32 v{hT+6}, {f2(hi_):#x}, v{hT+5}")
    a(f"v_fma_f32 v{hT+7}, v{hT+5}, s{sT}, -v{hT+6}")
    a(f"v_fmac_f32 v{hT+7}, {f2(lo_):#x}, v{hT+5}")
    a(f"v_exp_f32 v{hT+6}, v{hT+6}")
    a(f"v_mul_f32 v{hT+7}, {f2(0.6931471805599453):#x}, v{hT+7}")
    a(f"v_fmac_f32 v{hT+6}, v{hT+6}, v{hT+7}")
    a(f"v_cvt_pk_bf16_f32 v{dt}, v{hT+6}, v{hT+6}")
    a(f"v_lshlrev_b32 v{dt}, 16, v{dt}")
    def unpack(dst, src, m):
        if m == 0: a(f"v_lshlrev_b32 v{dst}, 16, v{src}")
        else: a(f"v_and_b32 v{dst}, 0xffff0000, v{src}")
    fill = []
    def cmul(d, x, y):
        if opt.get("nopk", 0):
            for m in range(2):
                a(f"v_mul_f32 v{d[m]}, v{x[m]}, v{y[m]}"); a(f"v_mul_f32 v{d[m]+1}, v{x[m]}, v{y[m]+1}")
            for m in range(2):
                a(f"v_fma_f32 v{d[m]}, -v{x[m]+1}, v{y[m]+1}, v{d[m]}"); a(f"v_fmac_f32 v{d[m]+1}, v{x[m]+1}, v{y[m]}")
            return
        for m in range(2): a(f"v_pk_mul_f32 {v(d[m],2)}, {v(x[m],2)}, {v(y[m],2)} op_sel:[0,0] op_sel_hi:[0,1]")
        for m in range(2): a(f"v_pk_fma_f32 {v(d[m],2)}, {v(x[m],2)}, {v(y[m],2)}, {v(d[m],2)} op_sel:[1,1,0] op_sel_hi:[1,0,1] neg_lo:[0,1,0]")
    for m in range(2):
        for i in range(2): unpack(AR[m]+i, PR+i, m)
    for m in range(2):
        for i in range(2): a(f"v_mul_f32 v{AR[m]+i}, v{dt}, v{AR[m]+i}")
        a(f"v_mul_f32 v{AR[m]}, {f2(L2E):#x}, v{AR[m]}")
        a(f"v_mul_f32 v{AR[m]+1}, {f2(0.15915494309189535):#x}, v{AR[m]+1}")
    def cpow(d, p):
        for m in range(2):
            if p != 1:
                a(f"v_mul_f32 v{E[m]}, {f2(float(p)):#x}, v{AR[m]}"); a(f"v_mul_f32 v{E[m]+1}, {f2(float(p)):#x}, v{AR[m]+1}")
                a(f"v_exp_f32 v{E[m]}, v{E[m]}"); a(f"v_fract_f32 v{E[m]+1}, v{E[m]+1}")
            else:
                a(f"v_exp_f32 v{E[m]}, v{AR[m]}"); a(f"v_fract_f32 v{E[m]+1}, v{AR[m]+1}")
        for m in range(2):
            a(f"v_cos_f32 v{d[m]}, v{E[m]+1}"); a(f"v_sin_f32 v{d[m]+1}, v{E[m]+1}")
        for m in range(2):
            a(f"v_pk_mul_f32 {v(d[m],2)}, {v(d[m],2)}, {v(E[m],2)} op_sel_hi:[1,0]")
    er = [1]; pend = [(EX, 0)]
    def flush():
        if len(pend) == 1:
            e, r_ = pend[0]; a(f"ds_write_b64 v{vSw}, {v(e,2)} offset:{528*r_}")
        elif len(pend) == 2:
            (e0, r0), (e1, r1) = pend
            b = min(r0, r1)//4
            if max(r0, r1) - 4*b > 3:
                a(f"ds_write_b64 v{vSw}, {v(e0,2)} offset:{528*r0}"); a(f"ds_write_b64 v{vSw}, {v(e1,2)} offset:{528*r1}")
            else:
                a(f"ds_write2_b64 v{vSw+b}, {v(e0,2)}, {v(e1,2)} offset0:{66*(r0-4*b)} offset1:{66*(r1-4*b)}")
        pend.clear()
    def row(x, rows, neg):
        e = EX + 2*(er[0] % 4); er[0] += 1
        for m in range(2): a(f"v_cvt_pk_bf16_f32 v{e+m}, v{x[m]}, {'-' if neg else ''}v{x[m]+1}")
        if fill: a(fill.pop(0))
        for r_ in rows:
            if pend and pend[0][1]//4 != r_//4: flush()
            pend.append((e, r_))
            if len(pend) == 2: flush()
        if fill: a(fill.pop(0))
    def frags(dst):
        flush()
        for q in range(8): a(f"ds_read_b128 {v(dst+4*q,4)}, v{vSr} offset:{64*q}")
    cpow(Z8, 8)
    row(Z8, [1], False)
    cur = Z8
    for j in range(2, 32):
        nxt = Cu[j & 1]
        cmul(nxt, cur, Z8); cur = nxt
        row(cur, [j % 16], False)
        if j == 15: frags(LF[0])
        if j == HP: a("s_setprio 0")
    frags(LF[1])
    cmul(ZB, cur, Z8)
    cpow(Z1, 1)
    a(f"s_waitcnt vmcnt({1 if WQPF >= 0 else 0})")
    for m in range(2):
        for i in range(2): unpack(TB[m]+i, PR+2+i, m); unpack(TC[m]+i, PR+4+i, m)
    for m in range(2): a(f"v_pk_mul_f32 {v(TB[m],2)}, {v(TB[m],2)}, {v(dt,2)} op_sel_hi:[1,0]")
    cmul(Wc[0], TC, TB)
    row(Wc[0], [0], True)
    cur = Wc[0]
    for h_ in range(1, 8):
        nxt = Cu[h_ & 1]; cmul(nxt, cur, Z1); cur = nxt
        row(cur, [h_], True)
    cmul(Z2, Z1, Z1)
    cmul(Wc[1], Wc[0], ZB); row(Wc[1], [8], True)
    cur = Wc[1]
    for i, rows in enumerate(([9], [10, 12], [13], [14])):
        nxt = Cu[i & 1]; cmul(nxt, cur, Z2); cur = nxt
        row(cur, rows, True)
    frags(HF[0])
    def hm(hb):
        return [f"v_mfma_f32_16x16x32_bf16 {v(DK[2*hb+lb],4)}, {v(HF[hb]+4*q,4)}, {v(LF[lb]+4*q,4)}, {'0' if q==0 else v(DK[2*hb+lb],4)}" for q in range(8) for lb in range(2)]
    g_ = [1]
    def nextG():
        cmul(Wc[(g_[0]+1) & 1], Wc[g_[0] & 1], ZB); g_[0] += 1
        return Wc[g_[0] & 1]
    cmul(Z4, Z2, Z2)
    for base in (0, 4):
        G = nextG()
        row(G, [base], True)
        cmul(Cu[0], G, Z4); row(Cu[0], [base+1], True)
        cmul(Cu[1], Cu[0], Z4); row(Cu[1], [base+2], True)
        if base == 0:
            a("s_waitcnt lgkmcnt(1)"); fill += hm(0)
    for r_ in (8, 10, 12, 14):
        G = nextG(); row(G, [r_], True)
        cmul(Cu[0], G, Z8); row(Cu[0], [r_+1], True)
    assert not fill
    frags(HF[1])
    a(f"v_lshlrev_b32 v{hT+5}, 16, v{PR+7}")
    a("s_mov_b64 exec, 1"); a(f"v_add_f32 v{DK[0]}, v{DK[0]}, v{hT+5}"); a("s_mov_b64 exec, -1")
    for lb in range(2):
        D = DK[lb]
        a(f"v_cvt_pk_bf16_f32 v{D}, v{D}, v{D+1}"); a(f"v_cvt_pk_bf16_f32 v{D+1}, v{D+2}, v{D+3}")
        a(f"v_perm_b32 v{D+2}, v{D+1}, v{D}, v{SEL}"); a(f"v_perm_b32 v{D+3}, v{D+1}, v{D}, v{SEL+1}")
    m1 = hm(1)
    for q in range(8):
        a(f"s_waitcnt lgkmcnt({7-q})"); a(m1[2*q]); a(m1[2*q+1])
    a(f"s_mov_b32 s{sT}, {sel(0,0):#x}"); a(f"s_mov_b32 s{sT2}, {sel(3,3):#x}"); a(f"s_mov_b32 s{sT3}, {sel(2,2):#x}")
    for lb in range(2):
        D = DK[2+lb]; X = HF[0] + 8*lb
        a(f"v_cvt_pk_bf16_f32 v{D}, v{D}, v{D+1}"); a(f"v_cvt_pk_bf16_f32 v{D+1}, v{D+2}, v{D+3}")
        for i in range(3): a(f"v_perm_b32 v{X+i}, v{D+1}, v{D}, v{SEL+2+i}")
        a(f"v_perm_b32 v{X+3}, v{D+1}, v{D}, s{sT}")
        a(f"v_perm_b32 v{X+4}, v{D+1}, v{D}, s{sT2}"); a(f"v_perm_b32 v{X+5}, v{D+1}, v{D}, v{SEL+5}")
        a(f"v_perm_b32 v{X+6}, v{D+1}, v{D}, s{sT3}"); a(f"v_perm_b32 v{X+7}, v{D+1}, v{D}, s{sT3}")
    tagfix()
    HC = Regs(H.p)
    YA = HC(64, 4); UF = [HC(16, 4) for _ in range(2)]; KF = [HC(16, 4) for _ in range(2)]
    UW = HC(32, 4);  G = HC(18, 4)
    while HC.p <= DK[1]+3: HC()
    vGo = HC(); vUw = HC(); vYr = HC(2); vYo = HC(); vHa = HC()
    sLo = sC; sHi = sCh
    srd(a, sX, pU, 2048*1280)
    a(f"v_mul_u32_u24 v{vGo}, 10240, v{vL}")
    a(f"v_lshrrev_b32 v{hT}, 5, v{vL}"); a(f"v_mul_u32_u24 v{hT}, 576, v{hT}"); a(f"v_and_b32 v{hT+1}, 31, v{vL}")
    a(f"s_mul_i32 s{sT}, s{sH}, 1152"); a(f"s_add_u32 s{sT}, s{sT}, {L_U+64}")
    a(f"v_lshl_add_u32 v{hT}, v{hT+1}, 4, v{hT}"); a(f"v_add_u32 v{vUw}, s{sT}, v{hT}")
    a(f"v_and_b32 v{hT}, 3, v{vL}"); a(f"v_mul_u32_u24 v{hT}, {UP}, v{hT}"); a(f"v_bfe_u32 v{hT+1}, v{vL}, 2, 1"); a(f"v_mul_u32_u24 v{hT+1}, 4576, v{hT+1}")
    a(f"v_add3_u32 v{vHa}, v{hT}, v{hT+1}, s{sT}"); a(f"v_and_b32 v{hT}, 8, v{vL}"); a(f"v_mul_u32_u24 v{hT}, 72, v{hT}")
    a(f"v_and_b32 v{hT+1}, 16, v{vL}"); a(f"v_add3_u32 v{vHa}, v{vHa}, v{hT}, v{hT+1}")
    a(f"s_lshl_b32 s{sT}, s{sH}, 8"); a(f"v_lshl_add_u32 v{hT}, v{vL}, 2, s{sT}")
    a(f"v_add_u32 v{vYr}, {L_U+2368+YS}, v{hT}"); a(f"v_add_u32 v{vYr+1}, {L_KR}, v{hT}")
    a(f"v_mul_u32_u24 v{vYo}, 5120, v{vL}")
    if opt.get("ytest") == 2:
        a(f"v_and_b32 v{hT}, 1, v{vL}"); a(f"v_lshlrev_b32 v{hT}, 8, v{hT}"); a(f"v_sub_u32 v{vYo}, v{vYo}, v{hT}")
    a(f"s_mov_b32 s{sLo}, 0x05040100"); a(f"s_mov_b32 s{sHi}, 0x07060302")
    assert vGo > DK[1]+3 and vGo > HF[0]+15
    if opt.get("k2"):
        a("s_nop 7"); a("s_nop 7")
        a(f"s_cmp_eq_u32 s{sC}, 1"); a("s_cbranch_scc1 L_k2d")
        stamp("h")
        a(f"s_mov_b32 s{sC}, 1"); a("s_branch L_k2"); a("L_k2d:")
    stamp("h")
    h_sig(4, L_CNT)
    if FE == 1: kv_flags(False)
    for i in range(2): a(f"v_mov_b32 v{hT+i}, 0")
    hl_wait(13, 2)
    a(f"s_setprio {opt.get('ktprio', 3)}")
    for lb in range(2): a(f"ds_write_b64 v{vKb}, {v(DK[lb]+2,2)} offset:{128*(1-lb)}")
    a(f"ds_write_b64 v{vKz}, {v(hT,2)} offset:2048")
    for lb in range(2): a(f"ds_write_b128 v{vKc}, {v(HF[0]+8*lb,4)} offset:{256+128*(1-lb)}")
    a("s_mov_b32 exec_lo, 0")
    for lb in range(2): a(f"ds_write_b128 v{vKc}, {v(HF[0]+8*lb+4,4)} offset:{128*(1-lb)}")
    a("s_mov_b32 exec_lo, -1")
    stamp("h")
    def gather(part):
        a(f"s_mul_i32 s{sT}, s{sH}, {512*1280}"); a(f"s_lshl_b32 s{sT2}, s{sCg}, 3"); a(f"s_add_u32 s{sT}, s{sT}, s{sT2}")
        if part: a(f"s_add_u32 s{sT}, s{sT}, 5120")
        for i in range(4*part, 4*part+4):
            a(f"buffer_load_dwordx2 {v(G+2+2*i,2)}, v{vGo}, s[{sX}:{sX+3}], s{sT} offen offset:{1280*(i%4)}")
        if part: return
        a(f"s_sub_u32 s{sT}, s{sT}, 1280")
        a(f"s_cmp_eq_u32 s{sH}, 0"); a(f"s_cselect_b32 s{sT}, 0x10000000, s{sT}")
        a(f"v_mov_b32 v{hT}, s{sT}")
        a("s_mov_b64 exec, 1")
        a(f"buffer_load_dwordx2 {v(G,2)}, v{hT}, s[{sX}:{sX+3}], 0 offen")
        a("s_mov_b64 exec, -1")
    def zero_c2(halo):
        a(f"s_mul_i32 s{sT}, s{sH}, {UP}"); a(f"s_add_u32 s{sT}, s{sT}, {L_U}")
        a(f"v_add_u32 v{hT+4}, s{sT}, v{hDma}")
        for i in range(4): a(f"v_mov_b32 v{hT+i}, 0")
        a("s_mov_b64 exec, 15")
        a(f"ds_write_b128 v{hT+4}, {v(hT,4)}")
        if halo:
            a("s_mov_b64 exec, 3")
            a(f"ds_write_b128 v{hT+4}, {v(hT,4)} offset:4608")
        a("s_mov_b64 exec, -1")
    def uwrite():
        for d in range(2): a(f"v_mov_b32_dpp v{G+d}, v{G+16+d} wave_shr:1 row_mask:0xf bank_mask:0xf")
        for c in range(4):
            for odd in range(2):
                B = UW + 8*c + 4*odd
                for q in range(4):
                    r0 = G + 2*(2*q+1-odd) + (c >> 1)
                    a(f"v_perm_b32 v{B+q}, v{r0+2}, v{r0}, s{sHi if c & 1 else sLo}")
                a(f"ds_write_b128 v{vUw}, {v(B,4)} offset:{UP*c+4576*odd}")
        if opt.get("halo", 1):
            a(f"s_cmp_eq_u32 s{sH}, 3"); a("s_cselect_b32 exec_lo, 0x00ff00ff, -1"); a("s_mov_b32 exec_hi, 0")
            a(f"ds_read_b128 {v(G,4)}, v{vHa} offset:480"); a("s_waitcnt lgkmcnt(0)")
            a(f"ds_write_b128 v{vHa}, {v(G,4)} offset:544")
            a("s_mov_b64 exec, -1")
            return
        a(f"s_cmp_eq_u32 s{sH}, 3"); a("s_mov_b32 exec_lo, 0xc0000000"); a("s_cselect_b32 exec_hi, 0, exec_lo")
        for c in range(4):
            for odd in range(2): a(f"ds_write_b128 v{vUw}, {v(UW+8*c+4*odd,4)} offset:{UP*c+4576*odd+64}")
        a("s_mov_b64 exec, -1")
    def ufrag(dst, R_, k): return [f"ds_read2_b32 {v(dst+2*i,2)}, v{vU+R_} offset0:{8*k+2*i} offset1:{8*k+2*i+1}" for i in range(2)]
    def kfrag(dst, D, k): return [f"ds_read_b128 {v(dst,4)}, v{vKf} offset:{1536-512*D+16*k}"]
    def cmm(R_, D, k, b, z):
        N = R_+D
        return f"v_mfma_f32_32x32x16_bf16 {v(YA+16*N,16)}, {v(UF[b]+4*R_,4)}, {v(KF[b]+4*D,4)}, {'0' if z else v(YA+16*N,16)}"
    GA = opt.get("ga", 2)
    pairsA = [(R_, N-R_) for N in range(GA) for R_ in range(N+1)]
    pairsB = sorted([(R_, N-R_) for N in range(GA, 4) for R_ in range(N+1)])
    jobs = []
    for k in range(16):
        hu = set(); hk = set()
        for R_, D in pairsA:
            rd = []
            if R_ not in hu: rd += ufrag(UF[k&1]+4*R_, R_, k); hu.add(R_)
            if D not in hk: rd += kfrag(KF[k&1]+4*D, D, k); hk.add(D)
            jobs.append((rd, cmm(R_, D, k, k & 1, k == 0 and R_ == 0)))
    NJA = len(jobs)
    EXP = [tuple(x) for x in opt.get("ex", [(0,2),(1,1)] if G3 else [(0,3),(0,2)])]
    started = set()
    for k in range(16 if EXP else 0):
        hu = set(); hk = set()
        for R_, D in EXP:
            rd = []
            if R_ not in hu: rd += ufrag(UF[k&1]+4*R_, R_, k); hu.add(R_)
            if D not in hk: rd += kfrag(KF[k&1]+4*D, D, k); hk.add(D)
            jobs.append((rd, cmm(R_, D, k, k & 1, R_+D not in started))); started.add(R_+D)
    if G3:
        for k in range(16): jobs.append((ufrag(UF[k&1]+8, 2, k) + kfrag(KF[k&1], 0, k), cmm(2, 0, k, k & 1, False)))
        opt.setdefault("sched", [0,0,0,12+4*len(EXP),12+4*len(EXP),12+4*len(EXP),12+4*len(EXP),16])
        assert opt["sched"][7] >= 16
    sched = opt.get("sched", {0: [0]*8, 1: [0,0,0,16,0,0,0,0], 2: [0,0,0,16,16,16,8*len(EXP),8*len(EXP)]}[GA])
    assert sum(sched) == len(jobs)
    lastA = min(c for c in range(8) if sum(sched[:c+1]) >= NJA)
    def combine(N):
        for i in range(8):
            a(f"v_add_f32_dpp v{YA+16*N+i}, v{YA+16*N+8+i}, v{YA+16*N+i} row_ror:8 row_mask:0xf bank_mask:0xc")
        if N:
            for i in range(8):
                a(f"v_add_f32_dpp v{YA+16*N+i}, v{YA+16*N-8+i}, v{YA+16*N+i} row_ror:8 row_mask:0xf bank_mask:0x3")
        for i in range(4): a(f"v_cvt_pk_bf16_f32 v{YA+16*N+i}, v{YA+16*N+2*i}, v{YA+16*N+2*i+1}")
    def yread(T, tail, idx):
        p = 18 if tail else 36
        for i in range(2): a(f"ds_read2st64_b32 {v(T+2*i,2)}, v{vYr+tail} offset0:{2*p*i+int(4*idx)} offset1:{2*p*i+p+int(4*idx)}")
    def yout(T, N):
        a(f"s_mul_i32 s{sT}, s{sH}, {128*2560}"); a(f"s_lshl_b32 s{sT2}, s{sCg}, 3"); a(f"s_add_u32 s{sT}, s{sT}, s{sT2}")
        a(f"s_add_u32 s{sT}, s{sT}, {512*2560*N+1280}")
        if opt.get("ytest") == 1:
            a(f"s_sub_u32 s{sT}, s{sT}, s{sT2}"); a(f"s_and_b32 s{sT2}, s2, 7"); a(f"s_lshl_b32 s{sT2}, s{sT2}, 7"); a(f"s_add_u32 s{sT}, s{sT}, s{sT2}")
            a(f"s_and_b32 s{sT2}, s2, 0x78"); a(f"s_add_u32 s{sT}, s{sT}, s{sT2}")
        if opt.get("ytest") == 3:
            a(f"s_sub_u32 s{sT}, s{sT}, s{sT2}"); a(f"s_and_b32 s{sT2}, s2, 7"); a(f"s_lshl_b32 s{sT2}, s{sT2}, 7"); a(f"s_add_u32 s{sT}, s{sT}, s{sT2}")
            a(f"s_and_b32 s{sT2}, s2, 0x78"); a(f"s_add_u32 s{sT}, s{sT}, s{sT2}"); a(f"s_add_u32 s{sT}, s{sT}, 64")
        for r_ in range(2):
            for i in range(2): a(f"v_perm_b32 v{T+4+2*r_+i}, v{T+2*i+1}, v{T+2*i}, s{sHi if r_ else sLo}")
            a(f"buffer_store_dwordx2 {v(T+4+2*r_,2)}, v{vYo}, s[{sA}:{sA+3}], s{sT} offen offset:{2560*r_} {opt.get('ysc','') if N >= opt.get('ywt', 0) else 'sc1'}")
    def seg_dma(c):
        if 1 <= c <= 6: ring_dma(sH, hDma)
        if 1 <= c <= 3: wo_step()
        if c == 4:
            a(f"s_lshr_b32 s{sT}, s2, 3"); a(f"s_lshl_b32 s{sT}, s{sT}, 2"); a(f"s_add_u32 s{sT}, s{sT}, s{sH}"); a(f"s_mul_i32 s{sT}, s{sT}, 2560")
            a(f"s_add_u32 s{sT}, s{sT}, {320*1280}")
            a(f"v_lshlrev_b32 v{hT}, 7, v{vL}")
            a("s_mov_b64 exec, 0xfffff")
            a(f"buffer_load_dword v{hT}, v{hT}, s[{sWQ}:{sWQ+3}], s{sT} offen")
            a("s_mov_b64 exec, -1")
        if c == opt.get("pseg", 5):
            a(f"s_lshl_b32 s{sT}, s{sG}, 3"); a(f"s_add_u32 s{sT}, s{sT}, s{sS}"); a(f"s_lshl_b32 s{sT}, s{sT}, 2"); a(f"s_add_u32 s{sT}, s{sT}, s{sH}")
            a(f"s_mul_i32 s{sT}, s{sT}, 2560"); a(f"s_add_u32 s{sT}, s{sT}, {WS_O}")
            for i in range(4): a(f"v_mov_b32 v{hT+i}, -1")
            a(f"s_add_u32 s{sT2}, s{sT}, {WS_OB}")
            for i in range(3):
                if i == 2: a("s_mov_b32 exec_hi, 0")
                for r_ in ((sT,) if SAME else (sT, sT2)): a(f"buffer_store_dwordx4 {v(hT,4)}, v{hDma}, s[{sWS}:{sWS+3}], s{r_} offen offset:{1024*i} sc1")
            a("s_mov_b32 exec_hi, -1")
        if c == opt.get("fseg", 7.5):
            Lw = lab("f8")
            a(f"s_cmp_lg_u32 s{sH}, 0"); a(f"s_cbranch_scc1 {Lw}")
            publish(hT, WS_FO, sH)
            a(f"{Lw}:")
        if c == 7:
            Lw = lab("w7")
            a(f"s_cmp_eq_u32 s{sH}, 3"); a(f"s_cbranch_scc1 {Lw}")
            wo_set(1, 0); wo_step()
            a(f"{Lw}:")
        if c == 8:
            Lw = lab("w8")
            wo_set(1, 3); wo_step()
            a(f"s_cmp_lg_u32 s{sH}, 3"); a(f"s_cbranch_scc1 {Lw}")
            wo_step()
            a(f"{Lw}:")
    GS = opt.get("gs", [0, 3])
    def useg(c, tail):
        for half in range(2):
            ph = c - GS[half]
            if ph not in (0, 1): continue
            Lx = lab("ux")
            a(f"s_cmp_ge_u32 s{sH}, 2"); a(f"s_cbranch_scc{1-half} {Lx}")
            if not tail: gather(ph)
            else:
                a(f"s_waitcnt vmcnt({5-ph}) lgkmcnt(0)")
                a("s_barrier"); a(f"s_branch L_seg{c+1}")
            a(f"{Lx}:")
    def useg_early(c):
        for half in range(2):
            if c != (GS[0]+2, 7)[half] and not (G3 and half and c == 6): continue
            Lx = lab("uw"); Ly = lab("uy")
            n = (5 if c <= 3 else 1 if c == 4 else 0)
            if G3 and half: a(f"s_cmp_eq_u32 s{sH}, {c-4}"); a(f"s_cbranch_scc0 {Lx}")
            else: a(f"s_cmp_ge_u32 s{sH}, 2"); a(f"s_cbranch_scc{1-half} {Lx}")
            if not half: a(f"s_waitcnt vmcnt({n+6})")
            a(f"s_setprio {opt.get('uprio', 3)}")
            uwrite()
            a("s_setprio 0")
            a(f"{Lx}:")
    srd(a, sA, pOut, 2048*2560)
    if FE == 2: kv_flags(False)
    pre_b1(not FE)
    stamp("h")
    useg(0, False)
    a("s_setprio 0")
    useg(0, True)
    a("s_waitcnt vmcnt(0) lgkmcnt(0)")
    a("s_barrier")
    jn = 0
    for c in range(1, 8):
        a(f"L_seg{c}:")
        seg_dma(c)
        if c == 1: zero_c2(True)
        useg(c, False)
        useg_early(c)
        if GA and c == lastA + 1:
            assert c - GS[1] > 1 and c < 7
            for N in range(GA): yread(UW+8*N, 0, 4.5*N if G3 else N)
            for N in range(GA):
                a(f"s_waitcnt lgkmcnt({2*(GA-1-N)})"); yout(UW+8*N, N)
        pipe = c in opt.get("pipe", [3, 4, 5, 6, 7] if G3 else [])
        if G3 and c == 7 and opt.get("p7"): a(f"s_setprio {opt['p7']}")
        for i_ in range(sched[c]):
            rd, mm_ = jobs[jn]; jn += 1
            nrd = jobs[jn][0] if pipe and i_+1 < sched[c] else []
            if not pipe or i_ == 0:
                for x in rd: a(x)
            for x in nrd: a(x)
            if rd: a(f"s_waitcnt lgkmcnt({len(nrd)})")
            a(mm_)
        if G3 and c == 7:
            a(f"s_setprio {opt.get('uprio', 3)}")
            a(f"s_mul_i32 s{sT}, s{sH}, {KRP-1024}"); a(f"s_add_u32 s{sT}, s{sT}, {L_KR-L_Y}")
            a(f"v_subrev_u32 v{hT}, s{sT}, v{vY+1}"); a(f"v_subrev_u32 v{hT+1}, {L_KR-L_Y}, v{vYr+1}")
            combine(2)
            a(f"ds_write_b128 v{hT}, {v(YA+32,4)}")
            h_sig(1)
            a("s_setprio 0")
            hl_wait(1, 1, L_C2)
            for i in range(2): a(f"ds_read2st64_b32 {v(UW+2*i,2)}, v{hT+1} offset0:{8*i} offset1:{8*i+4}")
            a("s_waitcnt lgkmcnt(0)")
            yout(UW, 2)
        if GA and c == lastA:
            a("s_nop 15")
            a(f"s_setprio {opt.get('uprio', 3)}")
            for N in range(GA):
                combine(N)
                a(f"ds_write_b128 v{vY}, {v(YA+16*N,4)} offset:{(4608 if G3 else 1024)*N}")
            a("s_setprio 0")
        useg(c, True)
        RLX = opt.get("rlx", 3)
        assert opt.get("pseg", 5) < 7 and opt.get("pseg", 5) - GS[1] > 1
        a(f"s_waitcnt vmcnt({(4 if GA and c == lastA + 1 and RLX & 2 else 0) + (2 if G3 and c == 7 else 0) + (6 if c == opt.get('pseg', 5) and RLX & 1 else 0)}) lgkmcnt(0)")
        if c == 7: seg_dma(7.5)
        a("s_barrier")
    a("L_seg8:")
    stamp("h")
    assert GA == 2
    bsteps = []; SPLIT = opt.get("split", 1)
    for k in range(16):
        order = [(0,3),(0,2),(1,2),(1,1),(2,1),(2,0)] if k < 15 else [(0,2),(1,1),(2,0),(0,3),(1,2),(2,1)]
        if SPLIT == 2: order.remove((0,3))
        order = [x for x in order if x not in EXP]
        if G3: order = [x for x in [(0,3),(1,2),(2,1),(3,0)] if x not in EXP]
        bsteps.append([(R_, R_, D, D, k) for R_, D in order])
    if G3: pass
    elif SPLIT == 1:
        for k in range(0, 16, 4): bsteps.append([(i, 3, i, 0, k+i) for i in range(4)])
    else:
        for k in range(0, 16, 2): bsteps.append([(i, 3*(i&1), i, 3-3*(i&1), k+i//2) for i in range(4)])
    YO = {1: (0, 2304), 2: (768, 2304+768)}[SPLIT]
    YSTEP = opt.get("ystep", {1: 19, 2: 18}[SPLIT])
    def breads(n):
        r = []; seen = set()
        for us, R_, ks_, D, k in bsteps[n]:
            if ("k", ks_) not in seen: r += [(("k", n, ks_), x) for x in kfrag(KF[n&1]+4*ks_, D, k)]
            if ("u", us) not in seen: r += [(("u", n, us), x) for x in ufrag(UF[n&1]+4*us, R_, k)]
            seen |= {("k", ks_), ("u", us)}
        return r
    DS = Q("lgkmcnt", 15)
    for t_, x in breads(0): a(x); DS.add(t_)
    seg_dma(8)
    a(f"s_setprio {opt.get('bprio', 1)}")
    def lines(fn):
        keep = a.lines; a.lines = []; fn(); got = a.lines; a.lines = keep; return got
    first = set(started)
    for n, st in enumerate(bsteps):
        nx = breads(n+1) if n+1 < len(bsteps) else []
        per = -(-len(nx)//(len(st)-1)) if n < 15 and not G3 else max(3, -(-len(nx)//len(st)))
        fill_ = lines(lambda: combine(2)) if n == 16 else []
        if opt.get("bprof") and n % 8 == 0: stamp("h")
        if n == opt.get("bdrop", 99): a("s_setprio 0")
        for i, (us, R_, ks_, D, k) in enumerate(st):
            DS.wait(("k", n, ks_), ("u", n, us))
            N = R_+D
            a(f"v_mfma_f32_32x32x16_bf16 {v(YA+16*N,16)}, {v(UF[n&1]+4*us,4)}, {v(KF[n&1]+4*ks_,4)}, {v(YA+16*N,16) if N in first else '0'}"); first.add(N)
            for t_, x in nx[per*i:per*i+per]: a(x); DS.add(t_)
            for x in fill_[5*i:5*i+5]: a(x)
        if n == 16:
            if SPLIT == 1: a(f"ds_write_b128 v{vY+1}, {v(YA+32,4)} offset:{YO[0]}")
            else: a(f"ds_write_b128 v{vY}, {v(YA+32,4)}")
            h_sig(1); DS.add("s", 2)
        if n == YSTEP:
            hl_wait(1, 0, L_C2)
            if SPLIT == 1: yread(UW, 1, 0)
            else: yread(UW, 0, 0)
            a("s_waitcnt lgkmcnt(0)"); DS.q = []
            yout(UW, 2)
        if n == opt.get("wosig", 8):
            a("s_waitcnt vmcnt(0)"); h_sig(0); DS.add("s")
    stamp("h")
    a(f"s_setprio {opt.get('yprio', 1)}")
    combine(3)
    a(f"ds_write_b128 v{vY+1}, {v(YA+48,4)} offset:2304")
    h_sig(2)
    hl_wait(2, 0, L_C2)
    yread(UF[0]+8, 1, 2.25)
    a("s_waitcnt lgkmcnt(0)")
    yout(UF[0]+8, 3)
    if prof:
        stamp("h"); a("s_waitcnt vmcnt(0)"); stamp("h")
    a("s_branch L_h_end")
    a("L_h_tr:")
    if HP: a("s_setprio 0")
    if WQPF == 3: wq_pf()
    a("s_waitcnt lgkmcnt(0)")
    if WQPF in (1, 2): wq_pf()
    tagfix()
    a(f"s_cmp_ge_u32 s{sS}, 2"); a("s_cbranch_scc1 L_h_now")
    HW = Regs(H.p); wP = HW(5)
    wpattern(wP, vL, hT, True)
    srd(a, sX, pWQ, 640*1280)
    a(f"s_mul_i32 s{sT3}, s{sS}, 160")
    a(f"s_add_u32 s{sC}, s{sH}, 16"); a(f"s_mul_i32 s{sC}, s{sC}, 40960"); a(f"s_add_u32 s{sC}, s{sC}, s{sT3}")
    a(f"s_mul_i32 s{sCh}, s{sH}, {4*40960}"); a(f"s_add_u32 s{sCh}, s{sCh}, s{sT3}")
    a(f"s_lshl_b32 s{sT5}, s{sH}, 2"); a(f"s_add_u32 s{sT5}, s{sT5}, {L_CNT}")
    early = opt.get("kvt", -1) >= 0
    if opt.get("touch", 0):
        a(f"s_lshr_b32 s{sT}, s{sG}, 2"); a(f"s_mul_i32 s{sT}, s{sT}, {CHUNK}")
        a(f"s_bfe_u32 s{sT2}, s{sG}, 0x10001"); a(f"s_mul_i32 s{sT2}, s{sT2}, {GRP}"); a(f"s_add_u32 s{sT}, s{sT}, s{sT2}")
        a(f"s_and_b32 s{sT2}, s{sG}, 1"); a(f"s_mul_i32 s{sT2}, s{sT2}, 2688"); a(f"s_add_u32 s{sT2}, s{sT2}, 1024"); a(f"s_mul_i32 s{sT2}, s{sT2}, s{sS}")
        a(f"s_add_u32 s{sT}, s{sT}, s{sT2}"); a(f"s_lshl_b32 s{sT2}, s{sH}, 10"); a(f"s_add_u32 s{sT}, s{sT}, s{sT2}"); a(f"s_add_u32 s{sT}, s{sT}, {WS_KV+4096}")
        a(f"s_lshl_b32 s{sT2}, s2, 7"); a(f"s_add_u32 s{sT2}, s{sT2}, {WS_FKV}")
        a(f"s_cmp_eq_u32 s{sH}, 3"); a(f"s_cselect_b32 s{sT}, s{sT2}, s{sT}")
        a(f"v_lshlrev_b32 v{hT+6}, 7, v{vL}")
        a("s_cselect_b64 exec, 1, 0xff")
        a(f"buffer_load_dword v{hT+7}, v{hT+6}, s[{sWS}:{sWS+3}], s{sT} offen sc1")
        a("s_mov_b64 exec, -1")
    a(f"s_waitcnt vmcnt({opt.get('touch', 0)})"); h_sig(0, L_CNT)
    hl_wait(8, 1, f"s{sT5}", 1)
    a(f"s_mul_i32 m0, s{sH}, 5120")
    wkstep_dma(wP, sX, sC)
    if KV2:
        a(f"s_add_u32 m0, m0, {L_F-5120}")
        wkstep_dma(wP, sX, sCh)
    if early: hl_wait(8, 1, f"s{sT5}", 2)
    a(f"s_mul_i32 s{sT}, s{sH}, 20480"); a(f"s_add_u32 m0, s{sT}, {L_X + (5120 if KV2 else 0)}")
    for i in range(4):
        if not (KV2 and i == 0): wkstep_dma(wP, sX, sCh)
        a(f"s_add_u32 s{sCh}, s{sCh}, 40960")
        if i >= 1:
            a("s_waitcnt vmcnt(10)"); h_sig(CW[i-1], L_CNT)
    a("s_waitcnt vmcnt(5)"); h_sig(CW[3], L_CNT)
    a("s_waitcnt vmcnt(0)"); h_sig(CW[4], L_CNT)
    a("L_h_now:")
    h_sig(4, L_CNT)
    pre_b1()
    a("s_waitcnt vmcnt(0)")
    a("s_barrier")
    for c in range(1, 8):
        seg_dma(c)
        if c == 1:
            zero_c2(False)
        if c == opt.get("upf", 1):
            srd(a, sX, pU, 2048*1280)
            a(f"s_and_b32 s{sT}, s2, 7"); a(f"s_lshl_b32 s{sT}, s{sT}, 3")
            a(f"s_mov_b32 s{sT2}, 0x08050200"); a(f"s_mov_b32 s{sT3}, 0x120f0c0a")
            a(f"s_lshr_b64 s[{sT2}:{sT3}], s[{sT2}:{sT3}], s{sT}"); a(f"s_and_b32 s{sT2}, s{sT2}, 0xff"); a(f"s_lshl_b32 s{sT2}, s{sT2}, 6")
            a(f"s_lshr_b32 s{sT}, s2, 3"); a(f"s_lshl_b32 s{sT}, s{sT}, 2"); a(f"s_add_u32 s{sT}, s{sT}, s{sH}"); a(f"s_add_u32 s{sT}, s{sT}, 32")
            a(f"s_mul_i32 s{sT}, s{sT}, {32*1280}"); a(f"s_add_u32 s{sT}, s{sT}, s{sT2}")
            a(f"v_lshrrev_b32 v{hT+6}, 1, v{vL}"); a(f"v_mul_u32_u24 v{hT+6}, 10, v{hT+6}"); a(f"v_and_b32 v{hT+7}, 1, v{vL}")
            a(f"v_add_lshl_u32 v{hT+6}, v{hT+6}, v{hT+7}, 7")
            a(f"v_add_u32 v{hT+6}, s{sT}, v{hT+6}")
            a(f"buffer_load_dword v{hT+7}, v{hT+6}, s[{sX}:{sX+3}], 0 offen")
        if "s" in opt.get("wb", "") and c == 7:
            Lw = lab("wb")
            a(f"s_lshr_b32 s{sT}, s2, 3"); a(f"s_lshl_b32 s{sT}, s{sT}, 2"); a(f"s_add_u32 s{sT}, s{sT}, s{sH}")
            a(f"s_cmp_lg_u32 s{sT}, {4*opt.get('wbs', 0)+3}"); a(f"s_cbranch_scc1 {Lw}")
            a("buffer_wbl2 sc1")
            a(f"{Lw}:")
        a(f"s_waitcnt vmcnt({6 if c == opt.get('pseg', 5) and RLX & 1 else 1 if c == opt.get('upf', 1) else 0}) lgkmcnt(0)")
        if c == 7: seg_dma(7.5)
        a("s_barrier")
    seg_dma(8)
    a("s_waitcnt vmcnt(0)"); h_sig(0)
    tag_advance()
    WBM = opt.get("wb", "")
    if WBM:
        a(f"s_lshr_b32 s{sT}, s2, 3"); a(f"s_lshl_b32 s{sT}, s{sT}, 2"); a(f"s_add_u32 s{sT}, s{sT}, s{sH}")
        a(f"s_cmp_lg_u32 s{sT}, {4*opt.get('wbw', 8)+1}"); a("s_cbranch_scc1 L_h_end")
        if "a" in WBM: a("buffer_wbl2 sc1"); a("s_waitcnt vmcnt(0)")
        if "b" in WBM:
            hl_wait(3, 4, L_C2)
            a("buffer_wbl2 sc1"); a("s_waitcnt vmcnt(0)")
    a("L_h_end:")
    prof_store("h", hT)
    a("L_end:")
    a("s_endpgm")
    nv = max(hi_a, HK.hi, HC.hi)
    return a, nv

HDR = open("cdna_kernels/" + NAME + ".s.ref").read().split("; @launch")[0] if os.path.exists("cdna_kernels/" + NAME + ".s.ref") else ""
def build(path, prof=False, opt=None, verbose=False):
    a, nv = gen(prof, opt)
    lines = hz.fix(a.lines, verbose)
    body = "\n".join(lines) + "\n"
    k = NAME + "_kernel"
    nv = 256 if prof else max(nv, 129)
    txt = HDR + f"; @launch grid=(256,1,1) block=(512,1,1) lds={LDS_TOTAL}\n" + '.amdgcn_target "amdgcn-amd-amdhsa--gfx950"\n'
    txt += kernel_header(k) + body + "L_code_end:\n" + kernel_desc(k, nv)
    txt = txt.replace("CODE_BYTES", f"(L_code_end-{k}-64)&0xfffffffc")
    open(path, "w").write(txt)
    return nv
if __name__ == "__main__":
    nv = build("cdna_kernels/" + NAME + ".s", False, None, "-v" in sys.argv)
    print("vgprs", nv)
    build("k_prof.s", True)
    build("k_slow.s", False, {"forceslow": 1})
    import json
    for i, o in enumerate([x for x in sys.argv[1:] if x.startswith("{")]):
        if "-r" in sys.argv: build(f"k_r{i+1}.s", False, json.loads(o))
        else: build(f"k_prof{i+1}.s", True, json.loads(o))
```
